```python
import torch

def _softmax(x, axis=-1):
    return torch.softmax(x, dim=axis)
def _gelu(x):
    return torch.nn.functional.gelu(x, approximate="tanh")
def _silu(x):
    return torch.nn.functional.silu(x)
def _sigmoid(x):
    return torch.sigmoid(x)
def _layernorm(x, axis=-1, eps=1e-5):
    m = x.mean(dim=axis, keepdim=True)
    v = x.var(dim=axis, keepdim=True, unbiased=False)
    return (x - m) / torch.sqrt(v + eps)
def _scatter_add(tgt, idx, src, axis=0):
    return tgt.clone().index_add_(axis, idx, src)
def _segment_sum(src, seg, n):
    out = torch.zeros((n,) + src.shape[1:], dtype=src.dtype)
    return out.index_add_(0, seg, src)
def _pad(x, pw):
    flat = tuple(v for pair in reversed(pw) for v in pair)
    return torch.nn.functional.pad(x, flat)

kernel_name = 'gated_mix__sliding_block_cached__sliding_block_cached__decode'

def setup_inputs():

    _w = (lambda a: (lambda t: t.to(torch.bfloat16) if t.is_floating_point() else t)(torch.as_tensor(a)))
    def _A_setup():
        B, Sq, D = 1, 1, 512
        Hq, Hkv, Sk, Dh = 32, 8, 65536, 128
        assert Hq % Hkv == 0, (Hq, Hkv)
        return {
            "x": _w((lambda *s: torch.randn(*s, dtype=torch.bfloat16) * 0.05)(B, Sq, D)),
            "k_cache": _w((lambda *s: torch.randn(*s, dtype=torch.bfloat16) * 6.4)(B, Hkv, Sk, Dh)),
            "v_cache": _w((lambda *s: torch.randn(*s, dtype=torch.bfloat16) * 0.05)(B, Hkv, Sk, Dh)),
            "wq": _w((lambda *s: torch.randn(*s, dtype=torch.bfloat16) * 6.4)(D, Hq * Dh) * (D ** -0.5)),
            "wo": _w((lambda *s: torch.randn(*s, dtype=torch.bfloat16) * 0.05)(Hq * Dh, D) * ((Hq * Dh) ** -0.5)),
        }
    _A_in = _A_setup()

    def _B_setup():
        B, Sq, D = 1, 1, 512
        Hq, Hkv, Sk, Dh = 32, 8, 65536, 128
        assert Hq % Hkv == 0, (Hq, Hkv)
        return {
            "x": _w((lambda *s: torch.randn(*s, dtype=torch.bfloat16) * 0.05)(B, Sq, D)),
            "k_cache": _w((lambda *s: torch.randn(*s, dtype=torch.bfloat16) * 6.4)(B, Hkv, Sk, Dh)),
            "v_cache": _w((lambda *s: torch.randn(*s, dtype=torch.bfloat16) * 0.05)(B, Hkv, Sk, Dh)),
            "wq": _w((lambda *s: torch.randn(*s, dtype=torch.bfloat16) * 6.4)(D, Hq * Dh) * (D ** -0.5)),
            "wo": _w((lambda *s: torch.randn(*s, dtype=torch.bfloat16) * 0.05)(Hq * Dh, D) * ((Hq * Dh) ** -0.5)),
        }
    _B_in = _B_setup()

    return {
        "A_x": _A_in["x"],
        "A_k_cache": _A_in["k_cache"],
        "A_v_cache": _A_in["v_cache"],
        "A_wq": _A_in["wq"],
        "A_wo": _A_in["wo"],
        "B_x": _B_in["x"],
        "B_k_cache": _B_in["k_cache"],
        "B_v_cache": _B_in["v_cache"],
        "B_wq": _B_in["wq"],
        "B_wo": _B_in["wo"],
        "gate_w": _w((lambda *s: torch.randn(*s, dtype=torch.bfloat16) * 0.05)(512) * 16.0),
    }

def reference(A_x, A_k_cache, A_v_cache, A_wq, A_wo, B_x, B_k_cache, B_v_cache, B_wq, B_wo, gate_w):
    def _A_ref(x, k_cache, v_cache, wq, wo):
        B, Sq, D = x.shape
        Hq, Dh = 32, 128
        Hkv, Sk = k_cache.shape[1], k_cache.shape[2]
        W = min(4096, max(256, Sk // 4))
        rep = Hq // Hkv
        q = (lambda x, *d: x.permute(*d))((x @ wq).reshape(B, Sq, Hq, Dh), 0, 2, 1, 3)
        k = (lambda x, n, axis: torch.repeat_interleave(x, n, dim=axis))(k_cache[:, :, Sk - W:, :], rep, axis=1)
        v = (lambda x, n, axis: torch.repeat_interleave(x, n, dim=axis))(v_cache[:, :, Sk - W:, :], rep, axis=1)
        scores = torch.einsum("bhqd,bhkd->bhqk", q, k) * (Dh ** -0.5)
        p = _softmax(scores, axis=-1)
        o = torch.einsum("bhqk,bhkd->bhqd", p, v)
        return (lambda x, *d: x.permute(*d))(o, 0, 2, 1, 3).reshape(B, Sq, Hq * Dh) @ wo

    def _B_ref(x, k_cache, v_cache, wq, wo):
        B, Sq, D = x.shape
        Hq, Dh = 32, 128
        Hkv, Sk = k_cache.shape[1], k_cache.shape[2]
        W = min(4096, max(256, Sk // 4))
        rep = Hq // Hkv
        q = (lambda x, *d: x.permute(*d))((x @ wq).reshape(B, Sq, Hq, Dh), 0, 2, 1, 3)
        k = (lambda x, n, axis: torch.repeat_interleave(x, n, dim=axis))(k_cache[:, :, Sk - W:, :], rep, axis=1)
        v = (lambda x, n, axis: torch.repeat_interleave(x, n, dim=axis))(v_cache[:, :, Sk - W:, :], rep, axis=1)
        scores = torch.einsum("bhqd,bhkd->bhqk", q, k) * (Dh ** -0.5)
        p = _softmax(scores, axis=-1)
        o = torch.einsum("bhqk,bhkd->bhqd", p, v)
        return (lambda x, *d: x.permute(*d))(o, 0, 2, 1, 3).reshape(B, Sq, Hq * Dh) @ wo

    x = A_x
    g = _sigmoid((x * gate_w).sum(-1, keepdims=True))
    a = _A_ref(x, A_k_cache, A_v_cache, A_wq, A_wo)
    b = _B_ref(x, B_k_cache, B_v_cache, B_wq, B_wo)
    return g * a + (1 - g) * b
```

```python
import sys

NAME = "gated_mix__sliding_block_cached__sliding_block_cached__decode"

WS_EPOCH = 0x0
WS_Q = 0x1000
WS_ML = 0x30000
WS_O = 0x40000
WS_F = 0x140000
WS_STAMP = 0x300000

L_QP = 0x0
L_Q = 0x800
L_MX = 0xC00
L_LS = 0xC40
L_OP = 0x1000
L_AI = 0x3000

DEF = dict(
    stamps=0, window=12, nv_before=12, ldflag="nt", flayout="P", lds=90112, spin=200000,
    prefetch_code=1, wo_lag=4,
)


class Em:
    def __init__(self):
        self.L = []
        self.q = []

    def e(self, s):
        self.L.append("    " + s)

    def lab(self, s):
        self.L.append(s + ":")

    def c(self, s):
        self.L.append("    ; " + s)

    def vm(self, name, s):
        self.e(s)
        self.q.append(name)

    def wait(self, name):
        if name not in self.q:
            return
        i = self.q.index(name)
        n = len(self.q) - 1 - i
        self.e("s_waitcnt vmcnt(%d)" % n)
        self.q = self.q[i + 1:]

    def window(self, w):
        if w and len(self.q) >= w:
            self.wait(self.q[len(self.q) - w])

    def waitall(self):
        self.e("s_waitcnt vmcnt(0)")
        self.q = []


def vr(a, n=1):
    return "v%d" % a if n == 1 else "v[%d:%d]" % (a, a + n - 1)


def gen(**kw):
    P = dict(DEF)
    P.update(kw)
    W = P["window"]
    FL = P["ldflag"]
    ST = P["stamps"]
    m = Em()
    e = m.e

    sX, sGATE, sOUT, sWS = 8, 28, 30, 34
    sKVH, sBR, sJ, sWAVE, sGRP = 36, 37, 38, 39, 40
    sK, sV, sWQ, sWO = 44, 46, 48, 50
    sT0, sT1 = 52, 53
    sTAG = 54
    sSC, sL2E, sMASK = 58, 59, 60
    sSPIN = 61
    sB = 62
    sB2 = 64
    sPROD = 66
    sSTAMP = 70
    nst = [0]

    def stamp(idx):
        if ST:
            e("s_memrealtime s[%d:%d]" % (sSTAMP + 2 * idx, sSTAMP + 2 * idx + 1))

    def dump_stamps(n, slot_sgpr_wave):
        if not ST:
            return
        e("s_waitcnt lgkmcnt(0)")
        e("s_mov_b64 exec, 1")
        for i in range(n):
            e("v_mov_b32 v%d, s%d" % (8 + i, sSTAMP + 2 * i))
        for i in range(n, 16):
            e("v_mov_b32 v%d, 0" % (8 + i))
        e("s_lshl_b32 s%d, s2, 3" % sT0)
        e("s_add_u32 s%d, s%d, s%d" % (sT0, sT0, sWAVE))
        e("s_lshl_b32 s%d, s%d, 6" % (sT0, sT0))
        e("s_add_u32 s%d, s%d, 0x%x" % (sT0, sT0, WS_STAMP))
        e("v_mov_b32 v1, s%d" % sT0)
        for i in range(4):
            e("global_store_dwordx4 v1, v[%d:%d], s[%d:%d] offset:%d" % (8 + 4 * i, 11 + 4 * i, sWS, sWS + 1, 16 * i))

    e("s_cmp_ge_u32 s2, 256")
    e("s_cbranch_scc1 L_end")
    stamp(0)
    e("s_load_dwordx16 s[8:23], s[0:1], 0")
    e("s_load_dwordx8 s[24:31], s[0:1], 64")
    e("s_load_dwordx4 s[32:35], s[0:1], 96")
    e("v_lshrrev_b32 v2, 6, v0")
    e("v_and_b32 v1, 63, v0")
    e("v_readfirstlane_b32 s%d, v2" % sWAVE)
    e("s_and_b32 s%d, s2, 7" % sKVH)
    e("s_lshr_b32 s%d, s2, 3" % sT0)
    e("s_and_b32 s%d, s%d, 1" % (sBR, sT0))
    e("s_lshr_b32 s%d, s%d, 1" % (sJ, sT0))
    e("s_lshl_b32 s%d, s%d, 1" % (sGRP, sKVH))
    e("s_add_u32 s%d, s%d, s%d" % (sGRP, sGRP, sBR))
    e("v_lshrrev_b32 v3, 4, v1")
    e("v_and_b32 v4, 15, v1")
    e("s_cmp_eq_u32 s%d, 4" % sWAVE)
    e("s_cbranch_scc1 L_comm")

    vOQ, vOK, vOV, vOO, vOX = 5, 6, 7, 8, 9
    vSEL = 10
    vSP = 18
    vX = 24
    vQ = 28
    vACC = 32
    vT = 40
    vS = 56
    vWQ = 72
    vAX = 104
    vWO = 104
    vK = 136
    vV = 200
    vVregs = [200 + 4 * i for i in range(14)] + [vWQ + 0, vWQ + 4]
    vD = [vWQ + 8 + 4 * i for i in range(6)]

    m.c("lane offsets")
    e("v_lshlrev_b32 v%d, 5, v2" % vOX)
    e("v_lshl_add_u32 v%d, v3, 3, v%d" % (vOX, vOX))
    e("v_lshlrev_b32 v%d, 13, v%d" % (vOQ, vOX))
    e("v_lshl_add_u32 v%d, v4, 4, v%d" % (vOQ, vOQ))
    e("v_lshlrev_b32 v%d, 1, v%d" % (vOX, vOX))
    e("v_bfe_u32 v%d, v1, 2, 2" % vOK)
    e("v_lshlrev_b32 v%d, 8, v%d" % (vOK, vOK))
    e("v_lshl_add_u32 v%d, v3, 6, v%d" % (vOK, vOK))
    e("v_and_b32 v%d, 3, v1" % vT)
    e("v_lshl_add_u32 v%d, v%d, 4, v%d" % (vOK, vT, vOK))
    e("v_lshl_add_u32 v%d, v2, 10, v%d" % (vOK, vOK))
    e("v_lshlrev_b32 v%d, 4, v0" % vOV)
    e("v_lshlrev_b32 v%d, 10, v3" % vOO)
    e("v_lshl_add_u32 v%d, v2, 8, v%d" % (vOO, vOO))
    e("v_lshl_add_u32 v%d, v4, 4, v%d" % (vOO, vOO))
    e("s_lshl_b32 s%d, s%d, 24" % (sT0, sKVH))
    e("s_lshl_b32 s%d, s%d, 12" % (sT1, sJ))
    e("s_add_u32 s%d, s%d, s%d" % (sT0, sT0, sT1))
    e("s_add_u32 s41, s%d, 0xF00000" % sT0)
    e("s_lshl_b32 s%d, s%d, 10" % (sT0, sKVH))
    e("s_lshr_b32 s%d, s%d, 2" % (sT1, sJ))
    e("s_lshl_b32 s%d, s%d, 8" % (sT1, sT1))
    e("s_add_u32 s%d, s%d, s%d" % (sT0, sT0, sT1))
    e("s_and_b32 s%d, s%d, 3" % (sT1, sJ))
    e("s_lshl_b32 s43, s%d, 8" % sT1)
    e("s_lshl_b32 s%d, s%d, 20" % (sT1, sT1))
    e("s_add_u32 s42, s%d, s%d" % (sT0, sT1))
    e("s_lshl_b32 s%d, s%d, 4" % (sT0, sKVH))
    e("s_add_u32 s%d, s%d, s%d" % (sT0, sT0, sJ))
    e("s_lshl_b32 s%d, s%d, 7" % (sPROD, sBR))
    e("s_add_u32 s%d, s%d, s%d" % (sPROD, sPROD, sT0))
    e("s_lshl_b32 s67, s%d, 15" % sT0)
    e("s_cmp_eq_u32 s%d, 0" % sBR)
    e("s_waitcnt lgkmcnt(0)")
    e("s_cselect_b64 s[%d:%d], s[14:15], s[24:25]" % (sWQ, sWQ + 1))
    e("s_cselect_b64 s[%d:%d], s[10:11], s[20:21]" % (sK, sK + 1))
    e("s_cselect_b64 s[%d:%d], s[12:13], s[22:23]" % (sV, sV + 1))
    e("s_cselect_b64 s[%d:%d], s[16:17], s[26:27]" % (sWO, sWO + 1))
    e("s_add_u32 s%d, s%d, s43" % (sB, sX))
    e("s_addc_u32 s%d, s%d, 0" % (sB + 1, sX + 1))
    e("s_add_u32 s%d, s%d, s42" % (sWQ, sWQ))
    e("s_addc_u32 s%d, s%d, 0" % (sWQ + 1, sWQ + 1))
    m.vm("x", "global_load_dwordx4 %s, v%d, s[%d:%d]" % (vr(vX, 4), vOX, sB, sB + 1))

    def ld_wq(i):
        m.vm("wq%d" % i, "global_load_dwordx4 %s, v%d, s[%d:%d] %s" % (vr(vWQ + 4 * i, 4), vOQ, sWQ, sWQ + 1, FL))
        if i < 7:
            e("s_add_u32 s%d, s%d, 8192" % (sWQ, sWQ))
            e("s_addc_u32 s%d, s%d, 0" % (sWQ + 1, sWQ + 1))

    def ld_k(i):
        m.vm("k%d" % i, "global_load_dwordx4 %s, v%d, s[%d:%d] %s" % (vr(vK + 4 * i, 4), vOK, sK, sK + 1, FL))
        if i < 15:
            e("s_add_u32 s%d, s%d, 0x10000" % (sK, sK))
            e("s_addc_u32 s%d, s%d, 0" % (sK + 1, sK + 1))

    def ld_v(i):
        m.vm("v%d" % i, "global_load_dwordx4 %s, v%d, s[%d:%d] %s" % (vr(vVregs[i], 4), vOV, sV, sV + 1, FL))
        if i < 15:
            e("s_add_u32 s%d, s%d, 0x10000" % (sV, sV))
            e("s_addc_u32 s%d, s%d, 0" % (sV + 1, sV + 1))

    def ld_wo(i):
        m.vm("wo%d" % i, "global_load_dwordx4 %s, v%d, s[%d:%d] %s" % (vr(vWO + 4 * i, 4), vOO, sWO, sWO + 1, FL))
        if i < 7:
            e("s_add_u32 s%d, s%d, 4096" % (sWO, sWO))
            e("s_addc_u32 s%d, s%d, 0" % (sWO + 1, sWO + 1))

    for i in range(8):
        ld_wq(i)
    e("s_add_u32 s%d, s%d, s41" % (sK, sK))
    e("s_addc_u32 s%d, s%d, 0" % (sK + 1, sK + 1))
    nk0 = max(0, min(16, W - 9)) if W else 16
    for i in range(nk0):
        ld_k(i)
    e("s_load_dword s%d, s[%d:%d], 0x%x" % (sTAG, sWS, sWS + 1, WS_EPOCH))
    e("s_add_u32 s%d, s%d, s41" % (sV, sV))
    e("s_addc_u32 s%d, s%d, 0" % (sV + 1, sV + 1))
    e("s_add_u32 s%d, s%d, s67" % (sWO, sWO))
    e("s_addc_u32 s%d, s%d, 0" % (sWO + 1, sWO + 1))
    stamp(1)

    m.c("selectors")
    e("v_and_b32 v%d, 1, v1" % (vT + 0))
    e("v_cmp_eq_u32 vcc, 0, v%d" % (vT + 0))
    e("v_mov_b32 v%d, 0x01000c0c" % (vT + 1))
    e("v_mov_b32 v%d, 0x0c0c0100" % (vT + 2))
    e("v_cndmask_b32 v%d, v%d, v%d, vcc" % (vT + 3, vT + 1, vT + 2))
    e("v_mov_b32 v%d, 0x03020c0c" % (vT + 1))
    e("v_mov_b32 v%d, 0x0c0c0302" % (vT + 2))
    e("v_cndmask_b32 v%d, v%d, v%d, vcc" % (vT + 4, vT + 1, vT + 2))
    e("v_mov_b32 v%d, 0x0c0c0c0c" % (vT + 5))
    e("v_bfe_u32 v%d, v1, 1, 2" % (vT + 6))
    for d in range(4):
        e("v_cmp_eq_u32 vcc, %d, v%d" % (d, vT + 6))
        e("s_nop 1")
        e("v_cndmask_b32 v%d, v%d, v%d, vcc" % (vSEL + d, vT + 5, vT + 3))
        e("v_cndmask_b32 v%d, v%d, v%d, vcc" % (vSEL + 4 + d, vT + 5, vT + 4))
    e("v_bfe_u32 v%d, v1, 1, 1" % (vT + 6))
    for d in range(2):
        e("v_cmp_eq_u32 vcc, %d, v%d" % (d, vT + 6))
        e("s_nop 1")
        e("v_cndmask_b32 v%d, v%d, v%d, vcc" % (vSP + d, vT + 5, vT + 3))
        e("v_cndmask_b32 v%d, v%d, v%d, vcc" % (vSP + 2 + d, vT + 5, vT + 4))
    e("s_mov_b32 s%d, 0x3db504f3" % sSC)
    e("s_mov_b32 s%d, 0x3fb8aa3b" % sL2E)
    e("s_mov_b32 s%d, 0xffff0000" % sMASK)

    m.c("q projection")
    m.wait("x")
    for i in range(8):
        for d in range(4):
            e("v_perm_b32 v%d, v%d, v%d, v%d" % (vAX + 4 * i + d, vX + i // 2, vX + i // 2, vSEL + 4 * (i & 1) + d))
    nk = nk0
    for i in range(8):
        m.wait("wq%d" % i)
        e("v_mfma_f32_16x16x32_bf16 %s, %s, %s, %s" % (vr(vACC, 4), vr(vAX + 4 * i, 4), vr(vWQ + 4 * i, 4), "0" if i == 0 else vr(vACC, 4)))
        if nk < 16:
            ld_k(nk)
            nk += 1
    stamp(2)
    e("v_and_b32 v%d, 1, v3" % (vT + 0))
    e("v_lshlrev_b32 v%d, 4, v%d" % (vT + 0, vT + 0))
    e("v_lshl_add_u32 v%d, v4, 5, v%d" % (vT + 0, vT + 0))
    e("v_lshl_add_u32 v%d, v2, 9, v%d" % (vT + 0, vT + 0))
    e("s_nop 4")
    e("s_mov_b32 exec_hi, 0")
    e("ds_write_b128 v%d, %s offset:%d" % (vT + 0, vr(vACC, 4), L_QP))
    e("s_mov_b64 exec, -1")
    e("s_waitcnt lgkmcnt(0)")
    e("s_barrier")
    e("s_add_u32 s%d, s%d, 0x9E3779B9" % (sTAG, sTAG))
    while nk < 16:
        m.window(W)
        ld_k(nk)
        nk += 1
    nv = 0
    while nv < P["nv_before"]:
        m.window(W)
        ld_v(nv)
        nv += 1
    stamp(3)
    e("s_barrier")
    e("v_lshlrev_b32 v%d, 4, v1" % (vT + 0))
    e("ds_read_b128 %s, v%d offset:%d" % (vr(vQ, 4), vT + 0, L_Q))
    stamp(4)
    e("s_waitcnt lgkmcnt(0)")

    m.c("scores")
    pend_v = list(range(nv, 16))

    def more_v(n=1):
        for _ in range(n):
            if pend_v:
                ld_v(pend_v.pop(0))

    qp = ["[0,0,0,0]", "[1,1,1,1]", "[2,2,2,2]", "[3,3,3,3]"]
    for b in range(4):
        for t in range(4):
            i = 4 * b + t
            m.wait("k%d" % i)
            e("v_mfma_f32_16x16x32_bf16 %s, %s, %s, 0" % (vr(vD[t], 4), vr(vK + 4 * i, 4), vr(vQ, 4)))
        more_v(1)
        e("s_nop 4")
        for u in range(4):
            for t in range(4):
                i = 4 * b + t
                if u == 0:
                    e("v_mov_b32_dpp v%d, v%d quad_perm:%s row_mask:0xf bank_mask:0xf" % (vS + i, vD[t], qp[0]))
                else:
                    e("v_add_f32_dpp v%d, v%d, v%d quad_perm:%s row_mask:0xf bank_mask:0xf" % (vS + i, vD[t] + u, vS + i, qp[u]))
    m.c("round to bf16, scale, round to bf16")
    for i in range(0, 16, 2):
        e("v_cvt_pk_bf16_f32 v%d, v%d, v%d" % (vT + i // 2, vS + i, vS + i + 1))
    for i in range(0, 16, 2):
        e("v_lshlrev_b32 v%d, 16, v%d" % (vS + i, vT + i // 2))
        e("v_and_b32 v%d, s%d, v%d" % (vS + i + 1, sMASK, vT + i // 2))
    for i in range(16):
        e("v_mul_f32 v%d, s%d, v%d" % (vS + i, sSC, vS + i))
    for i in range(0, 16, 2):
        e("v_cvt_pk_bf16_f32 v%d, v%d, v%d" % (vT + i // 2, vS + i, vS + i + 1))
    for i in range(0, 16, 2):
        e("v_lshlrev_b32 v%d, 16, v%d" % (vS + i, vT + i // 2))
        e("v_and_b32 v%d, s%d, v%d" % (vS + i + 1, sMASK, vT + i // 2))
    m.c("max")
    vM, vM2, vA1, vA2 = vT + 8, vT + 9, vT + 10, vT + 11
    e("v_max3_f32 v%d, v%d, v%d, v%d" % (vM, vS, vS + 1, vS + 2))
    e("v_max3_f32 v%d, v%d, v%d, v%d" % (vM2, vS + 3, vS + 4, vS + 5))
    for i in range(6, 14, 4):
        e("v_max3_f32 v%d, v%d, v%d, v%d" % (vM, vM, vS + i, vS + i + 1))
        e("v_max3_f32 v%d, v%d, v%d, v%d" % (vM2, vM2, vS + i + 2, vS + i + 3))
    e("v_max3_f32 v%d, v%d, v%d, v%d" % (vM, vM, vS + 14, vS + 15))
    e("v_max_f32 v%d, v%d, v%d" % (vM, vM, vM2))

    def allreduce_groups(v, tmp, op):
        e("v_mov_b32 v%d, v%d" % (tmp, v))
        e("s_nop 1")
        e("v_permlane32_swap_b32 v%d, v%d" % (v, tmp))
        e("%s v%d, v%d, v%d" % (op, v, v, tmp))
        e("v_mov_b32 v%d, v%d" % (tmp, v))
        e("s_nop 1")
        e("v_permlane16_swap_b32 v%d, v%d" % (v, tmp))
        e("%s v%d, v%d, v%d" % (op, v, v, tmp))

    allreduce_groups(vM, vM2, "v_max_f32")
    e("v_lshrrev_b32 v%d, 2, v4" % vA2)
    e("v_lshlrev_b32 v%d, 4, v%d" % (vA2, vA2))
    e("v_lshl_add_u32 v%d, v2, 2, v%d" % (vA1, vA2))
    e("ds_write_b32 v%d, v%d offset:%d" % (vA1, vM, L_MX))
    e("s_waitcnt lgkmcnt(0)")
    e("s_barrier")
    e("ds_read_b128 %s, v%d offset:%d" % (vr(vT, 4), vA2, L_MX))
    more_v(16)
    e("s_waitcnt lgkmcnt(0)")
    e("v_max3_f32 v%d, v%d, v%d, v%d" % (vM, vT, vT + 1, vT + 2))
    e("v_max_f32 v%d, v%d, v%d" % (vM, vM, vT + 3))
    e("v_mul_f32 v%d, s%d, v%d" % (vM2, sL2E, vM))
    m.c("exp")
    for i in range(16):
        e("v_fma_f32 v%d, v%d, s%d, -v%d" % (vS + i, vS + i, sL2E, vM2))
    for i in range(16):
        e("v_exp_f32 v%d, v%d" % (vS + i, vS + i))
    vPA = vK
    for i in range(0, 16, 2):
        e("v_cvt_pk_bf16_f32 v%d, v%d, v%d" % (vT + i // 2, vS + i, vS + i + 1))
    for i in range(16):
        for d in range(2):
            e("v_perm_b32 v%d, v%d, v%d, v%d" % (vPA + 2 * i + d, vT + i // 2, vT + i // 2, vSP + 2 * (i & 1) + d))
    vL, vL2 = vT + 12, vT + 13
    e("v_add_f32 v%d, v%d, v%d" % (vL, vS, vS + 1))
    e("v_add_f32 v%d, v%d, v%d" % (vL2, vS + 2, vS + 3))
    for i in range(4, 16, 2):
        e("v_add_f32 v%d, v%d, v%d" % (vL, vL, vS + i))
        e("v_add_f32 v%d, v%d, v%d" % (vL2, vL2, vS + i + 1))
    e("v_add_f32 v%d, v%d, v%d" % (vL, vL, vL2))
    allreduce_groups(vL, vL2, "v_add_f32")
    e("ds_write_b32 v%d, v%d offset:%d" % (vA1, vL, L_LS))
    stamp(5)
    m.c("addresses used in the tail")
    vA_OW, vA_OR, vA_OG, vA_ML, vA_MG, vA_AI, vA_FG = vS + 0, vS + 1, vS + 2, vS + 3, vS + 4, vS + 5, vS + 6
    vU = vS + 8
    vU2 = vS + 12
    e("v_lshlrev_b32 v%d, 11, v2" % vA_OW)
    e("v_lshl_add_u32 v%d, v1, 4, v%d" % (vA_OW, vA_OW))
    e("v_bfe_u32 v%d, v1, 1, 1" % vA_OR)
    e("v_lshlrev_b32 v%d, 10, v%d" % (vA_OR, vA_OR))
    e("v_lshl_add_u32 v%d, v2, 8, v%d" % (vA_OR, vA_OR))
    e("v_lshrrev_b32 v%d, 2, v1" % (vT + 0))
    e("v_lshl_add_u32 v%d, v%d, 4, v%d" % (vA_OR, vT + 0, vA_OR))
    e("v_and_b32 v%d, 1, v1" % (vT + 0))
    e("v_lshl_add_u32 v%d, v%d, 3, v%d" % (vA_OR, vT + 0, vA_OR))
    e("v_lshl_add_u32 v%d, v2, 2, v3" % vA_OG)
    e("v_lshlrev_b32 v%d, 12, v%d" % (vA_OG, vA_OG))
    e("v_lshl_add_u32 v%d, v4, 4, v%d" % (vA_OG, vA_OG))
    e("v_lshlrev_b32 v%d, 4, v2" % vA_ML)
    e("v_lshl_add_u32 v%d, v2, 2, v1" % vA_MG)
    e("v_lshlrev_b32 v%d, 8, v%d" % (vA_MG, vA_MG))
    e("v_and_b32 v%d, 7, v1" % vA_AI)
    e("v_lshlrev_b32 v%d, 4, v%d" % (vA_AI, vA_AI))
    e("v_lshl_add_u32 v%d, v3, 7, v%d" % (vA_AI, vA_AI))
    e("v_lshlrev_b32 v%d, 6, v2" % vA_FG)
    e("v_lshl_add_u32 v%d, v4, 2, v%d" % (vA_FG, vA_FG))
    e("v_and_b32 v%d, 1, v3" % (vT + 0))
    e("v_lshl_add_u32 v%d, v%d, 1, v%d" % (vA_FG, vT + 0, vA_FG))
    e("v_lshrrev_b32 v%d, 1, v3" % (vT + 0))
    e("v_add_u32 v%d, v%d, v%d" % (vA_FG, vA_FG, vT + 0))
    e("v_lshlrev_b32 v%d, %d, v%d" % (vA_FG, 4 if P["flayout"] == "P" else 12, vA_FG))
    e("v_mov_b32 v%d, s%d" % (vU + 1, sTAG))
    e("v_mov_b32 v%d, s%d" % (vU + 3, sTAG))
    e("v_mov_b32 v%d, s%d" % (vU2 + 1, sTAG))
    e("v_mov_b32 v%d, s%d" % (vU2 + 3, sTAG))
    e("s_lshl_b32 s%d, s%d, 16" % (sT0, sGRP))
    e("s_lshl_b32 s%d, s%d, 8" % (sT1, sJ))
    e("s_add_u32 s%d, s%d, s%d" % (sT0, sT0, sT1))
    e("s_add_u32 s%d, s%d, 0x%x" % (sT1, sT0, WS_O))
    e("s_add_u32 s%d, s%d, s%d" % (sB, sWS, sT1))
    e("s_addc_u32 s%d, s%d, 0" % (sB + 1, sWS + 1))
    e("s_lshr_b32 s%d, s%d, 4" % (sT0, sT0))
    e("s_add_u32 s%d, s%d, 0x%x" % (sT0, sT0, WS_ML))
    e("s_add_u32 s%d, s%d, s%d" % (sB2, sWS, sT0))
    e("s_addc_u32 s%d, s%d, 0" % (sB2 + 1, sWS + 1))
    e("s_lshl_b32 s%d, s%d, %d" % (sT0, sPROD, 12 if P["flayout"] == "P" else 4))
    e("s_add_u32 s%d, s%d, 0x%x" % (sT0, sT0, WS_F))
    e("s_add_u32 s%d, s%d, s%d" % (sK, sWS, sT0))
    e("s_addc_u32 s%d, s%d, 0" % (sK + 1, sWS + 1))

    m.c("PV")
    nwo = 0
    for i in range(16):
        m.wait("v%d" % i)
        for w in range(2):
            e("v_mfma_f32_16x16x16_bf16 %s, %s, %s, %s" % (vr(vACC + 4 * w, 4), vr(vPA + 2 * i, 2), vr(vVregs[i] + 2 * w, 2), "0" if i == 0 else vr(vACC + 4 * w, 4)))
        if i >= P["wo_lag"] and nwo < 8:
            ld_wo(nwo)
            nwo += 1
    while nwo < 8:
        ld_wo(nwo)
        nwo += 1
    stamp(6)
    e("s_nop 7")
    e("ds_write_b128 v%d, %s offset:%d" % (vA_OW, vr(vACC, 4), L_OP))
    e("ds_write_b128 v%d, %s offset:%d" % (vA_OW, vr(vACC + 4, 4), L_OP + 1024))
    e("s_waitcnt lgkmcnt(0)")
    e("s_barrier")
    for w in range(4):
        e("ds_read_b64 %s, v%d offset:%d" % (vr(vT + 2 * w, 2), vA_OR, L_OP + 2048 * w))
    e("ds_read_b128 %s, v%d offset:%d" % (vr(vT + 8, 4), vA_ML, L_LS))
    e("ds_read_b128 %s, v%d offset:%d" % (vr(vT + 12, 4), vA_ML, L_MX))
    e("s_waitcnt lgkmcnt(2)")
    e("v_add_f32 v%d, v%d, v%d" % (vT + 0, vT + 0, vT + 2))
    e("v_add_f32 v%d, v%d, v%d" % (vT + 1, vT + 1, vT + 3))
    e("v_add_f32 v%d, v%d, v%d" % (vT + 4, vT + 4, vT + 6))
    e("v_add_f32 v%d, v%d, v%d" % (vT + 5, vT + 5, vT + 7))
    e("v_add_f32 v%d, v%d, v%d" % (vU + 0, vT + 0, vT + 4))
    e("v_add_f32 v%d, v%d, v%d" % (vU + 2, vT + 1, vT + 5))
    m.vm("st_o", "global_store_dwordx4 v%d, %s, s[%d:%d] sc1" % (vA_OG, vr(vU, 4), sB, sB + 1))
    e("s_waitcnt lgkmcnt(0)")
    e("v_add_f32 v%d, v%d, v%d" % (vT + 8, vT + 8, vT + 9))
    e("v_add_f32 v%d, v%d, v%d" % (vT + 10, vT + 10, vT + 11))
    e("v_max3_f32 v%d, v%d, v%d, v%d" % (vU2 + 0, vT + 12, vT + 13, vT + 14))
    e("v_add_f32 v%d, v%d, v%d" % (vU2 + 2, vT + 8, vT + 10))
    e("v_max_f32 v%d, v%d, v%d" % (vU2 + 0, vU2 + 0, vT + 15))
    e("s_mov_b64 exec, 0xf")
    m.vm("st_ml", "global_store_dwordx4 v%d, %s, s[%d:%d] sc1" % (vA_MG, vr(vU2, 4), sB2, sB2 + 1))
    e("s_mov_b64 exec, -1")
    stamp(7)
    e("s_barrier")
    vAI = vK + 32
    for i in range(8):
        e("ds_read_b128 %s, v%d offset:%d" % (vr(vAI + 4 * i, 4), vA_AI, L_AI + 512 * i))
    stamp(8)
    m.wait("wo7")
    for i in range(8):
        e("s_waitcnt lgkmcnt(%d)" % (0 if ST else 7 - i))
        e("v_mfma_f32_16x16x32_bf16 %s, %s, %s, %s" % (vr(vACC, 4), vr(vAI + 4 * i, 4), vr(vWO + 4 * i, 4), "0" if i == 0 else vr(vACC, 4)))
    e("v_cmp_gt_u32 vcc, 32, v1")
    e("s_nop 7")
    e("v_cndmask_b32 v%d, v%d, v%d, vcc" % (vU + 0, vACC + 2, vACC + 0))
    e("v_cndmask_b32 v%d, v%d, v%d, vcc" % (vU + 2, vACC + 3, vACC + 1))
    m.vm("st_f", "global_store_dwordx4 v%d, %s, s[%d:%d] sc1" % (vA_FG, vr(vU, 4), sK, sK + 1))
    stamp(9)
    dump_stamps(10, sWAVE)
    e("s_endpgm")

    m.q = []
    m.lab("L_comm")
    cA, cB, cC, cD = 5, 6, 7, 8
    cG, cOMG = 9, 10
    cT = 12
    cU = 32
    if P["prefetch_code"]:
        e("s_getpc_b64 s[%d:%d]" % (sB, sB + 1))
        m.lab("L_pc")
        e("s_sub_u32 s%d, s%d, L_pc-%s_kernel" % (sB, sB, NAME))
        e("s_subb_u32 s%d, s%d, 0" % (sB + 1, sB + 1))
        e("v_lshlrev_b32 v%d, 7, v1" % cA)
        e("v_cmp_gt_u32 vcc, L_end-%s_kernel, v%d" % (NAME, cA))
        e("s_and_saveexec_b64 s[%d:%d], vcc" % (sB2, sB2 + 1))
        e("global_load_dword v%d, v%d, s[%d:%d]" % (cT + 19, cA, sB, sB + 1))
        e("s_mov_b64 exec, -1")
    for i in range(4):
        e("v_mov_b32 v%d, 0" % (cT + i))
    e("v_lshlrev_b32 v%d, 4, v1" % cA)
    for i in range(4):
        e("ds_write_b128 v%d, %s offset:%d" % (cA, vr(cT, 4), L_AI + 1024 * i))
    e("s_waitcnt lgkmcnt(0)")
    e("s_load_dword s%d, s[%d:%d], 0x%x" % (sTAG, sWS, sWS + 1, WS_EPOCH))
    e("global_load_dwordx4 %s, v%d, s[%d:%d]" % (vr(cU, 4), cA, sX, sX + 1))
    e("global_load_dwordx4 %s, v%d, s[%d:%d]" % (vr(cU + 4, 4), cA, sGATE, sGATE + 1))
    e("s_mov_b32 s%d, 0x3fb8aa3b" % sL2E)
    e("s_mov_b32 s%d, 0xffff0000" % sMASK)
    stamp(1)
    e("s_waitcnt vmcnt(0)")
    m.c("gate")
    for i in range(4):
        e("v_lshlrev_b32 v%d, 16, v%d" % (cT + 2 * i, cU + i))
        e("v_and_b32 v%d, s%d, v%d" % (cT + 2 * i + 1, sMASK, cU + i))
        e("v_lshlrev_b32 v%d, 16, v%d" % (cT + 8 + 2 * i, cU + 4 + i))
        e("v_and_b32 v%d, s%d, v%d" % (cT + 8 + 2 * i + 1, sMASK, cU + 4 + i))
    for i in range(8):
        e("v_mul_f32 v%d, v%d, v%d" % (cT + i, cT + i, cT + 8 + i))
    for i in range(4):
        e("v_cvt_pk_bf16_f32 v%d, v%d, v%d" % (cT + 8 + i, cT + 2 * i, cT + 2 * i + 1))
    for i in range(4):
        e("v_lshlrev_b32 v%d, 16, v%d" % (cT + 2 * i, cT + 8 + i))
        e("v_and_b32 v%d, s%d, v%d" % (cT + 2 * i + 1, sMASK, cT + 8 + i))
    for i in range(4):
        e("v_add_f32 v%d, v%d, v%d" % (cT + i, cT + i, cT + 4 + i))
    e("v_add_f32 v%d, v%d, v%d" % (cT + 0, cT + 0, cT + 2))
    e("v_add_f32 v%d, v%d, v%d" % (cT + 1, cT + 1, cT + 3))
    e("v_add_f32 v%d, v%d, v%d" % (cT + 0, cT + 0, cT + 1))

    def row_allreduce(v, op):
        for r in (8, 4, 2, 1):
            e("s_nop 1")
            e("%s_dpp v%d, v%d, v%d row_ror:%d row_mask:0xf bank_mask:0xf" % (op, v, v, v, r))

    row_allreduce(cT, "v_add_f32")
    allreduce_groups(cT, cT + 1, "v_add_f32")
    e("v_cvt_pk_bf16_f32 v%d, v%d, v%d" % (cT, cT, cT))
    e("v_and_b32 v%d, s%d, v%d" % (cT, sMASK, cT))
    e("v_mul_f32 v%d, s%d, v%d" % (cT, sL2E, cT))
    e("v_exp_f32 v%d, -v%d" % (cT, cT))
    e("s_nop 0")
    e("v_add_f32 v%d, 1.0, v%d" % (cT, cT))
    e("v_rcp_f32 v%d, v%d" % (cT, cT))
    e("s_nop 0")
    e("v_cvt_pk_bf16_f32 v%d, v%d, v%d" % (cT, cT, cT))
    e("v_and_b32 v%d, s%d, v%d" % (cG, sMASK, cT))
    e("v_sub_f32 v%d, 1.0, v%d" % (cT, cG))
    e("v_cvt_pk_bf16_f32 v%d, v%d, v%d" % (cT, cT, cT))
    e("v_and_b32 v%d, s%d, v%d" % (cOMG, sMASK, cT))
    e("s_waitcnt lgkmcnt(0)")
    e("s_add_u32 s%d, s%d, 0x9E3779B9" % (sTAG, sTAG))
    e("s_lshr_b32 s%d, s%d, 8" % (sTAG + 1, sTAG))
    e("s_lshr_b32 s%d, s%d, 16" % (sTAG + 2, sTAG))
    e("s_lshr_b32 s%d, s%d, 24" % (sTAG + 3, sTAG))
    for k in range(4):
        e("v_mov_b32 v%d, s%d" % (cT + 12 + k, sTAG + k))
    e("s_movk_i32 s%d, 0xff" % sSC)
    e("s_lshl_b32 s%d, s%d, 13" % (sT0, sGRP))
    e("s_add_u32 s%d, s%d, 0x%x" % (sT0, sT0, WS_Q))
    e("s_add_u32 s%d, s%d, s%d" % (sB, sWS, sT0))
    e("s_addc_u32 s%d, s%d, 0" % (sB + 1, sWS + 1))
    e("s_lshl_b32 s%d, s%d, 9" % (sT0, sJ))
    e("s_add_u32 s%d, s%d, s%d" % (sB2, sB, sT0))
    e("s_addc_u32 s%d, s%d, 0" % (sB2 + 1, sB + 1))
    e("v_lshrrev_b32 v%d, 5, v1" % cB)
    e("v_lshlrev_b32 v%d, 10, v%d" % (cB, cB))
    e("v_and_b32 v%d, 31, v1" % cC)
    e("v_lshlrev_b32 v%d, 4, v%d" % (cC, cC))
    e("v_add_u32 v%d, v%d, v%d" % (cB, cB, cC))
    e("v_lshrrev_b32 v%d, 2, v4" % cD)
    e("v_lshlrev_b32 v%d, 11, v%d" % (cD, cD))
    e("v_lshl_add_u32 v%d, v3, 7, v%d" % (cD, cD))
    e("v_and_b32 v%d, 3, v1" % cT)
    e("v_lshl_add_u32 v%d, v%d, 5, v%d" % (cD, cT, cD))
    stamp(2)
    e("s_barrier")
    e("ds_read_b128 %s, v%d offset:%d" % (vr(cT, 4), cB, L_QP))
    e("ds_read_b128 %s, v%d offset:%d" % (vr(cT + 4, 4), cB, L_QP + 512))
    e("s_waitcnt lgkmcnt(0)")
    for k in range(4):
        e("v_add_f32 v%d, v%d, v%d" % (cT + k, cT + k, cT + 4 + k))
    for k in range(4):
        e("v_mov_b32 v%d, v%d" % (cT + 4 + k, cT + k))
    e("s_nop 1")
    for k in range(4):
        e("v_permlane32_swap_b32 v%d, v%d" % (cT + k, cT + 4 + k))
    for k in range(4):
        e("v_add_f32 v%d, v%d, v%d" % (cT + k, cT + k, cT + 4 + k))
    for k in range(4):
        e("v_bfi_b32 v%d, s%d, v%d, v%d" % (cT + k, sSC, cT + 12 + k, cT + k))
    e("s_mov_b32 exec_hi, 0")
    e("global_store_dwordx4 v%d, %s, s[%d:%d] sc1" % (cC, vr(cT, 4), sB2, sB2 + 1))
    e("s_mov_b64 exec, -1")
    stamp(3)
    e("s_mov_b32 s%d, %d" % (sSPIN, P["spin"]))
    m.lab("L_pollq")
    for rq in range(4):
        for hf in range(2):
            e("global_load_dwordx4 %s, v%d, s[%d:%d] offset:%d sc1" % (vr(cU + 8 * rq + 4 * hf, 4), cD, sB, sB + 1, rq * 512 + hf * 16))
    e("s_waitcnt vmcnt(0)")
    e("v_xor_b32 v%d, v%d, v%d" % (cT + 4, cU, cT + 12))
    for k in range(1, 32):
        e("v_bitop3_b32 v%d, v%d, v%d, v%d bitop3:0xf6" % (cT + 4, cT + 4, cU + k, cT + 12 + (k & 3)))
    e("v_and_b32 v%d, 0xff, v%d" % (cT + 4, cT + 4))
    e("v_cmp_ne_u32 vcc, 0, v%d" % (cT + 4))
    e("s_cbranch_vccz L_gotq")
    e("s_sub_u32 s%d, s%d, 1" % (sSPIN, sSPIN))
    e("s_cmp_lg_u32 s%d, 0" % sSPIN)
    e("s_cbranch_scc1 L_pollq")
    m.lab("L_gotq")
    e("s_mov_b32 s%d, 0xffffff00" % sT0)
    for k in range(32):
        e("v_and_b32 v%d, s%d, v%d" % (cU + k, sT0, cU + k))
    for k in range(8):
        e("v_add_f32 v%d, v%d, v%d" % (cU + k, cU + k, cU + 8 + k))
        e("v_add_f32 v%d, v%d, v%d" % (cU + 16 + k, cU + 16 + k, cU + 24 + k))
    for k in range(8):
        e("v_add_f32 v%d, v%d, v%d" % (cU + k, cU + k, cU + 16 + k))
    for k in range(4):
        e("v_cvt_pk_bf16_f32 v%d, v%d, v%d" % (cT + k, cU + 2 * k, cU + 2 * k + 1))
    e("ds_write_b128 v%d, %s offset:%d" % (cA, vr(cT, 4), L_Q))
    e("s_waitcnt lgkmcnt(0)")
    stamp(4)
    e("s_barrier")
    e("s_lshl_b32 s%d, s%d, 4" % (sT0, sGRP))
    e("s_add_u32 s%d, s%d, s%d" % (sT0, sT0, sJ))
    e("s_lshl_b32 s%d, s%d, 12" % (sT1, sT0))
    e("s_add_u32 s%d, s%d, 0x%x" % (sT1, sT1, WS_O))
    e("s_add_u32 s%d, s%d, s%d" % (sB, sWS, sT1))
    e("s_addc_u32 s%d, s%d, 0" % (sB + 1, sWS + 1))
    e("s_lshl_b32 s%d, s%d, 8" % (sT1, sT0))
    e("s_add_u32 s%d, s%d, 0x%x" % (sT1, sT1, WS_ML))
    e("s_add_u32 s%d, s%d, s%d" % (sB2, sWS, sT1))
    e("s_addc_u32 s%d, s%d, 0" % (sB2 + 1, sWS + 1))
    e("v_lshlrev_b32 v%d, 4, v3" % cB)
    e("v_lshlrev_b32 v%d, 8, v4" % cC)
    e("v_mul_u32_u24 v%d, 36, v3" % cD)
    e("v_add_u32 v%d, v%d, v%d" % (cC, cC, cD))
    e("s_lshl_b32 s%d, s%d, 5" % (sT0, sKVH))
    e("s_lshr_b32 s%d, s2, 3" % sT1)
    e("s_add_u32 s68, s%d, s%d" % (sT0, sT1))
    e("s_lshl_b32 s%d, s68, %d" % (sT0, 4 if P["flayout"] == "P" else 12))
    e("s_add_u32 s%d, s%d, 0x%x" % (sT0, sT0, WS_F))
    e("s_add_u32 s%d, s%d, s%d" % (sK, sWS, sT0))
    e("s_addc_u32 s%d, s%d, 0" % (sK + 1, sWS + 1))
    vF = cT + 16
    if P["flayout"] == "P":
        e("v_lshlrev_b32 v%d, 12, v1" % vF)
        for k in range(1, 4):
            e("v_add_u32 v%d, 0x%x, v%d" % (vF + k, k * 64 * 4096, vF))
    else:
        e("v_lshlrev_b32 v%d, 4, v1" % vF)
        for k in range(1, 4):
            e("v_add_u32 v%d, 0x%x, v%d" % (vF + k, k * 1024, vF))
    e("s_barrier")
    e("s_barrier")
    stamp(5)
    e("s_mov_b32 s%d, %d" % (sSPIN, P["spin"]))
    m.lab("L_pollo")
    for i in range(4):
        e("global_load_dwordx4 %s, v%d, s[%d:%d] offset:%d sc1" % (vr(cU + 4 * i, 4), cA, sB, sB + 1, i * 1024))
    for i in range(4):
        e("global_load_dwordx4 %s, v%d, s[%d:%d] offset:%d sc1" % (vr(cU + 16 + 4 * i, 4), cB, sB2, sB2 + 1, i * 64))
    e("s_waitcnt vmcnt(0)")
    e("v_xor_b32 v%d, s%d, v%d" % (cT, sTAG, cU + 1))
    for k in range(1, 16):
        e("v_bitop3_b32 v%d, v%d, v%d, s%d bitop3:0xf6" % (cT, cT, cU + 2 * k + 1, sTAG))
    e("v_cmp_ne_u32 vcc, 0, v%d" % cT)
    e("s_cbranch_vccz L_goto")
    e("s_sub_u32 s%d, s%d, 1" % (sSPIN, sSPIN))
    e("s_cmp_lg_u32 s%d, 0" % sSPIN)
    e("s_cbranch_scc1 L_pollo")
    m.lab("L_goto")
    stamp(6)
    e("v_max3_f32 v%d, v%d, v%d, v%d" % (cT, cU + 16, cU + 20, cU + 24))
    e("v_max_f32 v%d, v%d, v%d" % (cT, cT, cU + 28))
    allreduce_groups(cT, cT + 1, "v_max_f32")
    e("v_mul_f32 v%d, s%d, v%d" % (cT, sL2E, cT))
    for i in range(4):
        e("v_fma_f32 v%d, v%d, s%d, -v%d" % (cT + 2 + i, cU + 16 + 4 * i, sL2E, cT))
    for i in range(4):
        e("v_exp_f32 v%d, v%d" % (cT + 2 + i, cT + 2 + i))
    e("s_nop 0")
    e("v_mul_f32 v%d, v%d, v%d" % (cT + 6, cT + 2, cU + 0))
    e("v_mul_f32 v%d, v%d, v%d" % (cT + 7, cT + 2, cU + 2))
    e("v_mul_f32 v%d, v%d, v%d" % (cT + 8, cT + 2, cU + 18))
    for i in range(1, 4):
        e("v_fmac_f32 v%d, v%d, v%d" % (cT + 6, cT + 2 + i, cU + 4 * i))
        e("v_fmac_f32 v%d, v%d, v%d" % (cT + 7, cT + 2 + i, cU + 4 * i + 2))
        e("v_fmac_f32 v%d, v%d, v%d" % (cT + 8, cT + 2 + i, cU + 16 + 4 * i + 2))
    for sw in ("v_permlane32_swap_b32", "v_permlane16_swap_b32"):
        for k in range(3):
            e("v_mov_b32 v%d, v%d" % (cT + 9 + k, cT + 6 + k))
        e("s_nop 1")
        for k in range(3):
            e("%s v%d, v%d" % (sw, cT + 6 + k, cT + 9 + k))
        for k in range(3):
            e("v_add_f32 v%d, v%d, v%d" % (cT + 6 + k, cT + 6 + k, cT + 9 + k))
    e("v_rcp_f32 v%d, v%d" % (cT + 8, cT + 8))
    e("s_nop 0")
    e("v_mul_f32 v%d, v%d, v%d" % (cT + 6, cT + 6, cT + 8))
    e("v_mul_f32 v%d, v%d, v%d" % (cT + 7, cT + 7, cT + 8))
    e("v_cvt_pk_bf16_f32 v%d, v%d, v%d" % (cT + 6, cT + 6, cT + 7))
    e("ds_write_b16 v%d, v%d offset:%d" % (cC, cT + 6, L_AI))
    e("ds_write_b16 v%d, v%d offset:%d" % (cC, cT + 6, L_AI + 18))
    e("ds_write_b16_d16_hi v%d, v%d offset:%d" % (cC, cT + 6, L_AI + 128))
    e("ds_write_b16_d16_hi v%d, v%d offset:%d" % (cC, cT + 6, L_AI + 128 + 18))
    e("s_waitcnt lgkmcnt(0)")
    stamp(7)
    e("s_barrier")
    e("s_mov_b32 s%d, %d" % (sSPIN, P["spin"]))
    m.lab("L_pollf")
    for k in range(4):
        e("global_load_dwordx4 %s, v%d, s[%d:%d] sc1" % (vr(cU + 4 * k, 4), vF + k, sK, sK + 1))
    e("s_waitcnt vmcnt(0)")
    e("v_xor_b32 v%d, s%d, v%d" % (cT, sTAG, cU + 1))
    for k in range(1, 8):
        e("v_bitop3_b32 v%d, v%d, v%d, s%d bitop3:0xf6" % (cT, cT, cU + 2 * k + 1, sTAG))
    e("v_cmp_ne_u32 vcc, 0, v%d" % cT)
    e("s_cbranch_vccz L_gotf")
    e("s_sub_u32 s%d, s%d, 1" % (sSPIN, sSPIN))
    e("s_cmp_lg_u32 s%d, 0" % sSPIN)
    e("s_cbranch_scc1 L_pollf")
    m.lab("L_gotf")
    stamp(8)
    a0, a1, b0, b1 = cT, cT + 1, cT + 2, cT + 3
    e("v_add_f32 v%d, v%d, v%d" % (a0, cU + 0, cU + 4))
    e("v_add_f32 v%d, v%d, v%d" % (b0, cU + 8, cU + 12))
    e("v_add_f32 v%d, v%d, v%d" % (a1, cU + 2, cU + 6))
    e("v_add_f32 v%d, v%d, v%d" % (b1, cU + 10, cU + 14))
    e("s_nop 0")
    e("v_permlane32_swap_b32 v%d, v%d" % (a0, b0))
    e("v_permlane32_swap_b32 v%d, v%d" % (a1, b1))
    e("v_add_f32 v%d, v%d, v%d" % (a0, a0, b0))
    e("v_add_f32 v%d, v%d, v%d" % (a1, a1, b1))
    e("s_nop 1")
    e("v_permlane16_swap_b32 v%d, v%d" % (a0, a1))
    e("v_add_f32 v%d, v%d, v%d" % (a0, a0, a1))
    row_allreduce(a0, "v_add_f32")
    e("v_cmp_gt_u32 vcc, 32, v1")
    e("v_cvt_pk_bf16_f32 v%d, v%d, v%d" % (a0, a0, a0))
    e("v_and_b32 v%d, s%d, v%d" % (a0, sMASK, a0))
    e("v_cndmask_b32 v%d, v%d, v%d, vcc" % (a1, cOMG, cG))
    e("v_mul_f32 v%d, v%d, v%d" % (a0, a0, a1))
    e("v_cvt_pk_bf16_f32 v%d, v%d, v%d" % (a0, a0, a0))
    e("v_and_b32 v%d, s%d, v%d" % (a0, sMASK, a0))
    e("v_mov_b32 v%d, v%d" % (a1, a0))
    e("s_nop 1")
    e("v_permlane32_swap_b32 v%d, v%d" % (a0, a1))
    e("v_add_f32 v%d, v%d, v%d" % (a0, a0, a1))
    e("v_mov_b32 v%d, v%d" % (a1, a0))
    e("s_nop 1")
    e("v_permlane16_swap_b32 v%d, v%d" % (a0, a1))
    e("v_cvt_pk_bf16_f32 v%d, v%d, v%d" % (a0, a0, a1))
    e("s_lshl_b32 s%d, s68, 2" % sT0)
    e("v_mov_b32 v%d, s%d" % (b0, sT0))
    e("v_mov_b32 v%d, s%d" % (b1, sTAG))
    e("v_mov_b32 v%d, 0" % a1)
    e("s_mov_b64 exec, 1")
    e("global_store_dword v%d, v%d, s[%d:%d]" % (b0, a0, sOUT, sOUT + 1))
    e("s_cmp_lg_u32 s2, 0")
    e("s_cbranch_scc1 L_noep")
    e("global_store_dword v%d, v%d, s[%d:%d] offset:%d" % (a1, b1, sWS, sWS + 1, WS_EPOCH))
    m.lab("L_noep")
    stamp(9)
    dump_stamps(10, sWAVE)
    m.lab("L_end")
    e("s_endpgm")

    hdr = open("cdna_kernels/%s.s.ref" % NAME).read().split("; Override launch")[0]
    out = hdr
    out += "; @launch grid=(256,1,1) block=(320,1,1) lds=%d\n" % P["lds"]
    out += '.amdgcn_target "amdgcn-amd-amdhsa--gfx950"\n.text\n.globl %s_kernel\n.p2align 8\n.type %s_kernel,@function\n%s_kernel:\n' % (NAME, NAME, NAME)
    out += "\n".join(m.L) + "\n"
    out += """.section .rodata,"a"
.p2align 6
.amdhsa_kernel %s_kernel
  .amdhsa_next_free_vgpr 256
  .amdhsa_next_free_sgpr 102
  .amdhsa_accum_offset 256
  .amdhsa_group_segment_fixed_size 0
  .amdhsa_kernarg_size 112
  .amdhsa_user_sgpr_count 2
  .amdhsa_user_sgpr_kernarg_segment_ptr 1
  .amdhsa_system_sgpr_workgroup_id_x 1
.end_amdhsa_kernel
""" % NAME
    return out


if __name__ == "__main__":
    kw = {}
    outp = sys.argv[1]
    for a in sys.argv[2:]:
        k, v = a.split("=")
        kw[k] = int(v) if v.lstrip("-").isdigit() else v
    open(outp, "w").write(gen(**kw))
```

```python
import sys

NAME = "gated_mix__sliding_block_cached__sliding_block_cached__decode"

WS_EPOCH = 0x0
WS_Q = 0x1000
WS_ML = 0x30000
WS_O = 0x40000
WS_F = 0x140000
WS_STAMP = 0x300000

L_QP = 0x0
L_Q = 0x800
L_MX = 0xC00
L_LS = 0xC40
L_OP = 0x1000
L_AI = 0x3000

DEF = dict(
    stamps=0, window=12, nv_before=12, ldflag="nt", flayout="P", lds=90112, spin=200000,
    prefetch_code=1, wo_lag=4,
)


class Em:
    def __init__(self):
        self.L = []
        self.q = []

    def e(self, s):
        self.L.append("    " + s)

    def lab(self, s):
        self.L.append(s + ":")

    def c(self, s):
        self.L.append("    ; " + s)

    def vm(self, name, s):
        self.e(s)
        self.q.append(name)

    def wait(self, name):
        if name not in self.q:
            return
        i = self.q.index(name)
        n = len(self.q) - 1 - i
        self.e("s_waitcnt vmcnt(%d)" % n)
        self.q = self.q[i + 1:]

    def window(self, w):
        if w and len(self.q) >= w:
            self.wait(self.q[len(self.q) - w])

    def waitall(self):
        self.e("s_waitcnt vmcnt(0)")
        self.q = []


def vr(a, n=1):
    return "v%d" % a if n == 1 else "v[%d:%d]" % (a, a + n - 1)


def gen(**kw):
    P = dict(DEF)
    P.update(kw)
    W = P["window"]
    FL = P["ldflag"]
    ST = P["stamps"]
    m = Em()
    e = m.e

    sX, sGATE, sOUT, sWS = 8, 28, 30, 34
    sKVH, sBR, sJ, sWAVE, sGRP = 36, 37, 38, 39, 40
    sK, sV, sWQ, sWO = 44, 46, 48, 50
    sT0, sT1 = 52, 53
    sTAG = 54
    sSC, sL2E, sMASK = 58, 59, 60
    sSPIN = 61
    sB = 62
    sB2 = 64
    sPROD = 66
    sSTAMP = 70
    nst = [0]

    def stamp(idx):
        if ST:
            e("s_memrealtime s[%d:%d]" % (sSTAMP + 2 * idx, sSTAMP + 2 * idx + 1))

    def dump_stamps(n, comm):
        if not ST:
            return
        e("s_waitcnt lgkmcnt(0)")
        e("s_mov_b64 exec, 1")
        if ST == 2:
            slots = {0: None}
            sel = [(0, 0, True), (1, 0, False)] + ([(2, 3, False), (3, 4, False), (4, 6, False), (5, 8, False), (6, 9, False), (7, 8, True), (8, 4, True), (9, 6, True)] if comm else [(10, 2, False), (11, 6, False), (12, 7, False), (13, 9, False), (14, 6, True), (15, 1, False)])
            e("v_mov_b32 v1, 0")
            for (slot, idx, inv) in sel:
                e("v_mov_b32 v8, s%d" % (sSTAMP + 2 * idx))
                if inv:
                    e("v_not_b32 v8, v8")
                e("global_atomic_umax v1, v8, s[32:33] offset:%d" % (4 * slot))
                e("s_waitcnt vmcnt(0)")
            return
        for i in range(n):
            e("v_mov_b32 v%d, s%d" % (8 + i, sSTAMP + 2 * i))
        for i in range(n, 16):
            e("v_mov_b32 v%d, 0" % (8 + i))
        e("s_lshl_b32 s%d, s2, 3" % sT0)
        e("s_add_u32 s%d, s%d, s%d" % (sT0, sT0, sWAVE))
        e("s_lshl_b32 s%d, s%d, 6" % (sT0, sT0))
        e("s_add_u32 s%d, s%d, 0x%x" % (sT0, sT0, WS_STAMP))
        e("v_mov_b32 v1, s%d" % sT0)
        for i in range(4):
            e("global_store_dwordx4 v1, v[%d:%d], s[%d:%d] offset:%d" % (8 + 4 * i, 11 + 4 * i, sWS, sWS + 1, 16 * i))

    e("s_cmp_ge_u32 s2, 256")
    e("s_cbranch_scc1 L_end")
    stamp(0)
    e("s_load_dwordx16 s[8:23], s[0:1], 0")
    e("s_load_dwordx8 s[24:31], s[0:1], 64")
    e("s_load_dwordx4 s[32:35], s[0:1], 96")
    e("v_lshrrev_b32 v2, 6, v0")
    e("v_and_b32 v1, 63, v0")
    e("v_readfirstlane_b32 s%d, v2" % sWAVE)
    e("s_and_b32 s%d, s2, 7" % sKVH)
    e("s_lshr_b32 s%d, s2, 3" % sT0)
    e("s_and_b32 s%d, s%d, 1" % (sBR, sT0))
    e("s_lshr_b32 s%d, s%d, 1" % (sJ, sT0))
    e("s_lshl_b32 s%d, s%d, 1" % (sGRP, sKVH))
    e("s_add_u32 s%d, s%d, s%d" % (sGRP, sGRP, sBR))
    e("v_lshrrev_b32 v3, 4, v1")
    e("v_and_b32 v4, 15, v1")
    e("s_cmp_eq_u32 s%d, 4" % sWAVE)
    e("s_cbranch_scc1 L_comm")

    vOQ, vOK, vOV, vOO, vOX = 5, 6, 7, 8, 9
    vSEL = 10
    vSP = 18
    vX = 24
    vQ = 28
    vACC = 32
    vT = 40
    vS = 56
    vWQ = 72
    vAX = 104
    vWO = 104
    vK = 136
    vV = 200
    vVregs = [200 + 4 * i for i in range(14)] + [vWQ + 0, vWQ + 4]
    vD = [vWQ + 8 + 4 * i for i in range(6)]

    m.c("lane offsets")
    e("v_lshlrev_b32 v%d, 5, v2" % vOX)
    e("v_lshl_add_u32 v%d, v3, 3, v%d" % (vOX, vOX))
    e("v_lshlrev_b32 v%d, 13, v%d" % (vOQ, vOX))
    e("v_lshl_add_u32 v%d, v4, 4, v%d" % (vOQ, vOQ))
    e("v_lshlrev_b32 v%d, 1, v%d" % (vOX, vOX))
    e("v_bfe_u32 v%d, v1, 2, 2" % vOK)
    e("v_lshlrev_b32 v%d, 8, v%d" % (vOK, vOK))
    e("v_lshl_add_u32 v%d, v3, 6, v%d" % (vOK, vOK))
    e("v_and_b32 v%d, 3, v1" % vT)
    e("v_lshl_add_u32 v%d, v%d, 4, v%d" % (vOK, vT, vOK))
    e("v_lshl_add_u32 v%d, v2, 10, v%d" % (vOK, vOK))
    e("v_lshlrev_b32 v%d, 4, v0" % vOV)
    e("v_lshlrev_b32 v%d, 10, v3" % vOO)
    e("v_lshl_add_u32 v%d, v2, 8, v%d" % (vOO, vOO))
    e("v_lshl_add_u32 v%d, v4, 4, v%d" % (vOO, vOO))
    e("s_lshl_b32 s%d, s%d, 24" % (sT0, sKVH))
    e("s_lshl_b32 s%d, s%d, 12" % (sT1, sJ))
    e("s_add_u32 s%d, s%d, s%d" % (sT0, sT0, sT1))
    e("s_add_u32 s41, s%d, 0xF00000" % sT0)
    e("s_lshl_b32 s%d, s%d, 10" % (sT0, sKVH))
    e("s_lshr_b32 s%d, s%d, 2" % (sT1, sJ))
    e("s_lshl_b32 s%d, s%d, 8" % (sT1, sT1))
    e("s_add_u32 s%d, s%d, s%d" % (sT0, sT0, sT1))
    e("s_and_b32 s%d, s%d, 3" % (sT1, sJ))
    e("s_lshl_b32 s43, s%d, 8" % sT1)
    e("s_lshl_b32 s%d, s%d, 20" % (sT1, sT1))
    e("s_add_u32 s42, s%d, s%d" % (sT0, sT1))
    e("s_lshl_b32 s%d, s%d, 4" % (sT0, sKVH))
    e("s_add_u32 s%d, s%d, s%d" % (sT0, sT0, sJ))
    e("s_lshl_b32 s%d, s%d, 7" % (sPROD, sBR))
    e("s_add_u32 s%d, s%d, s%d" % (sPROD, sPROD, sT0))
    e("s_lshl_b32 s67, s%d, 15" % sT0)
    e("s_cmp_eq_u32 s%d, 0" % sBR)
    e("s_waitcnt lgkmcnt(0)")
    e("s_cselect_b64 s[%d:%d], s[14:15], s[24:25]" % (sWQ, sWQ + 1))
    e("s_cselect_b64 s[%d:%d], s[10:11], s[20:21]" % (sK, sK + 1))
    e("s_cselect_b64 s[%d:%d], s[12:13], s[22:23]" % (sV, sV + 1))
    e("s_cselect_b64 s[%d:%d], s[16:17], s[26:27]" % (sWO, sWO + 1))
    e("s_add_u32 s%d, s%d, s43" % (sB, sX))
    e("s_addc_u32 s%d, s%d, 0" % (sB + 1, sX + 1))
    e("s_add_u32 s%d, s%d, s42" % (sWQ, sWQ))
    e("s_addc_u32 s%d, s%d, 0" % (sWQ + 1, sWQ + 1))
    m.vm("x", "global_load_dwordx4 %s, v%d, s[%d:%d]" % (vr(vX, 4), vOX, sB, sB + 1))

    def ld_wq(i):
        m.vm("wq%d" % i, "global_load_dwordx4 %s, v%d, s[%d:%d] %s" % (vr(vWQ + 4 * i, 4), vOQ, sWQ, sWQ + 1, FL))
        if i < 7:
            e("s_add_u32 s%d, s%d, 8192" % (sWQ, sWQ))
            e("s_addc_u32 s%d, s%d, 0" % (sWQ + 1, sWQ + 1))

    def ld_k(i):
        m.vm("k%d" % i, "global_load_dwordx4 %s, v%d, s[%d:%d] %s" % (vr(vK + 4 * i, 4), vOK, sK, sK + 1, FL))
        if i < 15:
            e("s_add_u32 s%d, s%d, 0x10000" % (sK, sK))
            e("s_addc_u32 s%d, s%d, 0" % (sK + 1, sK + 1))

    def ld_v(i):
        m.vm("v%d" % i, "global_load_dwordx4 %s, v%d, s[%d:%d] %s" % (vr(vVregs[i], 4), vOV, sV, sV + 1, FL))
        if i < 15:
            e("s_add_u32 s%d, s%d, 0x10000" % (sV, sV))
            e("s_addc_u32 s%d, s%d, 0" % (sV + 1, sV + 1))

    def ld_wo(i):
        m.vm("wo%d" % i, "global_load_dwordx4 %s, v%d, s[%d:%d] %s" % (vr(vWO + 4 * i, 4), vOO, sWO, sWO + 1, FL))
        if i < 7:
            e("s_add_u32 s%d, s%d, 4096" % (sWO, sWO))
            e("s_addc_u32 s%d, s%d, 0" % (sWO + 1, sWO + 1))

    for i in range(8):
        ld_wq(i)
    e("s_add_u32 s%d, s%d, s41" % (sK, sK))
    e("s_addc_u32 s%d, s%d, 0" % (sK + 1, sK + 1))
    nk0 = max(0, min(16, W - 9)) if W else 16
    for i in range(nk0):
        ld_k(i)
    e("s_load_dword s%d, s[%d:%d], 0x%x" % (sTAG, sWS, sWS + 1, WS_EPOCH))
    e("s_add_u32 s%d, s%d, s41" % (sV, sV))
    e("s_addc_u32 s%d, s%d, 0" % (sV + 1, sV + 1))
    e("s_add_u32 s%d, s%d, s67" % (sWO, sWO))
    e("s_addc_u32 s%d, s%d, 0" % (sWO + 1, sWO + 1))
    stamp(1)

    m.c("selectors")
    e("v_and_b32 v%d, 1, v1" % (vT + 0))
    e("v_cmp_eq_u32 vcc, 0, v%d" % (vT + 0))
    e("v_mov_b32 v%d, 0x01000c0c" % (vT + 1))
    e("v_mov_b32 v%d, 0x0c0c0100" % (vT + 2))
    e("v_cndmask_b32 v%d, v%d, v%d, vcc" % (vT + 3, vT + 1, vT + 2))
    e("v_mov_b32 v%d, 0x03020c0c" % (vT + 1))
    e("v_mov_b32 v%d, 0x0c0c0302" % (vT + 2))
    e("v_cndmask_b32 v%d, v%d, v%d, vcc" % (vT + 4, vT + 1, vT + 2))
    e("v_mov_b32 v%d, 0x0c0c0c0c" % (vT + 5))
    e("v_bfe_u32 v%d, v1, 1, 2" % (vT + 6))
    for d in range(4):
        e("v_cmp_eq_u32 vcc, %d, v%d" % (d, vT + 6))
        e("s_nop 1")
        e("v_cndmask_b32 v%d, v%d, v%d, vcc" % (vSEL + d, vT + 5, vT + 3))
        e("v_cndmask_b32 v%d, v%d, v%d, vcc" % (vSEL + 4 + d, vT + 5, vT + 4))
    e("v_bfe_u32 v%d, v1, 1, 1" % (vT + 6))
    for d in range(2):
        e("v_cmp_eq_u32 vcc, %d, v%d" % (d, vT + 6))
        e("s_nop 1")
        e("v_cndmask_b32 v%d, v%d, v%d, vcc" % (vSP + d, vT + 5, vT + 3))
        e("v_cndmask_b32 v%d, v%d, v%d, vcc" % (vSP + 2 + d, vT + 5, vT + 4))
    e("s_mov_b32 s%d, 0x3db504f3" % sSC)
    e("s_mov_b32 s%d, 0x3fb8aa3b" % sL2E)
    e("s_mov_b32 s%d, 0xffff0000" % sMASK)

    m.c("q projection")
    m.wait("x")
    for i in range(8):
        for d in range(4):
            e("v_perm_b32 v%d, v%d, v%d, v%d" % (vAX + 4 * i + d, vX + i // 2, vX + i // 2, vSEL + 4 * (i & 1) + d))
    nk = nk0
    for i in range(8):
        m.wait("wq%d" % i)
        e("v_mfma_f32_16x16x32_bf16 %s, %s, %s, %s" % (vr(vACC, 4), vr(vAX + 4 * i, 4), vr(vWQ + 4 * i, 4), "0" if i == 0 else vr(vACC, 4)))
        if nk < 16:
            ld_k(nk)
            nk += 1
    stamp(2)
    e("v_and_b32 v%d, 1, v3" % (vT + 0))
    e("v_lshlrev_b32 v%d, 4, v%d" % (vT + 0, vT + 0))
    e("v_lshl_add_u32 v%d, v4, 5, v%d" % (vT + 0, vT + 0))
    e("v_lshl_add_u32 v%d, v2, 9, v%d" % (vT + 0, vT + 0))
    e("s_nop 4")
    e("s_mov_b32 exec_hi, 0")
    e("ds_write_b128 v%d, %s offset:%d" % (vT + 0, vr(vACC, 4), L_QP))
    e("s_mov_b64 exec, -1")
    e("s_waitcnt lgkmcnt(0)")
    e("s_barrier")
    e("s_add_u32 s%d, s%d, 0x9E3779B9" % (sTAG, sTAG))
    while nk < 16:
        m.window(W)
        ld_k(nk)
        nk += 1
    nv = 0
    while nv < P["nv_before"]:
        m.window(W)
        ld_v(nv)
        nv += 1
    stamp(3)
    e("s_barrier")
    e("v_lshlrev_b32 v%d, 4, v1" % (vT + 0))
    e("ds_read_b128 %s, v%d offset:%d" % (vr(vQ, 4), vT + 0, L_Q))
    stamp(4)
    e("s_waitcnt lgkmcnt(0)")

    m.c("scores")
    pend_v = list(range(nv, 16))

    def more_v(n=1):
        for _ in range(n):
            if pend_v:
                ld_v(pend_v.pop(0))

    qp = ["[0,0,0,0]", "[1,1,1,1]", "[2,2,2,2]", "[3,3,3,3]"]
    for b in range(4):
        for t in range(4):
            i = 4 * b + t
            m.wait("k%d" % i)
            e("v_mfma_f32_16x16x32_bf16 %s, %s, %s, 0" % (vr(vD[t], 4), vr(vK + 4 * i, 4), vr(vQ, 4)))
        more_v(1)
        e("s_nop 4")
        for u in range(4):
            for t in range(4):
                i = 4 * b + t
                if u == 0:
                    e("v_mov_b32_dpp v%d, v%d quad_perm:%s row_mask:0xf bank_mask:0xf" % (vS + i, vD[t], qp[0]))
                else:
                    e("v_add_f32_dpp v%d, v%d, v%d quad_perm:%s row_mask:0xf bank_mask:0xf" % (vS + i, vD[t] + u, vS + i, qp[u]))
    m.c("round to bf16, scale, round to bf16")
    for i in range(0, 16, 2):
        e("v_cvt_pk_bf16_f32 v%d, v%d, v%d" % (vT + i // 2, vS + i, vS + i + 1))
    for i in range(0, 16, 2):
        e("v_lshlrev_b32 v%d, 16, v%d" % (vS + i, vT + i // 2))
        e("v_and_b32 v%d, s%d, v%d" % (vS + i + 1, sMASK, vT + i // 2))
    for i in range(16):
        e("v_mul_f32 v%d, s%d, v%d" % (vS + i, sSC, vS + i))
    for i in range(0, 16, 2):
        e("v_cvt_pk_bf16_f32 v%d, v%d, v%d" % (vT + i // 2, vS + i, vS + i + 1))
    for i in range(0, 16, 2):
        e("v_lshlrev_b32 v%d, 16, v%d" % (vS + i, vT + i // 2))
        e("v_and_b32 v%d, s%d, v%d" % (vS + i + 1, sMASK, vT + i // 2))
    m.c("max")
    vM, vM2, vA1, vA2 = vT + 8, vT + 9, vT + 10, vT + 11
    e("v_max3_f32 v%d, v%d, v%d, v%d" % (vM, vS, vS + 1, vS + 2))
    e("v_max3_f32 v%d, v%d, v%d, v%d" % (vM2, vS + 3, vS + 4, vS + 5))
    for i in range(6, 14, 4):
        e("v_max3_f32 v%d, v%d, v%d, v%d" % (vM, vM, vS + i, vS + i + 1))
        e("v_max3_f32 v%d, v%d, v%d, v%d" % (vM2, vM2, vS + i + 2, vS + i + 3))
    e("v_max3_f32 v%d, v%d, v%d, v%d" % (vM, vM, vS + 14, vS + 15))
    e("v_max_f32 v%d, v%d, v%d" % (vM, vM, vM2))

    def allreduce_groups(v, tmp, op):
        e("v_mov_b32 v%d, v%d" % (tmp, v))
        e("s_nop 1")
        e("v_permlane32_swap_b32 v%d, v%d" % (v, tmp))
        e("%s v%d, v%d, v%d" % (op, v, v, tmp))
        e("v_mov_b32 v%d, v%d" % (tmp, v))
        e("s_nop 1")
        e("v_permlane16_swap_b32 v%d, v%d" % (v, tmp))
        e("%s v%d, v%d, v%d" % (op, v, v, tmp))

    allreduce_groups(vM, vM2, "v_max_f32")
    e("v_lshrrev_b32 v%d, 2, v4" % vA2)
    e("v_lshlrev_b32 v%d, 4, v%d" % (vA2, vA2))
    e("v_lshl_add_u32 v%d, v2, 2, v%d" % (vA1, vA2))
    e("ds_write_b32 v%d, v%d offset:%d" % (vA1, vM, L_MX))
    e("s_waitcnt lgkmcnt(0)")
    e("s_barrier")
    e("ds_read_b128 %s, v%d offset:%d" % (vr(vT, 4), vA2, L_MX))
    more_v(16)
    e("s_waitcnt lgkmcnt(0)")
    e("v_max3_f32 v%d, v%d, v%d, v%d" % (vM, vT, vT + 1, vT + 2))
    e("v_max_f32 v%d, v%d, v%d" % (vM, vM, vT + 3))
    e("v_mul_f32 v%d, s%d, v%d" % (vM2, sL2E, vM))
    m.c("exp")
    for i in range(16):
        e("v_fma_f32 v%d, v%d, s%d, -v%d" % (vS + i, vS + i, sL2E, vM2))
    for i in range(16):
        e("v_exp_f32 v%d, v%d" % (vS + i, vS + i))
    vPA = vK
    for i in range(0, 16, 2):
        e("v_cvt_pk_bf16_f32 v%d, v%d, v%d" % (vT + i // 2, vS + i, vS + i + 1))
    for i in range(16):
        for d in range(2):
            e("v_perm_b32 v%d, v%d, v%d, v%d" % (vPA + 2 * i + d, vT + i // 2, vT + i // 2, vSP + 2 * (i & 1) + d))
    vL, vL2 = vT + 12, vT + 13
    e("v_add_f32 v%d, v%d, v%d" % (vL, vS, vS + 1))
    e("v_add_f32 v%d, v%d, v%d" % (vL2, vS + 2, vS + 3))
    for i in range(4, 16, 2):
        e("v_add_f32 v%d, v%d, v%d" % (vL, vL, vS + i))
        e("v_add_f32 v%d, v%d, v%d" % (vL2, vL2, vS + i + 1))
    e("v_add_f32 v%d, v%d, v%d" % (vL, vL, vL2))
    allreduce_groups(vL, vL2, "v_add_f32")
    e("ds_write_b32 v%d, v%d offset:%d" % (vA1, vL, L_LS))
    stamp(5)
    m.c("addresses used in the tail")
    vA_OW, vA_OR, vA_OG, vA_ML, vA_MG, vA_AI, vA_FG = vS + 0, vS + 1, vS + 2, vS + 3, vS + 4, vS + 5, vS + 6
    vU = vS + 8
    vU2 = vS + 12
    e("v_lshlrev_b32 v%d, 11, v2" % vA_OW)
    e("v_lshl_add_u32 v%d, v1, 4, v%d" % (vA_OW, vA_OW))
    e("v_bfe_u32 v%d, v1, 1, 1" % vA_OR)
    e("v_lshlrev_b32 v%d, 10, v%d" % (vA_OR, vA_OR))
    e("v_lshl_add_u32 v%d, v2, 8, v%d" % (vA_OR, vA_OR))
    e("v_lshrrev_b32 v%d, 2, v1" % (vT + 0))
    e("v_lshl_add_u32 v%d, v%d, 4, v%d" % (vA_OR, vT + 0, vA_OR))
    e("v_and_b32 v%d, 1, v1" % (vT + 0))
    e("v_lshl_add_u32 v%d, v%d, 3, v%d" % (vA_OR, vT + 0, vA_OR))
    e("v_lshl_add_u32 v%d, v2, 2, v3" % vA_OG)
    e("v_lshlrev_b32 v%d, 12, v%d" % (vA_OG, vA_OG))
    e("v_lshl_add_u32 v%d, v4, 4, v%d" % (vA_OG, vA_OG))
    e("v_lshlrev_b32 v%d, 4, v2" % vA_ML)
    e("v_lshl_add_u32 v%d, v2, 2, v1" % vA_MG)
    e("v_lshlrev_b32 v%d, 8, v%d" % (vA_MG, vA_MG))
    e("v_and_b32 v%d, 7, v1" % vA_AI)
    e("v_lshlrev_b32 v%d, 4, v%d" % (vA_AI, vA_AI))
    e("v_lshl_add_u32 v%d, v3, 7, v%d" % (vA_AI, vA_AI))
    e("v_lshlrev_b32 v%d, 6, v2" % vA_FG)
    e("v_lshl_add_u32 v%d, v4, 2, v%d" % (vA_FG, vA_FG))
    e("v_and_b32 v%d, 1, v3" % (vT + 0))
    e("v_lshl_add_u32 v%d, v%d, 1, v%d" % (vA_FG, vT + 0, vA_FG))
    e("v_lshrrev_b32 v%d, 1, v3" % (vT + 0))
    e("v_add_u32 v%d, v%d, v%d" % (vA_FG, vA_FG, vT + 0))
    e("v_lshlrev_b32 v%d, %d, v%d" % (vA_FG, 4 if P["flayout"] == "P" else 12, vA_FG))
    e("v_mov_b32 v%d, s%d" % (vU + 1, sTAG))
    e("v_mov_b32 v%d, s%d" % (vU + 3, sTAG))
    e("v_mov_b32 v%d, s%d" % (vU2 + 1, sTAG))
    e("v_mov_b32 v%d, s%d" % (vU2 + 3, sTAG))
    e("s_lshl_b32 s%d, s%d, 16" % (sT0, sGRP))
    e("s_lshl_b32 s%d, s%d, 8" % (sT1, sJ))
    e("s_add_u32 s%d, s%d, s%d" % (sT0, sT0, sT1))
    e("s_add_u32 s%d, s%d, 0x%x" % (sT1, sT0, WS_O))
    e("s_add_u32 s%d, s%d, s%d" % (sB, sWS, sT1))
    e("s_addc_u32 s%d, s%d, 0" % (sB + 1, sWS + 1))
    e("s_lshr_b32 s%d, s%d, 4" % (sT0, sT0))
    e("s_add_u32 s%d, s%d, 0x%x" % (sT0, sT0, WS_ML))
    e("s_add_u32 s%d, s%d, s%d" % (sB2, sWS, sT0))
    e("s_addc_u32 s%d, s%d, 0" % (sB2 + 1, sWS + 1))
    e("s_lshl_b32 s%d, s%d, %d" % (sT0, sPROD, 12 if P["flayout"] == "P" else 4))
    e("s_add_u32 s%d, s%d, 0x%x" % (sT0, sT0, WS_F))
    e("s_add_u32 s%d, s%d, s%d" % (sK, sWS, sT0))
    e("s_addc_u32 s%d, s%d, 0" % (sK + 1, sWS + 1))

    m.c("PV")
    nwo = 0
    for i in range(16):
        m.wait("v%d" % i)
        for w in range(2):
            e("v_mfma_f32_16x16x16_bf16 %s, %s, %s, %s" % (vr(vACC + 4 * w, 4), vr(vPA + 2 * i, 2), vr(vVregs[i] + 2 * w, 2), "0" if i == 0 else vr(vACC + 4 * w, 4)))
        if i >= P["wo_lag"] and nwo < 8:
            ld_wo(nwo)
            nwo += 1
    while nwo < 8:
        ld_wo(nwo)
        nwo += 1
    stamp(6)
    e("s_nop 7")
    e("ds_write_b128 v%d, %s offset:%d" % (vA_OW, vr(vACC, 4), L_OP))
    e("ds_write_b128 v%d, %s offset:%d" % (vA_OW, vr(vACC + 4, 4), L_OP + 1024))
    e("s_waitcnt lgkmcnt(0)")
    e("s_barrier")
    for w in range(4):
        e("ds_read_b64 %s, v%d offset:%d" % (vr(vT + 2 * w, 2), vA_OR, L_OP + 2048 * w))
    e("ds_read_b128 %s, v%d offset:%d" % (vr(vT + 8, 4), vA_ML, L_LS))
    e("ds_read_b128 %s, v%d offset:%d" % (vr(vT + 12, 4), vA_ML, L_MX))
    e("s_waitcnt lgkmcnt(2)")
    e("v_add_f32 v%d, v%d, v%d" % (vT + 0, vT + 0, vT + 2))
    e("v_add_f32 v%d, v%d, v%d" % (vT + 1, vT + 1, vT + 3))
    e("v_add_f32 v%d, v%d, v%d" % (vT + 4, vT + 4, vT + 6))
    e("v_add_f32 v%d, v%d, v%d" % (vT + 5, vT + 5, vT + 7))
    e("v_add_f32 v%d, v%d, v%d" % (vU + 0, vT + 0, vT + 4))
    e("v_add_f32 v%d, v%d, v%d" % (vU + 2, vT + 1, vT + 5))
    m.vm("st_o", "global_store_dwordx4 v%d, %s, s[%d:%d] sc1" % (vA_OG, vr(vU, 4), sB, sB + 1))
    e("s_waitcnt lgkmcnt(0)")
    e("v_add_f32 v%d, v%d, v%d" % (vT + 8, vT + 8, vT + 9))
    e("v_add_f32 v%d, v%d, v%d" % (vT + 10, vT + 10, vT + 11))
    e("v_max3_f32 v%d, v%d, v%d, v%d" % (vU2 + 0, vT + 12, vT + 13, vT + 14))
    e("v_add_f32 v%d, v%d, v%d" % (vU2 + 2, vT + 8, vT + 10))
    e("v_max_f32 v%d, v%d, v%d" % (vU2 + 0, vU2 + 0, vT + 15))
    e("s_mov_b64 exec, 0xf")
    m.vm("st_ml", "global_store_dwordx4 v%d, %s, s[%d:%d] sc1" % (vA_MG, vr(vU2, 4), sB2, sB2 + 1))
    e("s_mov_b64 exec, -1")
    stamp(7)
    e("s_barrier")
    vAI = vK + 32
    for i in range(8):
        e("ds_read_b128 %s, v%d offset:%d" % (vr(vAI + 4 * i, 4), vA_AI, L_AI + 512 * i))
    stamp(8)
    m.wait("wo7")
    for i in range(8):
        e("s_waitcnt lgkmcnt(%d)" % (0 if ST else 7 - i))
        e("v_mfma_f32_16x16x32_bf16 %s, %s, %s, %s" % (vr(vACC, 4), vr(vAI + 4 * i, 4), vr(vWO + 4 * i, 4), "0" if i == 0 else vr(vACC, 4)))
    e("v_cmp_gt_u32 vcc, 32, v1")
    e("s_nop 7")
    e("v_cndmask_b32 v%d, v%d, v%d, vcc" % (vU + 0, vACC + 2, vACC + 0))
    e("v_cndmask_b32 v%d, v%d, v%d, vcc" % (vU + 2, vACC + 3, vACC + 1))
    m.vm("st_f", "global_store_dwordx4 v%d, %s, s[%d:%d] sc1" % (vA_FG, vr(vU, 4), sK, sK + 1))
    stamp(9)
    dump_stamps(10, False)
    e("s_endpgm")

    m.q = []
    m.lab("L_comm")
    cA, cB, cC, cD = 5, 6, 7, 8
    cG, cOMG = 9, 10
    cT = 12
    cU = 32
    if P["prefetch_code"]:
        e("s_getpc_b64 s[%d:%d]" % (sB, sB + 1))
        m.lab("L_pc")
        e("s_sub_u32 s%d, s%d, L_pc-%s_kernel" % (sB, sB, NAME))
        e("s_subb_u32 s%d, s%d, 0" % (sB + 1, sB + 1))
        e("v_lshlrev_b32 v%d, 7, v1" % cA)
        e("v_cmp_gt_u32 vcc, L_end-%s_kernel, v%d" % (NAME, cA))
        e("s_and_saveexec_b64 s[%d:%d], vcc" % (sB2, sB2 + 1))
        e("global_load_dword v%d, v%d, s[%d:%d]" % (cT + 19, cA, sB, sB + 1))
        e("s_mov_b64 exec, -1")
    for i in range(4):
        e("v_mov_b32 v%d, 0" % (cT + i))
    e("v_lshlrev_b32 v%d, 4, v1" % cA)
    for i in range(4):
        e("ds_write_b128 v%d, %s offset:%d" % (cA, vr(cT, 4), L_AI + 1024 * i))
    e("s_waitcnt lgkmcnt(0)")
    e("s_load_dword s%d, s[%d:%d], 0x%x" % (sTAG, sWS, sWS + 1, WS_EPOCH))
    e("global_load_dwordx4 %s, v%d, s[%d:%d]" % (vr(cU, 4), cA, sX, sX + 1))
    e("global_load_dwordx4 %s, v%d, s[%d:%d]" % (vr(cU + 4, 4), cA, sGATE, sGATE + 1))
    e("s_mov_b32 s%d, 0x3fb8aa3b" % sL2E)
    e("s_mov_b32 s%d, 0xffff0000" % sMASK)
    stamp(1)
    e("s_waitcnt vmcnt(0)")
    m.c("gate")
    for i in range(4):
        e("v_lshlrev_b32 v%d, 16, v%d" % (cT + 2 * i, cU + i))
        e("v_and_b32 v%d, s%d, v%d" % (cT + 2 * i + 1, sMASK, cU + i))
        e("v_lshlrev_b32 v%d, 16, v%d" % (cT + 8 + 2 * i, cU + 4 + i))
        e("v_and_b32 v%d, s%d, v%d" % (cT + 8 + 2 * i + 1, sMASK, cU + 4 + i))
    for i in range(8):
        e("v_mul_f32 v%d, v%d, v%d" % (cT + i, cT + i, cT + 8 + i))
    for i in range(4):
        e("v_cvt_pk_bf16_f32 v%d, v%d, v%d" % (cT + 8 + i, cT + 2 * i, cT + 2 * i + 1))
    for i in range(4):
        e("v_lshlrev_b32 v%d, 16, v%d" % (cT + 2 * i, cT + 8 + i))
        e("v_and_b32 v%d, s%d, v%d" % (cT + 2 * i + 1, sMASK, cT + 8 + i))
    for i in range(4):
        e("v_add_f32 v%d, v%d, v%d" % (cT + i, cT + i, cT + 4 + i))
    e("v_add_f32 v%d, v%d, v%d" % (cT + 0, cT + 0, cT + 2))
    e("v_add_f32 v%d, v%d, v%d" % (cT + 1, cT + 1, cT + 3))
    e("v_add_f32 v%d, v%d, v%d" % (cT + 0, cT + 0, cT + 1))

    def row_allreduce(v, op):
        for r in (8, 4, 2, 1):
            e("s_nop 1")
            e("%s_dpp v%d, v%d, v%d row_ror:%d row_mask:0xf bank_mask:0xf" % (op, v, v, v, r))

    row_allreduce(cT, "v_add_f32")
    allreduce_groups(cT, cT + 1, "v_add_f32")
    e("v_cvt_pk_bf16_f32 v%d, v%d, v%d" % (cT, cT, cT))
    e("v_and_b32 v%d, s%d, v%d" % (cT, sMASK, cT))
    e("v_mul_f32 v%d, s%d, v%d" % (cT, sL2E, cT))
    e("v_exp_f32 v%d, -v%d" % (cT, cT))
    e("s_nop 0")
    e("v_add_f32 v%d, 1.0, v%d" % (cT, cT))
    e("v_rcp_f32 v%d, v%d" % (cT, cT))
    e("s_nop 0")
    e("v_cvt_pk_bf16_f32 v%d, v%d, v%d" % (cT, cT, cT))
    e("v_and_b32 v%d, s%d, v%d" % (cG, sMASK, cT))
    e("v_sub_f32 v%d, 1.0, v%d" % (cT, cG))
    e("v_cvt_pk_bf16_f32 v%d, v%d, v%d" % (cT, cT, cT))
    e("v_and_b32 v%d, s%d, v%d" % (cOMG, sMASK, cT))
    e("s_waitcnt lgkmcnt(0)")
    e("s_add_u32 s%d, s%d, 0x9E3779B9" % (sTAG, sTAG))
    e("s_lshr_b32 s%d, s%d, 8" % (sTAG + 1, sTAG))
    e("s_lshr_b32 s%d, s%d, 16" % (sTAG + 2, sTAG))
    e("s_lshr_b32 s%d, s%d, 24" % (sTAG + 3, sTAG))
    for k in range(4):
        e("v_mov_b32 v%d, s%d" % (cT + 12 + k, sTAG + k))
    e("s_movk_i32 s%d, 0xff" % sSC)
    e("s_lshl_b32 s%d, s%d, 13" % (sT0, sGRP))
    e("s_add_u32 s%d, s%d, 0x%x" % (sT0, sT0, WS_Q))
    e("s_add_u32 s%d, s%d, s%d" % (sB, sWS, sT0))
    e("s_addc_u32 s%d, s%d, 0" % (sB + 1, sWS + 1))
    e("s_lshl_b32 s%d, s%d, 9" % (sT0, sJ))
    e("s_add_u32 s%d, s%d, s%d" % (sB2, sB, sT0))
    e("s_addc_u32 s%d, s%d, 0" % (sB2 + 1, sB + 1))
    e("v_lshrrev_b32 v%d, 5, v1" % cB)
    e("v_lshlrev_b32 v%d, 10, v%d" % (cB, cB))
    e("v_and_b32 v%d, 31, v1" % cC)
    e("v_lshlrev_b32 v%d, 4, v%d" % (cC, cC))
    e("v_add_u32 v%d, v%d, v%d" % (cB, cB, cC))
    e("v_lshrrev_b32 v%d, 2, v4" % cD)
    e("v_lshlrev_b32 v%d, 11, v%d" % (cD, cD))
    e("v_lshl_add_u32 v%d, v3, 7, v%d" % (cD, cD))
    e("v_and_b32 v%d, 3, v1" % cT)
    e("v_lshl_add_u32 v%d, v%d, 5, v%d" % (cD, cT, cD))
    stamp(2)
    e("s_barrier")
    e("ds_read_b128 %s, v%d offset:%d" % (vr(cT, 4), cB, L_QP))
    e("ds_read_b128 %s, v%d offset:%d" % (vr(cT + 4, 4), cB, L_QP + 512))
    e("s_waitcnt lgkmcnt(0)")
    for k in range(4):
        e("v_add_f32 v%d, v%d, v%d" % (cT + k, cT + k, cT + 4 + k))
    for k in range(4):
        e("v_mov_b32 v%d, v%d" % (cT + 4 + k, cT + k))
    e("s_nop 1")
    for k in range(4):
        e("v_permlane32_swap_b32 v%d, v%d" % (cT + k, cT + 4 + k))
    for k in range(4):
        e("v_add_f32 v%d, v%d, v%d" % (cT + k, cT + k, cT + 4 + k))
    for k in range(4):
        e("v_bfi_b32 v%d, s%d, v%d, v%d" % (cT + k, sSC, cT + 12 + k, cT + k))
    e("s_mov_b32 exec_hi, 0")
    e("global_store_dwordx4 v%d, %s, s[%d:%d] sc1" % (cC, vr(cT, 4), sB2, sB2 + 1))
    e("s_mov_b64 exec, -1")
    stamp(3)
    e("s_mov_b32 s%d, %d" % (sSPIN, P["spin"]))
    m.lab("L_pollq")
    for rq in range(4):
        for hf in range(2):
            e("global_load_dwordx4 %s, v%d, s[%d:%d] offset:%d sc1" % (vr(cU + 8 * rq + 4 * hf, 4), cD, sB, sB + 1, rq * 512 + hf * 16))
    e("s_waitcnt vmcnt(0)")
    e("v_xor_b32 v%d, v%d, v%d" % (cT + 4, cU, cT + 12))
    for k in range(1, 32):
        e("v_bitop3_b32 v%d, v%d, v%d, v%d bitop3:0xf6" % (cT + 4, cT + 4, cU + k, cT + 12 + (k & 3)))
    e("v_and_b32 v%d, 0xff, v%d" % (cT + 4, cT + 4))
    e("v_cmp_ne_u32 vcc, 0, v%d" % (cT + 4))
    e("s_cbranch_vccz L_gotq")
    e("s_sub_u32 s%d, s%d, 1" % (sSPIN, sSPIN))
    e("s_cmp_lg_u32 s%d, 0" % sSPIN)
    e("s_cbranch_scc1 L_pollq")
    m.lab("L_gotq")
    e("s_mov_b32 s%d, 0xffffff00" % sT0)
    for k in range(32):
        e("v_and_b32 v%d, s%d, v%d" % (cU + k, sT0, cU + k))
    for k in range(8):
        e("v_add_f32 v%d, v%d, v%d" % (cU + k, cU + k, cU + 8 + k))
        e("v_add_f32 v%d, v%d, v%d" % (cU + 16 + k, cU + 16 + k, cU + 24 + k))
    for k in range(8):
        e("v_add_f32 v%d, v%d, v%d" % (cU + k, cU + k, cU + 16 + k))
    for k in range(4):
        e("v_cvt_pk_bf16_f32 v%d, v%d, v%d" % (cT + k, cU + 2 * k, cU + 2 * k + 1))
    e("ds_write_b128 v%d, %s offset:%d" % (cA, vr(cT, 4), L_Q))
    e("s_waitcnt lgkmcnt(0)")
    stamp(4)
    e("s_barrier")
    e("s_lshl_b32 s%d, s%d, 4" % (sT0, sGRP))
    e("s_add_u32 s%d, s%d, s%d" % (sT0, sT0, sJ))
    e("s_lshl_b32 s%d, s%d, 12" % (sT1, sT0))
    e("s_add_u32 s%d, s%d, 0x%x" % (sT1, sT1, WS_O))
    e("s_add_u32 s%d, s%d, s%d" % (sB, sWS, sT1))
    e("s_addc_u32 s%d, s%d, 0" % (sB + 1, sWS + 1))
    e("s_lshl_b32 s%d, s%d, 8" % (sT1, sT0))
    e("s_add_u32 s%d, s%d, 0x%x" % (sT1, sT1, WS_ML))
    e("s_add_u32 s%d, s%d, s%d" % (sB2, sWS, sT1))
    e("s_addc_u32 s%d, s%d, 0" % (sB2 + 1, sWS + 1))
    e("v_lshlrev_b32 v%d, 4, v3" % cB)
    e("v_lshlrev_b32 v%d, 8, v4" % cC)
    e("v_mul_u32_u24 v%d, 36, v3" % cD)
    e("v_add_u32 v%d, v%d, v%d" % (cC, cC, cD))
    e("s_lshl_b32 s%d, s%d, 5" % (sT0, sKVH))
    e("s_lshr_b32 s%d, s2, 3" % sT1)
    e("s_add_u32 s68, s%d, s%d" % (sT0, sT1))
    e("s_lshl_b32 s%d, s68, %d" % (sT0, 4 if P["flayout"] == "P" else 12))
    e("s_add_u32 s%d, s%d, 0x%x" % (sT0, sT0, WS_F))
    e("s_add_u32 s%d, s%d, s%d" % (sK, sWS, sT0))
    e("s_addc_u32 s%d, s%d, 0" % (sK + 1, sWS + 1))
    vF = cT + 16
    if P["flayout"] == "P":
        e("v_lshlrev_b32 v%d, 12, v1" % vF)
        for k in range(1, 4):
            e("v_add_u32 v%d, 0x%x, v%d" % (vF + k, k * 64 * 4096, vF))
    else:
        e("v_lshlrev_b32 v%d, 4, v1" % vF)
        for k in range(1, 4):
            e("v_add_u32 v%d, 0x%x, v%d" % (vF + k, k * 1024, vF))
    e("s_barrier")
    e("s_barrier")
    stamp(5)
    e("s_mov_b32 s%d, %d" % (sSPIN, P["spin"]))
    m.lab("L_pollo")
    for i in range(4):
        e("global_load_dwordx4 %s, v%d, s[%d:%d] offset:%d sc1" % (vr(cU + 4 * i, 4), cA, sB, sB + 1, i * 1024))
    for i in range(4):
        e("global_load_dwordx4 %s, v%d, s[%d:%d] offset:%d sc1" % (vr(cU + 16 + 4 * i, 4), cB, sB2, sB2 + 1, i * 64))
    e("s_waitcnt vmcnt(0)")
    e("v_xor_b32 v%d, s%d, v%d" % (cT, sTAG, cU + 1))
    for k in range(1, 16):
        e("v_bitop3_b32 v%d, v%d, v%d, s%d bitop3:0xf6" % (cT, cT, cU + 2 * k + 1, sTAG))
    e("v_cmp_ne_u32 vcc, 0, v%d" % cT)
    e("s_cbranch_vccz L_goto")
    e("s_sub_u32 s%d, s%d, 1" % (sSPIN, sSPIN))
    e("s_cmp_lg_u32 s%d, 0" % sSPIN)
    e("s_cbranch_scc1 L_pollo")
    m.lab("L_goto")
    stamp(6)
    e("v_max3_f32 v%d, v%d, v%d, v%d" % (cT, cU + 16, cU + 20, cU + 24))
    e("v_max_f32 v%d, v%d, v%d" % (cT, cT, cU + 28))
    allreduce_groups(cT, cT + 1, "v_max_f32")
    e("v_mul_f32 v%d, s%d, v%d" % (cT, sL2E, cT))
    for i in range(4):
        e("v_fma_f32 v%d, v%d, s%d, -v%d" % (cT + 2 + i, cU + 16 + 4 * i, sL2E, cT))
    for i in range(4):
        e("v_exp_f32 v%d, v%d" % (cT + 2 + i, cT + 2 + i))
    e("s_nop 0")
    e("v_mul_f32 v%d, v%d, v%d" % (cT + 6, cT + 2, cU + 0))
    e("v_mul_f32 v%d, v%d, v%d" % (cT + 7, cT + 2, cU + 2))
    e("v_mul_f32 v%d, v%d, v%d" % (cT + 8, cT + 2, cU + 18))
    for i in range(1, 4):
        e("v_fmac_f32 v%d, v%d, v%d" % (cT + 6, cT + 2 + i, cU + 4 * i))
        e("v_fmac_f32 v%d, v%d, v%d" % (cT + 7, cT + 2 + i, cU + 4 * i + 2))
        e("v_fmac_f32 v%d, v%d, v%d" % (cT + 8, cT + 2 + i, cU + 16 + 4 * i + 2))
    for sw in ("v_permlane32_swap_b32", "v_permlane16_swap_b32"):
        for k in range(3):
            e("v_mov_b32 v%d, v%d" % (cT + 9 + k, cT + 6 + k))
        e("s_nop 1")
        for k in range(3):
            e("%s v%d, v%d" % (sw, cT + 6 + k, cT + 9 + k))
        for k in range(3):
            e("v_add_f32 v%d, v%d, v%d" % (cT + 6 + k, cT + 6 + k, cT + 9 + k))
    e("v_rcp_f32 v%d, v%d" % (cT + 8, cT + 8))
    e("s_nop 0")
    e("v_mul_f32 v%d, v%d, v%d" % (cT + 6, cT + 6, cT + 8))
    e("v_mul_f32 v%d, v%d, v%d" % (cT + 7, cT + 7, cT + 8))
    e("v_cvt_pk_bf16_f32 v%d, v%d, v%d" % (cT + 6, cT + 6, cT + 7))
    e("ds_write_b16 v%d, v%d offset:%d" % (cC, cT + 6, L_AI))
    e("ds_write_b16 v%d, v%d offset:%d" % (cC, cT + 6, L_AI + 18))
    e("ds_write_b16_d16_hi v%d, v%d offset:%d" % (cC, cT + 6, L_AI + 128))
    e("ds_write_b16_d16_hi v%d, v%d offset:%d" % (cC, cT + 6, L_AI + 128 + 18))
    e("s_waitcnt lgkmcnt(0)")
    stamp(7)
    e("s_barrier")
    e("s_mov_b32 s%d, %d" % (sSPIN, P["spin"]))
    m.lab("L_pollf")
    for k in range(4):
        e("global_load_dwordx4 %s, v%d, s[%d:%d] sc1" % (vr(cU + 4 * k, 4), vF + k, sK, sK + 1))
    e("s_waitcnt vmcnt(0)")
    e("v_xor_b32 v%d, s%d, v%d" % (cT, sTAG, cU + 1))
    for k in range(1, 8):
        e("v_bitop3_b32 v%d, v%d, v%d, s%d bitop3:0xf6" % (cT, cT, cU + 2 * k + 1, sTAG))
    e("v_cmp_ne_u32 vcc, 0, v%d" % cT)
    e("s_cbranch_vccz L_gotf")
    e("s_sub_u32 s%d, s%d, 1" % (sSPIN, sSPIN))
    e("s_cmp_lg_u32 s%d, 0" % sSPIN)
    e("s_cbranch_scc1 L_pollf")
    m.lab("L_gotf")
    stamp(8)
    a0, a1, b0, b1 = cT, cT + 1, cT + 2, cT + 3
    e("v_add_f32 v%d, v%d, v%d" % (a0, cU + 0, cU + 4))
    e("v_add_f32 v%d, v%d, v%d" % (b0, cU + 8, cU + 12))
    e("v_add_f32 v%d, v%d, v%d" % (a1, cU + 2, cU + 6))
    e("v_add_f32 v%d, v%d, v%d" % (b1, cU + 10, cU + 14))
    e("s_nop 0")
    e("v_permlane32_swap_b32 v%d, v%d" % (a0, b0))
    e("v_permlane32_swap_b32 v%d, v%d" % (a1, b1))
    e("v_add_f32 v%d, v%d, v%d" % (a0, a0, b0))
    e("v_add_f32 v%d, v%d, v%d" % (a1, a1, b1))
    e("s_nop 1")
    e("v_permlane16_swap_b32 v%d, v%d" % (a0, a1))
    e("v_add_f32 v%d, v%d, v%d" % (a0, a0, a1))
    row_allreduce(a0, "v_add_f32")
    e("v_cmp_gt_u32 vcc, 32, v1")
    e("v_cvt_pk_bf16_f32 v%d, v%d, v%d" % (a0, a0, a0))
    e("v_and_b32 v%d, s%d, v%d" % (a0, sMASK, a0))
    e("v_cndmask_b32 v%d, v%d, v%d, vcc" % (a1, cOMG, cG))
    e("v_mul_f32 v%d, v%d, v%d" % (a0, a0, a1))
    e("v_cvt_pk_bf16_f32 v%d, v%d, v%d" % (a0, a0, a0))
    e("v_and_b32 v%d, s%d, v%d" % (a0, sMASK, a0))
    e("v_mov_b32 v%d, v%d" % (a1, a0))
    e("s_nop 1")
    e("v_permlane32_swap_b32 v%d, v%d" % (a0, a1))
    e("v_add_f32 v%d, v%d, v%d" % (a0, a0, a1))
    e("v_mov_b32 v%d, v%d" % (a1, a0))
    e("s_nop 1")
    e("v_permlane16_swap_b32 v%d, v%d" % (a0, a1))
    e("v_cvt_pk_bf16_f32 v%d, v%d, v%d" % (a0, a0, a1))
    e("s_lshl_b32 s%d, s68, 2" % sT0)
    e("v_mov_b32 v%d, s%d" % (b0, sT0))
    e("v_mov_b32 v%d, s%d" % (b1, sTAG))
    e("v_mov_b32 v%d, 0" % a1)
    e("s_mov_b64 exec, 1")
    e("global_store_dword v%d, v%d, s[%d:%d]" % (b0, a0, sOUT, sOUT + 1))
    e("s_cmp_lg_u32 s2, 0")
    e("s_cbranch_scc1 L_noep")
    e("global_store_dword v%d, v%d, s[%d:%d] offset:%d" % (a1, b1, sWS, sWS + 1, WS_EPOCH))
    m.lab("L_noep")
    stamp(9)
    dump_stamps(10, True)
    m.lab("L_end")
    e("s_endpgm")

    hdr = open("cdna_kernels/%s.s.ref" % NAME).read().split("; Override launch")[0]
    out = hdr
    out += "; @launch grid=(256,1,1) block=(320,1,1) lds=%d\n" % P["lds"]
    out += '.amdgcn_target "amdgcn-amd-amdhsa--gfx950"\n.text\n.globl %s_kernel\n.p2align 8\n.type %s_kernel,@function\n%s_kernel:\n' % (NAME, NAME, NAME)
    out += "\n".join(m.L) + "\n"
    out += """.section .rodata,"a"
.p2align 6
.amdhsa_kernel %s_kernel
  .amdhsa_next_free_vgpr 256
  .amdhsa_next_free_sgpr 102
  .amdhsa_accum_offset 256
  .amdhsa_group_segment_fixed_size 0
  .amdhsa_kernarg_size 112
  .amdhsa_user_sgpr_count 2
  .amdhsa_user_sgpr_kernarg_segment_ptr 1
  .amdhsa_system_sgpr_workgroup_id_x 1
.end_amdhsa_kernel
""" % NAME
    return out


if __name__ == "__main__":
    kw = {}
    outp = sys.argv[1]
    for a in sys.argv[2:]:
        k, v = a.split("=")
        kw[k] = int(v) if v.lstrip("-").isdigit() else v
    open(outp, "w").write(gen(**kw))
```

```python
import sys

NAME = "gated_mix__sliding_block_cached__sliding_block_cached__decode"

WS_EPOCH = 0x0
WS_ML = 0x10000
WS_Q = 0x20000
WS_F = 0x40000
WS_QB = 0x60000
WS_O = 0x80000
WS_STAMP = 0x300000
TB = 10
TM = (1 << TB) - 1

L_QP = 0x0
L_Q = 0x800
L_MX = 0xC00
L_CNT = 0xC40
L_LOC = 0xC44
L_W = 0xC80
L_OP = 0x1000

DEF = dict(
    stamps=0, window=6, nv_before=11, ldflag="nt", lds=90112, spin=200000,
    nfast=32, wo_win=10, swz=1, wo_early=0, n_b3=2, tlbwarm=0, omask=1, osleep=0, msleep=2, fsleep=0,
)


class Em:
    def __init__(self):
        self.L = []
        self.q = []

    def e(self, s):
        self.L.append("    " + s)

    def lab(self, s):
        self.L.append(s + ":")

    def c(self, s):
        self.L.append("    ; " + s)

    def vm(self, name, s):
        self.e(s)
        self.q.append(name)

    def wait(self, name):
        if name not in self.q:
            return
        i = self.q.index(name)
        n = len(self.q) - 1 - i
        self.e("s_waitcnt vmcnt(%d)" % n)
        self.q = self.q[i + 1:]

    def window(self, w):
        if w and len(self.q) >= w:
            self.wait(self.q[len(self.q) - w])


def vr(a, n=1):
    return "v%d" % a if n == 1 else "v[%d:%d]" % (a, a + n - 1)


def sp(a):
    return "s[%d:%d]" % (a, a + 1)


DPPALL = "row_mask:0xf bank_mask:0xf"


def gen(**kw):
    P = dict(DEF)
    P.update(kw)
    W = P["window"]
    FL = P["ldflag"]
    ST = P["stamps"]
    m = Em()
    e = m.e

    sX = 4
    sPC = 6
    sK, sV, sWQ, sWO = 8, 10, 12, 14
    sGATE, sOUT, sDBG, sWS = 16, 18, 20, 22
    sKVH, sBR, sJ, sWAVE, sGRP = 24, 25, 26, 27, 28
    sT0, sT1, sT2 = 29, 30, 31
    sTAG, sTM, sMASK, sSPIN = 32, 33, 34, 35
    sSC = 36
    sL2E = 38
    sLOC = 40
    sSAVE = 42
    sSTAMP = 70

    def stamp(idx):
        if ST:
            e("s_memrealtime s[%d:%d]" % (sSTAMP + 2 * idx, sSTAMP + 2 * idx + 1))

    def dump_stamps(n):
        if not ST:
            return
        e("s_waitcnt lgkmcnt(0)")
        if P.get("late_dump", 1):
            lab = "L_ld%d" % len(m.L)
            m.lab(lab)
            e("s_sleep 8")
            e("s_memrealtime s[44:45]")
            e("s_waitcnt lgkmcnt(0)")
            e("s_sub_u32 s44, s44, s%d" % sSTAMP)
            e("s_cmp_lt_u32 s44, 2000")
            e("s_cbranch_scc1 " + lab)
        e("s_mov_b64 exec, 1")
        for i in range(n):
            e("v_mov_b32 v%d, s%d" % (8 + i, sSTAMP + 2 * i))
        for i in range(n, 16):
            e("v_mov_b32 v%d, 0" % (8 + i))
        e("s_lshl_b32 s%d, s2, 3" % sT0)
        e("s_add_u32 s%d, s%d, s%d" % (sT0, sT0, sWAVE))
        e("s_lshl_b32 s%d, s%d, 6" % (sT0, sT0))
        e("s_add_u32 s%d, s%d, 0x%x" % (sT0, sT0, WS_STAMP))
        e("v_mov_b32 v1, s%d" % sT0)
        for i in range(4):
            e("global_store_dwordx4 v1, v[%d:%d], %s offset:%d" % (8 + 4 * i, 11 + 4 * i, sp(sWS), 16 * i))

    def make_tags(v):
        e("s_add_u32 s%d, s%d, 0x9E3779B9" % (sTAG, sTAG))
        for k, sh in enumerate((0, 10, 20, 22)):
            e("s_bfe_u32 s%d, s%d, 0x%x" % (sT0, sTAG, (TB << 16) | sh))
            e("v_mov_b32 v%d, s%d" % (v + k, sT0))
        e("s_mov_b32 s%d, 0x%x" % (sTM, 0xffffffff ^ TM))

    def allreduce_groups(v, tmp, op):
        e("v_mov_b32 v%d, v%d" % (tmp, v))
        e("s_nop 1")
        e("v_permlane32_swap_b32 v%d, v%d" % (v, tmp))
        e("%s v%d, v%d, v%d" % (op, v, v, tmp))
        e("v_mov_b32 v%d, v%d" % (tmp, v))
        e("s_nop 1")
        e("v_permlane16_swap_b32 v%d, v%d" % (v, tmp))
        e("%s v%d, v%d, v%d" % (op, v, v, tmp))

    def row_allreduce(v, op):
        for r in (8, 4, 2, 1):
            e("s_nop 1")
            e("%s_dpp v%d, v%d, v%d row_ror:%d %s" % (op, v, v, v, r, DPPALL))

    def sum_halves_and_tag(t, tg, dst):
        for k in range(4):
            e("v_add_f32 v%d, v%d, v%d" % (t + k, t + k, t + 4 + k))
        for k in range(4):
            e("v_mov_b32 v%d, v%d" % (t + 4 + k, t + k))
        e("s_nop 0")
        for k in range(4):
            e("v_permlane32_swap_b32 v%d, v%d" % (t + k, t + 4 + k))
        for k in range(4):
            e("v_add_f32 v%d, v%d, v%d" % (t + k, t + k, t + 4 + k))
        for k in range(4):
            e("v_and_or_b32 v%d, v%d, s%d, v%d" % (dst + k, t + k, sTM, tg[k]))

    def check_embedded(u, n, tg, acc):
        for k in range(n):
            e("v_xor_b32 v%d, v%d, v%d" % (u + k, u + k, tg + (k & 3)))
        e("v_or3_b32 v%d, v%d, v%d, v%d" % (acc, u, u + 1, u + 2))
        k = 3
        while k < n:
            if k + 1 < n:
                e("v_or3_b32 v%d, v%d, v%d, v%d" % (acc, acc, u + k, u + k + 1))
                k += 2
            else:
                e("v_or_b32 v%d, v%d, v%d" % (acc, acc, u + k))
                k += 1
        e("v_and_b32 v%d, 0x%x, v%d" % (acc, TM, acc))
        e("v_cmp_ne_u32 vcc, 0, v%d" % acc)

    def store_loc(name, text):
        e("s_cmp_lg_u32 s%d, 0" % sLOC)
        e("s_cbranch_scc1 L_wt_" + name)
        e(text)
        e("s_branch L_sd_" + name)
        m.lab("L_wt_" + name)
        e(text + " sc1")
        m.lab("L_sd_" + name)
        m.q.append(name)

    e("s_and_b32 s%d, s2, 8" % sT0)
    e("s_mul_i32 s%d, s%d, 5" % (sT0, sT0))
    e("s_load_dwordx8 s[8:15], s[0:1], s%d offset:0x8" % sT0)
    e("s_load_dwordx2 %s, s[0:1], 0" % sp(sX))
    stamp(0)
    e("v_readfirstlane_b32 s%d, v0" % sWAVE)
    e("s_cmpk_ge_u32 s2, 0x100")
    e("s_cbranch_scc1 L_end")
    e("v_and_b32 v4, 15, v0")
    e("s_and_b32 s%d, s2, 7" % sKVH)
    e("s_cmpk_lt_u32 s%d, 0x100" % sWAVE)
    e("s_cbranch_scc1 L_comp")
    e("s_getpc_b64 %s" % sp(sPC))
    m.lab("L_pc")
    e("v_lshlrev_b32 v5, 7, v0")
    e("v_min_u32 v5, L_end-L_pc+0x8000, v5")
    e("s_sub_u32 s%d, s%d, 0x8000" % (sPC, sPC))
    e("s_subb_u32 s%d, s%d, 0" % (sPC + 1, sPC + 1))
    e("global_load_dword v6, v5, %s" % sp(sPC))
    e("s_branch L_comm")
    m.lab("L_comp")

    vOK, vOV, vOO, vOX = 6, 7, 8, 9
    vMK = 10
    vMP = 14
    vAD = 16
    vZERO, vONE = 18, 19
    vA_OW, vA_OR, vA_OG, vA_OP = 20, 21, 22, 23
    vX = 24
    vTG = 24
    vQ = 28
    vACC = 32
    vT = 40
    vS = 56
    vWQ = 72
    vAX = 104
    vWO = 104
    vK = 136
    vVregs = [200 + 4 * i for i in range(14)] + [vWQ + 0, vWQ + 4]
    vD = [vWQ + 8 + 4 * i for i in range(4)]
    vA_QP, vA_W = vWQ + 24, vWQ + 25

    e("s_lshr_b32 s%d, s2, 6" % sT1)
    e("s_lshl2_add_u32 s%d, s%d, s%d" % (sT0, sKVH, sT1))
    e("s_and_b32 s%d, s2, 48" % sT1)
    e("v_lshrrev_b32 v6, 4, v0")
    e("v_lshl_or_b32 v5, s%d, 4, v4" % sT0)
    e("v_add_u32 v6, s%d, v6" % sT1)
    e("s_movk_i32 s%d, 0x2000" % sT1)
    e("v_lshlrev_b32 v%d, 4, v6" % vOX)
    e("v_lshl_or_b32 v5, v6, 12, v5")
    e("v_lshlrev_b32 v%d, 4, v5" % vT)
    for i in range(1, 8):
        e("v_add_u32 v%d, s%d, v%d" % (vT + i, sT1, vT + i - 1))
    e("s_waitcnt lgkmcnt(0)")
    m.vm("x", "global_load_dwordx4 %s, v%d, %s" % (vr(vX, 4), vOX, sp(sX)))
    for i in range(8):
        m.vm("wq%d" % i, "global_load_dwordx4 %s, v%d, %s %s" % (vr(vWQ + 4 * i, 4), vT + i, sp(sWQ), FL))
    m.lab("L_first")
    stamp(1)

    def decode():
        e("s_load_dwordx8 s[16:23], s[0:1], 80")
        if P.get("padto"):
            e("s_memrealtime s[98:99]")
        e("v_lshrrev_b32 v2, 6, v0")
        e("v_and_b32 v1, 63, v0")
        e("v_bfe_u32 v3, v0, 4, 2")
        e("s_lshr_b32 s%d, s%d, 6" % (sWAVE, sWAVE))
        e("s_bfe_u32 s%d, s2, 0x10003" % sBR)
        e("s_lshr_b32 s%d, s2, 4" % sJ)
        e("s_lshl1_add_u32 s%d, s%d, s%d" % (sGRP, sKVH, sBR))

    decode()
    e("s_lshl_b32 s%d, s%d, 8" % (sT0, sT0))
    e("s_lshl_b32 s%d, s%d, 24" % (sT1, sKVH))
    e("s_lshl_b32 s%d, s%d, 12" % (sT2, sJ))
    e("s_add_u32 s%d, s%d, s%d" % (sT1, sT1, sT2))
    e("s_add_u32 s%d, s%d, 0xF00000" % (sT1, sT1))
    e("v_bfe_u32 v%d, v1, 2, 2" % vOK)
    e("v_lshlrev_b32 v%d, 8, v%d" % (vOK, vOK))
    e("v_lshl_add_u32 v%d, v3, 6, v%d" % (vOK, vOK))
    e("v_and_b32 v5, 3, v1")
    e("v_lshl_add_u32 v%d, v5, 4, v%d" % (vOK, vOK))
    e("v_lshl_add_u32 v%d, v2, 10, v%d" % (vOK, vOK))
    e("v_add_u32 v%d, s%d, v%d" % (vOK, sT1, vOK))
    e("v_lshlrev_b32 v%d, 4, v0" % vOV)
    e("v_add_u32 v%d, s%d, v%d" % (vOV, sT1, vOV))
    e("s_lshl_b32 s%d, s%d, 9" % (sT0, sT0))
    e("s_and_b32 s%d, s%d, 3" % (sT1, sJ))
    e("s_lshl_b32 s%d, s%d, 8" % (sT1, sT1))
    e("s_add_u32 s%d, s%d, s%d" % (sT0, sT0, sT1))
    e("v_and_b32 v5, 1, v3")
    e("v_lshlrev_b32 v%d, 11, v5" % vOO)
    e("v_lshrrev_b32 v5, 1, v3")
    e("v_lshl_add_u32 v%d, v5, 10, v%d" % (vOO, vOO))
    e("v_lshl_add_u32 v%d, v2, 15, v%d" % (vOO, vOO))
    e("v_lshl_add_u32 v%d, v4, 4, v%d" % (vOO, vOO))
    e("v_add_u32 v%d, s%d, v%d" % (vOO, sT0, vOO))
    e("s_waitcnt lgkmcnt(0)")
    e("s_load_dword s%d, %s, 0x%x" % (sTAG, sp(sWS), WS_EPOCH))

    def swz(i):
        return (i << 16) | (((i * P["swz"]) & 15) << 12)

    nad = [0]

    def ld_x(name, dst, off, const, base):
        if const:
            a = vAD + (nad[0] & 1)
            nad[0] += 1
            e("v_xor_b32 v%d, 0x%x, v%d" % (a, const, off))
        else:
            a = off
        m.vm(name, "global_load_dwordx4 %s, v%d, %s %s" % (vr(dst, 4), a, sp(base), FL))

    def ld_k(i):
        ld_x("k%d" % i, vK + 4 * i, vOK, swz(i), sK)

    def ld_v(i):
        ld_x("v%d" % i, vVregs[i], vOV, swz(i), sV)

    def ld_wo(i):
        ld_x("wo%d" % i, vWO + 4 * i, vOO, i << 12, sWO)

    nk = 0
    while nk < P.get("k_early", 0):
        ld_k(nk)
        nk += 1

    m.c("masks")
    e("v_and_b32 v5, 1, v1")
    e("v_lshlrev_b32 v5, 4, v5")
    e("s_mov_b32 s%d, 0xffff" % sT0)
    e("v_lshlrev_b32 v5, v5, s%d" % sT0)
    e("v_bfe_u32 v%d, v1, 1, 2" % (vT + 8))
    for d in range(4):
        e("v_cmp_eq_u32 vcc, %d, v%d" % (d, vT + 8))
        e("s_nop 1")
        e("v_cndmask_b32 v%d, 0, v5, vcc" % (vMK + d))
    e("v_or_b32 v%d, v%d, v%d" % (vMP + 0, vMK + 0, vMK + 2))
    e("v_or_b32 v%d, v%d, v%d" % (vMP + 1, vMK + 1, vMK + 3))
    e("s_mov_b32 s%d, 0x3db504f3" % sSC)
    e("s_mov_b32 s%d, 0x3db504f3" % (sSC + 1))
    e("s_mov_b32 s%d, 0x3fb8aa3b" % sL2E)
    e("s_mov_b32 s%d, 0x3fb8aa3b" % (sL2E + 1))
    e("s_mov_b32 s%d, 0xffff0000" % sMASK)
    e("s_mov_b32 s%d, 0x01000100" % sT0)
    e("s_mov_b32 s%d, 0x03020302" % sT1)
    e("v_mov_b32 v%d, 0" % vZERO)
    e("v_mov_b32 v%d, 1" % vONE)

    m.c("q projection")
    m.wait("x")
    for i in range(8):
        e("v_perm_b32 v%d, v%d, v%d, s%d" % (vT + 8 + i, vX + i // 2, vX + i // 2, sT1 if i & 1 else sT0))
    for i in range(8):
        for d in range(4):
            e("v_and_b32 v%d, v%d, v%d" % (vAX + 4 * i + d, vT + 8 + i, vMK + d))
    for i in range(8):
        m.wait("wq%d" % i)
        e("v_mfma_f32_16x16x32_bf16 %s, %s, %s, %s" % (vr(vACC, 4), vr(vAX + 4 * i, 4), vr(vWQ + 4 * i, 4), "0" if i == 0 else vr(vACC, 4)))
        if nk < 16 and len(m.q) < W:
            ld_k(nk)
            nk += 1
    stamp(2)
    e("v_and_b32 v%d, 1, v3" % vA_QP)
    e("v_lshlrev_b32 v%d, 4, v%d" % (vA_QP, vA_QP))
    e("v_lshl_add_u32 v%d, v4, 5, v%d" % (vA_QP, vA_QP))
    e("v_lshl_add_u32 v%d, v2, 9, v%d" % (vA_QP, vA_QP))
    e("s_mov_b32 exec_hi, 0")
    e("s_nop 2")
    e("ds_write_b128 v%d, %s offset:%d" % (vA_QP, vr(vACC, 4), L_QP))
    e("s_mov_b64 exec, -1")
    e("s_waitcnt lgkmcnt(0)")
    e("s_barrier")
    for _ in range(P.get("k_after_b1", 2)):
        if nk < 16:
            m.window(W)
            ld_k(nk)
            nk += 1
    make_tags(vTG)
    if nk < 16:
        m.window(W)
        ld_k(nk)
        nk += 1

    m.c("addresses used later")
    e("v_lshlrev_b32 v%d, 11, v2" % vA_OW)
    e("v_lshl_add_u32 v%d, v1, 4, v%d" % (vA_OW, vA_OW))
    e("v_lshrrev_b32 v%d, 5, v1" % vA_OR)
    e("v_lshlrev_b32 v%d, 12, v%d" % (vA_OR, vA_OR))
    e("v_and_b32 v5, 1, v1")
    e("v_lshl_add_u32 v%d, v5, 10, v%d" % (vA_OR, vA_OR))
    e("v_lshl_add_u32 v%d, v2, 8, v%d" % (vA_OR, vA_OR))
    e("v_bfe_u32 v5, v1, 1, 4")
    e("v_lshl_add_u32 v%d, v5, 4, v%d" % (vA_OR, vA_OR))
    if nk < 16:
        m.window(W)
        ld_k(nk)
        nk += 1
    e("s_lshl_b32 s%d, s%d, 15" % (sT0, sGRP))
    e("s_add_u32 s%d, s%d, 0x%x" % (sT0, sT0, WS_O))
    e("s_lshl_b32 s%d, s%d, 7" % (sT1, sJ))
    e("s_add_u32 s%d, s%d, s%d" % (sT1, sT1, sT0))
    e("v_bfe_u32 v%d, v1, 3, 2" % vA_OG)
    e("v_lshl_add_u32 v%d, v2, 2, v%d" % (vA_OG, vA_OG))
    e("v_lshlrev_b32 v%d, 11, v%d" % (vA_OG, vA_OG))
    e("v_and_b32 v5, 7, v1")
    e("v_lshl_add_u32 v%d, v5, 4, v%d" % (vA_OG, vA_OG))
    e("v_add_u32 v%d, s%d, v%d" % (vA_OG, sT1, vA_OG))
    e("s_and_b32 s%d, s%d, 12" % (sT1, sJ))
    e("s_lshl_b32 s%d, s%d, 11" % (sT1, sT1))
    e("s_add_u32 s%d, s%d, s%d" % (sT1, sT1, sT0))
    e("v_add_u32 v%d, s%d, v%d" % (vA_OP, sT1, vA_OW))
    e("v_lshrrev_b32 v%d, 3, v1" % vA_W)
    e("v_lshlrev_b32 v%d, 2, v%d" % (vA_W, vA_W))

    while nk < 16:
        m.window(W)
        ld_k(nk)
        nk += 1
    rest = [("wo", i) for i in range(P["wo_early"])] + [("v", i) for i in range(16)] + [("wo", i) for i in range(P["wo_early"], 8)]

    def ld_next():
        kind, i = rest.pop(0)
        (ld_wo if kind == "wo" else ld_v)(i)

    for _ in range(P["nv_before"]):
        if "k15" in m.q:
            m.window(W)
        ld_next()
    stamp(3)
    e("s_barrier")
    e("v_lshlrev_b32 v5, 4, v1")
    e("ds_read_b128 %s, v5 offset:%d" % (vr(vQ, 4), L_Q))
    e("ds_read_b32 v%d, v%d offset:%d" % (vT, vZERO, L_LOC))
    stamp(4)
    e("s_waitcnt lgkmcnt(0)")
    e("v_readfirstlane_b32 s%d, v%d" % (sLOC, vT))

    m.c("scores")

    def more(n=1):
        for _ in range(n):
            if rest:
                ld_next()

    qp = ["[0,0,0,0]", "[1,1,1,1]", "[2,2,2,2]", "[3,3,3,3]"]
    for b in range(4):
        for t in range(4):
            i = 4 * b + t
            m.wait("k%d" % i)
            e("v_mfma_f32_16x16x32_bf16 %s, %s, %s, 0" % (vr(vD[t], 4), vr(vK + 4 * i, 4), vr(vQ, 4)))
        more(1)
        e("s_nop 4")
        for u in range(4):
            for t in range(4):
                i = 4 * b + t
                if u == 0:
                    e("v_mov_b32_dpp v%d, v%d quad_perm:%s %s" % (vS + i, vD[t], qp[0], DPPALL))
                else:
                    e("v_add_f32_dpp v%d, v%d, v%d quad_perm:%s %s" % (vS + i, vD[t] + u, vS + i, qp[u], DPPALL))
    m.c("round to bf16, scale, round to bf16")

    def round16():
        for i in range(0, 16, 2):
            e("v_cvt_pk_bf16_f32 v%d, v%d, v%d" % (vT + i // 2, vS + i, vS + i + 1))
        for i in range(0, 16, 2):
            e("v_lshlrev_b32 v%d, 16, v%d" % (vS + i, vT + i // 2))
            e("v_and_b32 v%d, s%d, v%d" % (vS + i + 1, sMASK, vT + i // 2))

    round16()
    for i in range(0, 16, 2):
        e("v_pk_mul_f32 %s, %s, %s" % (vr(vS + i, 2), vr(vS + i, 2), sp(sSC)))
    round16()
    m.c("max")
    vM, vM2, vA1, vA2 = vT + 8, vT + 10, vT + 12, vT + 13
    e("v_max3_f32 v%d, v%d, v%d, v%d" % (vM, vS, vS + 1, vS + 2))
    e("v_max3_f32 v%d, v%d, v%d, v%d" % (vM2, vS + 3, vS + 4, vS + 5))
    for i in range(6, 14, 4):
        e("v_max3_f32 v%d, v%d, v%d, v%d" % (vM, vM, vS + i, vS + i + 1))
        e("v_max3_f32 v%d, v%d, v%d, v%d" % (vM2, vM2, vS + i + 2, vS + i + 3))
    e("v_max3_f32 v%d, v%d, v%d, v%d" % (vM, vM, vS + 14, vS + 15))
    e("v_max_f32 v%d, v%d, v%d" % (vM, vM, vM2))
    allreduce_groups(vM, vM2, "v_max_f32")
    e("v_lshrrev_b32 v%d, 2, v4" % vA2)
    e("v_lshlrev_b32 v%d, 4, v%d" % (vA2, vA2))
    e("v_lshl_add_u32 v%d, v2, 2, v%d" % (vA1, vA2))
    e("ds_write_b32 v%d, v%d offset:%d" % (vA1, vM, L_MX))
    e("s_waitcnt lgkmcnt(0)")
    e("s_barrier")
    e("ds_read_b128 %s, v%d offset:%d" % (vr(vT, 4), vA2, L_MX))
    more(P["n_b3"])
    e("s_waitcnt lgkmcnt(0)")
    e("v_max3_f32 v%d, v%d, v%d, v%d" % (vM, vT, vT + 1, vT + 2))
    e("v_max_f32 v%d, v%d, v%d" % (vM, vM, vT + 3))
    e("v_mul_f32 v%d, s%d, v%d" % (vM2, sL2E, vM))
    e("v_mov_b32 v%d, v%d" % (vM2 + 1, vM2))
    m.c("exp")
    for i in range(0, 16, 2):
        e("v_pk_fma_f32 %s, %s, %s, %s neg_lo:[0,0,1] neg_hi:[0,0,1]" % (vr(vS + i, 2), vr(vS + i, 2), sp(sL2E), vr(vM2, 2)))
    for i in range(16):
        e("v_exp_f32 v%d, v%d" % (vS + i, vS + i))
    vPA = vK
    for i in range(16):
        e("v_cvt_pk_bf16_f32 v%d, v%d, v%d" % (vPA + 2 * i, vS + i, vS + i))
    for i in range(16):
        e("v_and_b32 v%d, v%d, v%d" % (vPA + 2 * i + 1, vPA + 2 * i, vMP + 1))
        e("v_and_b32 v%d, v%d, v%d" % (vPA + 2 * i, vPA + 2 * i, vMP + 0))
    for st in (8, 4, 2):
        for i in range(0, st, 2):
            e("v_pk_add_f32 %s, %s, %s" % (vr(vS + i, 2), vr(vS + i, 2), vr(vS + st + i, 2)))
    vU = vS + 8
    e("v_add_f32 v%d, v%d, v%d" % (vU + 2, vS, vS + 1))
    allreduce_groups(vU + 2, vS + 4, "v_add_f32")
    e("v_mov_b32 v%d, v%d" % (vU + 0, vM))
    e("v_mov_b32 v%d, s%d" % (vU + 1, sTAG))
    e("v_mov_b32 v%d, s%d" % (vU + 3, sTAG))
    e("s_lshl_b32 s%d, s%d, 12" % (sT0, sGRP))
    e("s_lshl_b32 s%d, s%d, 6" % (sT1, sJ))
    e("s_add_u32 s%d, s%d, s%d" % (sT0, sT0, sT1))
    e("s_add_u32 s%d, s%d, 0x%x" % (sT0, sT0, WS_ML))
    e("v_lshlrev_b32 v5, 8, v4")
    e("v_lshl_add_u32 v5, v2, 4, v5")
    e("v_add_u32 v5, s%d, v5" % sT0)
    e("s_mov_b64 exec, 0x1111")
    store_loc("ml", "global_store_dwordx4 v5, %s, %s" % (vr(vU, 4), sp(sWS)))
    e("s_mov_b64 exec, -1")
    stamp(5)

    m.c("PV")
    for i in range(16):
        while ("v", i) in rest:
            m.window(P["wo_win"])
            ld_next()
        while rest and "v%d" % i in m.q and m.q.index("v%d" % i) > 0:
            m.window(P["wo_win"])
            if len(m.q) < P["wo_win"]:
                ld_next()
        m.wait("v%d" % i)
        for w in range(2):
            e("v_mfma_f32_16x16x16_bf16 %s, %s, %s, %s" % (vr(vACC + 4 * w, 4), vr(vPA + 2 * i, 2), vr(vVregs[i] + 2 * w, 2), "0" if i == 0 else vr(vACC + 4 * w, 4)))
        while rest and len(m.q) < P["wo_win"]:
            ld_next()
    while rest:
        ld_next()
    stamp(6)
    e("s_nop 6")
    e("ds_write_b128 v%d, %s offset:%d" % (vA_OW, vr(vACC, 4), L_OP))
    e("ds_write_b128 v%d, %s offset:%d" % (vA_OW, vr(vACC + 4, 4), L_OP + 1024))
    e("s_mov_b64 exec, 1")
    e("ds_add_u32 v%d, v%d offset:%d" % (vZERO, vONE, L_CNT))
    e("s_mov_b64 exec, -1")
    m.lab("L_cnt")
    e("ds_read_b32 v%d, v%d offset:%d" % (vT + 8, vZERO, L_CNT))
    e("ds_read_b128 %s, v%d offset:%d" % (vr(vT, 4), vA_OR, L_OP))
    e("ds_read_b128 %s, v%d offset:%d" % (vr(vT + 4, 4), vA_OR, L_OP + 2048))
    e("s_waitcnt lgkmcnt(0)")
    e("v_cmp_ne_u32 vcc, 4, v%d" % (vT + 8))
    e("s_cbranch_vccnz L_cnt")
    sum_halves_and_tag(vT, [vTG + k for k in range(4)], vT)
    e("s_mov_b32 exec_hi, 0")
    store_loc("o", "global_store_dwordx4 v%d, %s, %s" % (vA_OG, vr(vT, 4), sp(sWS)))
    e("s_mov_b64 exec, -1")
    stamp(7)
    if ST and P.get("wostamp"):
        m.wait("wo7")
        stamp(10)
    vO = vS
    vR = vK + 0
    vW0 = vT + 12
    sM0, sM1 = 44, 46
    e("s_mov_b32 s%d, 0" % sSPIN)
    e("global_load_dwordx4 %s, v%d, %s sc1" % (vr(vR, 4), vA_OP, sp(sWS)))
    e("global_load_dwordx4 %s, v%d, %s offset:1024 sc1" % (vr(vR + 4, 4), vA_OP, sp(sWS)))
    e("s_barrier")
    e("ds_read_b32 v%d, v%d offset:%d" % (vW0, vA_W, L_W))
    e("ds_read_b32 v%d, v%d offset:%d" % (vW0 + 1, vA_W, L_W + 32))
    e("s_branch L_ochk")
    m.lab("L_opoll")
    if P["osleep"]:
        e("s_sleep %d" % P["osleep"])
    if P["omask"]:
        e("s_mov_b64 exec, %s" % sp(sM0))
    e("global_load_dwordx4 %s, v%d, %s sc1" % (vr(vR, 4), vA_OP, sp(sWS)))
    if P["omask"]:
        e("s_mov_b64 exec, %s" % sp(sM1))
    e("global_load_dwordx4 %s, v%d, %s offset:1024 sc1" % (vr(vR + 4, 4), vA_OP, sp(sWS)))
    if P["omask"]:
        e("s_mov_b64 exec, -1")
    m.lab("L_ochk")
    e("s_add_u32 s%d, s%d, 1" % (sSPIN, sSPIN))
    e("s_waitcnt vmcnt(0)")
    m.q = []
    for k in range(8):
        e("v_xor_b32 v%d, v%d, v%d" % (vO + k, vR + k, vTG + (k & 3)))
    for h in range(2):
        e("v_or3_b32 v%d, v%d, v%d, v%d" % (vT + 8 + h, vO + 4 * h, vO + 4 * h + 1, vO + 4 * h + 2))
    for h in range(2):
        e("v_bitop3_b32 v%d, v%d, v%d, s%d bitop3:0x54" % (vT + 8 + h, vT + 8 + h, vO + 4 * h + 3, sTM))
    e("v_cmp_ne_u32 %s, 0, v%d" % (sp(sM0), vT + 8))
    e("v_cmp_ne_u32 %s, 0, v%d" % (sp(sM1), vT + 9))
    e("s_or_b64 %s, %s, %s" % (sp(sSAVE), sp(sM0), sp(sM1)))
    e("s_cbranch_scc0 L_ogot")
    e("s_cmp_lt_u32 s%d, %d" % (sSPIN, P["spin"]))
    e("s_cbranch_scc1 L_opoll")
    m.lab("L_ogot")
    stamp(8)
    e("s_waitcnt lgkmcnt(0)")
    for k in range(4):
        e("v_mul_f32 v%d, v%d, v%d" % (vO + k, vW0, vO + k))
    for k in range(4):
        e("v_fmac_f32 v%d, v%d, v%d" % (vO + k, vW0 + 1, vO + 4 + k))
    e("s_nop 0")
    e("v_permlane32_swap_b32 v%d, v%d" % (vO + 0, vO + 1))
    e("v_permlane32_swap_b32 v%d, v%d" % (vO + 2, vO + 3))
    e("v_add_f32 v%d, v%d, v%d" % (vO + 0, vO + 0, vO + 1))
    e("v_add_f32 v%d, v%d, v%d" % (vO + 2, vO + 2, vO + 3))
    e("s_nop 1")
    e("v_permlane16_swap_b32 v%d, v%d" % (vO + 0, vO + 2))
    e("v_add_f32 v%d, v%d, v%d" % (vO + 0, vO + 0, vO + 2))
    e("s_nop 1")
    e("v_add_f32_dpp v%d, v%d, v%d row_ror:8 %s" % (vO + 0, vO + 0, vO + 0, DPPALL))
    e("v_cvt_pk_bf16_f32 v%d, v%d, v%d" % (vO + 0, vO + 0, vO + 0))
    e("s_nop 1")
    vAI = vK + 32

    def build_ai(i):
        for d in range(4):
            e("v_and_b32_dpp v%d, v%d, v%d row_newbcast:%d %s" % (vAI + 4 * i + d, vO, vMK + d, i, DPPALL))

    build_ai(0)
    for i in range(8):
        if i < 7:
            build_ai(i + 1)
        else:
            e("s_nop 0")
        e("v_mfma_f32_16x16x32_bf16 %s, %s, %s, %s" % (vr(vACC, 4), vr(vAI + 4 * i, 4), vr(vWO + 4 * i, 4), "0" if i == 0 else vr(vACC, 4)))
    e("s_mov_b32 exec_hi, 0")
    e("s_nop 6")
    e("ds_write_b128 v%d, %s offset:%d" % (vA_QP, vr(vACC, 4), L_QP))
    e("s_waitcnt lgkmcnt(0)")
    e("s_barrier")
    stamp(9)
    dump_stamps(11)
    e("s_endpgm")

    m.q = []
    m.lab("L_comm")
    cA, cB, cC, cD = 7, 8, 9, 10
    cGS = 11
    cT = 12
    cQA, cQG, cML, cFP = 28, 29, 30, 31
    cU = 32
    cTG = 64
    cTQ = 68
    cOA, cFG = 69, 70
    cPT = 72
    cFU = 84

    decode()
    e("v_mov_b32 v%d, 0" % cT)
    e("ds_write_b32 v%d, v%d offset:%d" % (cT, cT, L_CNT))
    e("v_lshlrev_b32 v%d, 4, v1" % cA)
    e("v_lshrrev_b32 v%d, 5, v1" % cB)
    e("v_lshlrev_b32 v%d, 10, v%d" % (cB, cB))
    e("v_and_b32 v%d, 31, v1" % cC)
    e("v_lshlrev_b32 v%d, 4, v%d" % (cC, cC))
    e("v_add_u32 v%d, v%d, v%d" % (cB, cB, cC))
    e("s_lshl_b32 s%d, s%d, 13" % (sT0, sGRP))
    e("s_add_u32 s%d, s%d, 0x%x" % (sT0, sT0, WS_Q))
    e("s_lshl_b32 s%d, s%d, 9" % (sT1, sJ))
    e("s_add_u32 s%d, s%d, s%d" % (sT1, sT1, sT0))
    e("v_add_u32 v%d, s%d, v%d" % (cQA, sT1, cC))
    e("s_waitcnt lgkmcnt(0)")
    e("s_load_dword s%d, %s, 0x%x" % (sTAG, sp(sWS), WS_EPOCH))
    e("s_mov_b32 exec_hi, 0")
    e("global_load_dwordx4 %s, v%d, %s sc1" % (vr(cPT, 4), cQA, sp(sWS)))
    if P["tlbwarm"]:
        e("s_lshl_b32 s%d, s%d, 24" % (sT1, sKVH))
        e("s_add_u32 s%d, s%d, 0xF00000" % (sT1, sT1))
        e("v_lshlrev_b32 v%d, 16, v1" % (cPT + 4))
        e("v_add_u32 v%d, s%d, v%d" % (cPT + 4, sT1, cPT + 4))
        e("s_lshl_b32 s%d, s%d, 2" % (sT1, sKVH))
        e("s_lshr_b32 s%d, s%d, 2" % (sT2, sJ))
        e("s_add_u32 s%d, s%d, s%d" % (sT1, sT1, sT2))
        e("s_lshl_b32 s%d, s%d, 17" % (sT1, sT1))
        e("v_lshlrev_b32 v%d, 16, v1" % (cPT + 5))
        e("v_add_u32 v%d, s%d, v%d" % (cPT + 5, sT1, cPT + 5))
        e("v_mov_b32 v%d, 0" % (cPT + 6))
        e("s_mov_b64 exec, 0x%x" % (0xffff if P["tlbwarm"] == 2 else 1))
        e("global_load_dword v%d, v%d, %s" % (cPT + 7, cPT + 4, sp(sK)))
        e("global_load_dword v%d, v%d, %s" % (cPT + 8, cPT + 4, sp(sV)))
        e("s_mov_b64 exec, 0x%x" % (3 if P["tlbwarm"] == 2 else 1))
        e("global_load_dword v%d, v%d, %s" % (cPT + 9, cPT + 5, sp(sWO)))
        e("s_mov_b64 exec, 1")
        e("global_load_dword v%d, v%d, %s" % (cPT + 10, cPT + 6, sp(sOUT)))
        e("global_load_dword v%d, v%d, %s" % (cPT + 11, cPT + 6, sp(sGATE)))
    e("s_mov_b64 exec, -1")
    e("v_lshrrev_b32 v%d, 2, v4" % cQG)
    e("v_lshlrev_b32 v%d, 11, v%d" % (cQG, cQG))
    e("v_lshl_add_u32 v%d, v3, 7, v%d" % (cQG, cQG))
    e("v_and_b32 v%d, 3, v1" % cT)
    e("v_lshl_add_u32 v%d, v%d, 5, v%d" % (cQG, cT, cQG))
    e("v_add_u32 v%d, s%d, v%d" % (cQG, sT0, cQG))
    e("v_add_u32 v%d, 0x%x, v%d" % (cD, WS_QB - WS_Q, cQA))
    e("s_mov_b32 s%d, 0x3fb8aa3b" % sL2E)
    e("s_mov_b32 s%d, 0xffff0000" % sMASK)
    e("s_getreg_b32 s%d, hwreg(HW_REG_XCC_ID, 0, 4)" % sT2)
    stamp(1)
    e("s_waitcnt lgkmcnt(0)")
    make_tags(cTG)
    e("v_and_b32 v%d, 0x%x, v%d" % (cTQ, TM & ~15, cTG + 3))
    e("v_or_b32 v%d, s%d, v%d" % (cTQ, sT2, cTQ))
    stamp(2)
    e("s_barrier")
    e("ds_read_b128 %s, v%d offset:%d" % (vr(cT, 4), cB, L_QP))
    e("ds_read_b128 %s, v%d offset:%d" % (vr(cT + 4, 4), cB, L_QP + 512))
    e("s_waitcnt lgkmcnt(0)")
    sum_halves_and_tag(cT, [cTG, cTG + 1, cTG + 2, cTQ], cT + 8)
    e("s_mov_b32 exec_hi, 0")
    e("global_store_dwordx4 v%d, %s, %s" % (cQA, vr(cT + 8, 4), sp(sWS)))
    if P.get("eagerb"):
        e("global_store_dwordx4 v%d, %s, %s sc1" % (cD, vr(cT + 8, 4), sp(sWS)))
    e("s_mov_b64 exec, -1")
    stamp(3)
    e("s_mov_b32 s%d, 0" % sSPIN)
    m.lab("L_pollq")
    for rq in range(4):
        for hf in range(2):
            e("global_load_dwordx4 %s, v%d, %s offset:%d sc1" % (vr(cU + 8 * rq + 4 * hf, 4), cQG, sp(sWS), rq * 512 + hf * 16))
    e("s_add_u32 s%d, s%d, 1" % (sSPIN, sSPIN))
    e("s_waitcnt vmcnt(0)")
    for k in range(32):
        e("v_xor_b32 v%d, v%d, v%d" % (cU + k, cU + k, cTQ if (k & 3) == 3 else cTG + (k & 3)))
    e("v_or3_b32 v%d, v%d, v%d, v%d" % (cT + 1, cU + 3, cU + 7, cU + 11))
    e("v_or3_b32 v%d, v%d, v%d, v%d" % (cT + 1, cT + 1, cU + 15, cU + 19))
    e("v_or3_b32 v%d, v%d, v%d, v%d" % (cT + 1, cT + 1, cU + 23, cU + 27))
    e("v_or_b32 v%d, v%d, v%d" % (cT + 1, cT + 1, cU + 31))
    e("v_and_b32 v%d, -16, v%d" % (cT, cT + 1))
    rest3 = [cU + k for k in range(32) if (k & 3) != 3]
    for k in range(0, 24, 2):
        e("v_or3_b32 v%d, v%d, v%d, v%d" % (cT, cT, rest3[k], rest3[k + 1]))
    e("v_and_b32 v%d, 0x%x, v%d" % (cT, TM, cT))
    e("v_cmp_ne_u32 vcc, 0, v%d" % cT)
    e("s_cbranch_vccz L_gotq")
    e("s_cmp_lt_u32 s%d, %d" % (sSPIN, P["nfast"]))
    e("s_cbranch_scc1 L_pollq")
    e("v_xor_b32 v%d, 0x%x, v%d" % (cQG, WS_QB ^ WS_Q, cQG))
    e("s_cmp_lg_u32 s%d, %d" % (sSPIN, P["nfast"]))
    e("s_cbranch_scc1 L_nswq")
    e("s_mov_b32 exec_hi, 0")
    e("global_store_dwordx4 v%d, %s, %s sc1" % (cD, vr(cT + 8, 4), sp(sWS)))
    e("s_mov_b64 exec, -1")
    m.lab("L_nswq")
    e("s_cmp_lt_u32 s%d, %d" % (sSPIN, P["spin"]))
    e("s_cbranch_scc1 L_pollq")
    m.lab("L_gotq")
    e("v_and_b32 v%d, 15, v%d" % (cT + 1, cT + 1))
    e("v_cmp_ne_u32 vcc, 0, v%d" % (cT + 1))
    for k in range(3, 32, 4):
        e("v_and_b32 v%d, -16, v%d" % (cU + k, cU + k))
    e("s_or_b32 s%d, vcc_lo, vcc_hi" % sLOC)
    if P.get("force_wt"):
        e("s_mov_b32 s%d, 1" % sLOC)
    e("s_cmp_eq_u32 s%d, 0" % sLOC)
    e("s_cbranch_scc1 L_qloc")
    e("s_mov_b32 exec_hi, 0")
    e("global_store_dwordx4 v%d, %s, %s sc1" % (cD, vr(cT + 8, 4), sp(sWS)))
    e("s_mov_b64 exec, -1")
    m.lab("L_qloc")
    for k in range(0, 8, 2):
        e("v_pk_add_f32 %s, %s, %s" % (vr(cU + k, 2), vr(cU + k, 2), vr(cU + 8 + k, 2)))
        e("v_pk_add_f32 %s, %s, %s" % (vr(cU + 16 + k, 2), vr(cU + 16 + k, 2), vr(cU + 24 + k, 2)))
    for k in range(0, 8, 2):
        e("v_pk_add_f32 %s, %s, %s" % (vr(cU + k, 2), vr(cU + k, 2), vr(cU + 16 + k, 2)))
    for k in range(4):
        e("v_cvt_pk_bf16_f32 v%d, v%d, v%d" % (cT + k, cU + 2 * k, cU + 2 * k + 1))
    e("v_mov_b32 v%d, s%d" % (cT + 4, sLOC))
    e("v_mov_b32 v%d, 0" % (cT + 5))
    e("ds_write_b128 v%d, %s offset:%d" % (cA, vr(cT, 4), L_Q))
    e("ds_write_b32 v%d, v%d offset:%d" % (cT + 5, cT + 4, L_LOC))
    e("s_waitcnt lgkmcnt(0)")
    stamp(4)
    e("s_barrier")
    e("s_lshl_b32 s%d, s%d, 4" % (sT0, sGRP))
    e("s_add_u32 s%d, s%d, s%d" % (sT0, sT0, sJ))
    e("s_lshl_b32 s%d, s%d, 11" % (sT1, sT0))
    e("s_add_u32 s%d, s%d, 0x%x" % (sT1, sT1, WS_O))
    e("v_add_u32 v%d, s%d, v%d" % (cD, sT1, cA))
    e("s_lshr_b32 s%d, s%d, 2" % (sT1, sT0))
    e("s_lshl_b32 s%d, s%d, 10" % (sT1, sT1))
    e("s_add_u32 s%d, s%d, 0x%x" % (sT1, sT1, WS_ML))
    e("v_add_u32 v%d, s%d, v%d" % (cML, sT1, cA))
    e("global_load_dwordx4 %s, v%d, %s" % (vr(cU, 4), cA, sp(sX)))
    e("global_load_dwordx4 %s, v%d, %s" % (vr(cU + 4, 4), cA, sp(sGATE)))
    e("global_load_dwordx4 %s, v%d, %s sc1" % (vr(cPT, 4), cD, sp(sWS)))
    e("global_load_dwordx4 %s, v%d, %s offset:1024 sc1" % (vr(cPT + 4, 4), cD, sp(sWS)))
    e("global_load_dwordx4 %s, v%d, %s sc1" % (vr(cPT + 8, 4), cML, sp(sWS)))
    e("s_barrier")
    e("s_and_b32 s%d, s%d, 3" % (sT0, sJ))
    e("s_lshl_b32 s%d, s%d, 6" % (sT0, sT0))
    e("s_lshl_b32 s%d, s%d, 5" % (sT1, sBR))
    e("s_add_u32 s%d, s%d, s%d" % (sT0, sT0, sT1))
    e("s_lshl_b32 s%d, s%d, 2" % (sT1, sKVH))
    e("s_add_u32 s%d, s%d, s%d" % (sT0, sT0, sT1))
    e("s_lshr_b32 s%d, s%d, 2" % (sT1, sJ))
    e("s_add_u32 s%d, s%d, s%d" % (sT0, sT0, sT1))
    e("s_lshl_b32 s%d, s%d, 9" % (sT0, sT0))
    e("s_add_u32 s%d, s%d, 0x%x" % (sT0, sT0, WS_F))
    e("v_add_u32 v%d, s%d, v%d" % (cFP, sT0, cC))
    e("s_lshl_b32 s%d, s%d, 4" % (sT0, sKVH))
    e("s_bfe_u32 s%d, s2, 0x40003" % sT1)
    e("s_add_u32 s%d, s%d, s%d" % (sT0, sT0, sT1))
    e("s_lshr_b32 s%d, s%d, 5" % (sT1, sT0))
    e("s_lshl_b32 s%d, s%d, 15" % (sT1, sT1))
    e("s_and_b32 s%d, s%d, 31" % (sT2, sT0))
    e("s_lshl_b32 s%d, s%d, 4" % (sT2, sT2))
    e("s_add_u32 s%d, s%d, s%d" % (sT1, sT1, sT2))
    e("s_add_u32 s%d, s%d, 0x%x" % (sT1, sT1, WS_F))
    e("v_lshlrev_b32 v%d, 9, v1" % cFG)
    e("v_add_u32 v%d, s%d, v%d" % (cFG, sT1, cFG))
    e("v_and_b32 v%d, 1, v3" % cOA)
    e("v_bfe_u32 v%d, v1, 3, 1" % cD)
    e("v_lshl_add_u32 v%d, v%d, 1, v%d" % (cOA, cD, cOA))
    e("v_lshlrev_b32 v%d, 1, v%d" % (cOA, cOA))
    e("s_lshl_b32 s%d, s%d, 3" % (sT0, sT0))
    e("v_add_u32 v%d, s%d, v%d" % (cOA, sT0, cOA))
    e("s_waitcnt vmcnt(3)")
    m.c("gate")
    for i in range(4):
        e("v_lshlrev_b32 v%d, 16, v%d" % (cT + 2 * i, cU + i))
        e("v_and_b32 v%d, s%d, v%d" % (cT + 2 * i + 1, sMASK, cU + i))
        e("v_lshlrev_b32 v%d, 16, v%d" % (cT + 8 + 2 * i, cU + 4 + i))
        e("v_and_b32 v%d, s%d, v%d" % (cT + 8 + 2 * i + 1, sMASK, cU + 4 + i))
    for i in range(8):
        e("v_mul_f32 v%d, v%d, v%d" % (cT + i, cT + i, cT + 8 + i))
    for i in range(4):
        e("v_cvt_pk_bf16_f32 v%d, v%d, v%d" % (cT + 8 + i, cT + 2 * i, cT + 2 * i + 1))
    for i in range(4):
        e("v_lshlrev_b32 v%d, 16, v%d" % (cT + 2 * i, cT + 8 + i))
        e("v_and_b32 v%d, s%d, v%d" % (cT + 2 * i + 1, sMASK, cT + 8 + i))
    for i in range(4):
        e("v_add_f32 v%d, v%d, v%d" % (cT + i, cT + i, cT + 4 + i))
    e("v_add_f32 v%d, v%d, v%d" % (cT + 0, cT + 0, cT + 2))
    e("v_add_f32 v%d, v%d, v%d" % (cT + 1, cT + 1, cT + 3))
    e("v_add_f32 v%d, v%d, v%d" % (cT + 0, cT + 0, cT + 1))
    row_allreduce(cT, "v_add_f32")
    allreduce_groups(cT, cT + 1, "v_add_f32")
    e("v_cvt_pk_bf16_f32 v%d, v%d, v%d" % (cT, cT, cT))
    e("v_and_b32 v%d, s%d, v%d" % (cT, sMASK, cT))
    e("v_mul_f32 v%d, s%d, v%d" % (cT, sL2E, cT))
    e("v_exp_f32 v%d, -v%d" % (cT, cT))
    e("s_nop 0")
    e("v_add_f32 v%d, 1.0, v%d" % (cT, cT))
    e("v_rcp_f32 v%d, v%d" % (cT, cT))
    e("s_nop 0")
    e("v_cvt_pk_bf16_f32 v%d, v%d, v%d" % (cT, cT, cT))
    e("v_and_b32 v%d, s%d, v%d" % (cT + 1, sMASK, cT))
    e("v_sub_f32 v%d, 1.0, v%d" % (cT, cT + 1))
    e("v_cmp_gt_u32 vcc, 32, v1")
    e("v_cvt_pk_bf16_f32 v%d, v%d, v%d" % (cT, cT, cT))
    e("v_and_b32 v%d, s%d, v%d" % (cT, sMASK, cT))
    e("v_cndmask_b32 v%d, v%d, v%d, vcc" % (cGS, cT, cT + 1))
    m.c("softmax weights of the 16 producers")
    e("s_mov_b32 s%d, 0" % sSPIN)
    e("s_mov_b64 vcc, -1")
    m.lab("L_pollm")
    if P["msleep"]:
        e("s_sleep %d" % P["msleep"])
    e("s_mov_b64 exec, vcc")
    e("global_load_dwordx4 %s, v%d, %s sc1" % (vr(cU, 4), cML, sp(sWS)))
    e("s_mov_b64 exec, -1")
    e("s_add_u32 s%d, s%d, 1" % (sSPIN, sSPIN))
    e("s_waitcnt vmcnt(0)")
    e("v_xor_b32 v%d, s%d, v%d" % (cT, sTAG, cU + 1))
    e("v_bitop3_b32 v%d, v%d, v%d, s%d bitop3:0xf6" % (cT, cT, cU + 3, sTAG))
    e("v_cmp_ne_u32 vcc, 0, v%d" % cT)
    e("s_cbranch_vccz L_gotm")
    e("s_cmp_lt_u32 s%d, %d" % (sSPIN, P["spin"]))
    e("s_cbranch_scc1 L_pollm")
    m.lab("L_gotm")
    e("v_mov_b32 v%d, v%d" % (cT, cU))
    for r in (8, 4):
        e("s_nop 1")
        e("v_max_f32_dpp v%d, v%d, v%d row_ror:%d %s" % (cT, cT, cT, r, DPPALL))
    allreduce_groups(cT, cT + 1, "v_max_f32")
    e("v_mul_f32 v%d, s%d, v%d" % (cT, sL2E, cT))
    e("v_fma_f32 v%d, v%d, s%d, -v%d" % (cT + 2, cU, sL2E, cT))
    e("v_exp_f32 v%d, v%d" % (cT + 2, cT + 2))
    e("s_nop 0")
    e("v_mul_f32 v%d, v%d, v%d" % (cT, cT + 2, cU + 2))
    row_allreduce(cT, "v_add_f32")
    allreduce_groups(cT, cT + 1, "v_add_f32")
    e("v_rcp_f32 v%d, v%d" % (cT, cT))
    e("v_and_b32 v%d, 0x3c, v1" % (cT + 1))
    e("v_mul_f32 v%d, v%d, v%d" % (cT + 2, cT + 2, cT))
    e("ds_write_b32 v%d, v%d offset:%d" % (cT + 1, cT + 2, L_W))
    e("s_waitcnt lgkmcnt(0)")
    stamp(5)
    e("s_barrier")
    e("s_barrier")
    e("ds_read_b128 %s, v%d offset:%d" % (vr(cT, 4), cB, L_QP))
    e("ds_read_b128 %s, v%d offset:%d" % (vr(cT + 4, 4), cB, L_QP + 512))
    stamp(6)
    e("s_waitcnt lgkmcnt(0)")
    sum_halves_and_tag(cT, [cTG + k for k in range(4)], cT + 8)
    e("s_mov_b32 exec_hi, 0")
    e("global_store_dwordx4 v%d, %s, %s sc1" % (cFP, vr(cT + 8, 4), sp(sWS)))
    e("s_mov_b64 exec, -1")
    stamp(7)
    e("s_cmp_ge_u32 s2, 128")
    e("s_cbranch_scc1 L_fin")
    e("s_mov_b32 s%d, 0" % sSPIN)
    e("s_mov_b64 vcc, -1")
    m.lab("L_pollf")
    if P["fsleep"]:
        e("s_sleep %d" % P["fsleep"])
    e("s_mov_b64 exec, vcc")
    e("global_load_dwordx4 %s, v%d, %s sc1" % (vr(cFU, 4), cFG, sp(sWS)))
    e("s_mov_b64 exec, -1")
    e("s_add_u32 s%d, s%d, 1" % (sSPIN, sSPIN))
    e("s_waitcnt vmcnt(0)")
    for d in range(4):
        e("v_xor_b32 v%d, v%d, v%d" % (cU + d, cFU + d, cTG + d))
    e("v_or3_b32 v%d, v%d, v%d, v%d" % (cT, cU, cU + 1, cU + 2))
    e("v_bitop3_b32 v%d, v%d, v%d, s%d bitop3:0x54" % (cT, cT, cU + 3, sTM))
    e("v_cmp_ne_u32 vcc, 0, v%d" % cT)
    e("s_cbranch_vccz L_gotf")
    e("s_cmp_lt_u32 s%d, %d" % (sSPIN, P["spin"]))
    e("s_cbranch_scc1 L_pollf")
    m.lab("L_gotf")
    stamp(8)
    e("v_permlane16_swap_b32 v%d, v%d" % (cU + 0, cU + 1))
    e("v_permlane16_swap_b32 v%d, v%d" % (cU + 2, cU + 3))
    e("v_add_f32 v%d, v%d, v%d" % (cU + 0, cU + 0, cU + 1))
    e("v_add_f32 v%d, v%d, v%d" % (cU + 2, cU + 2, cU + 3))
    e("s_nop 0")
    e("v_add_f32_dpp v%d, v%d, v%d row_ror:8 row_mask:0xf bank_mask:0x3" % (cT, cU + 0, cU + 0))
    e("v_add_f32_dpp v%d, v%d, v%d row_ror:8 row_mask:0xf bank_mask:0xc" % (cT, cU + 2, cU + 2))
    for md in ("quad_perm:[1,0,3,2]", "quad_perm:[2,3,0,1]", "row_half_mirror"):
        e("s_nop 1")
        e("v_add_f32_dpp v%d, v%d, v%d %s %s" % (cT, cT, cT, md, DPPALL))
    e("v_cvt_pk_bf16_f32 v%d, v%d, v%d" % (cT, cT, cT))
    e("v_and_b32 v%d, s%d, v%d" % (cT, sMASK, cT))
    e("v_mul_f32 v%d, v%d, v%d" % (cT, cT, cGS))
    e("v_cvt_pk_bf16_f32 v%d, v%d, v%d" % (cT, cT, cT))
    e("v_and_b32 v%d, s%d, v%d" % (cT, sMASK, cT))
    e("v_mov_b32 v%d, v%d" % (cT + 1, cT))
    e("s_nop 1")
    e("v_permlane32_swap_b32 v%d, v%d" % (cT, cT + 1))
    e("v_add_f32 v%d, v%d, v%d" % (cT, cT, cT + 1))
    e("v_cvt_pk_bf16_f32 v%d, v%d, v%d" % (cT, cT, cT))
    e("s_mov_b64 exec, 0x01010101")
    e("global_store_short v%d, v%d, %s" % (cOA, cT, sp(sOUT)))
    e("s_cmp_lg_u32 s2, 0")
    e("s_cbranch_scc1 L_fin")
    e("s_mov_b64 exec, 1")
    e("v_mov_b32 v%d, s%d" % (cT + 2, sTAG))
    e("v_mov_b32 v%d, 0" % (cT + 3))
    e("global_store_dword v%d, v%d, %s offset:%d" % (cT + 3, cT + 2, sp(sWS), WS_EPOCH))
    m.lab("L_fin")
    stamp(9)
    if P.get("padto"):
        m.lab("L_pad")
        e("s_memrealtime s[96:97]")
        e("s_waitcnt lgkmcnt(0)")
        e("s_sub_u32 s96, s96, s98")
        e("s_cmp_lt_u32 s96, %d" % P["padto"])
        e("s_cbranch_scc1 L_pad")
    dump_stamps(10)
    m.lab("L_end")
    e("s_endpgm")

    hdr = open("cdna_kernels/%s.s.ref" % NAME).read().split("; Override launch")[0]
    out = hdr
    out += "; @launch grid=(256,1,1) block=(320,1,1) lds=%d\n" % P["lds"]
    out += '.amdgcn_target "amdgcn-amd-amdhsa--gfx950"\n.text\n.globl %s_kernel\n.p2align 8\n.type %s_kernel,@function\n%s_kernel:\n' % (NAME, NAME, NAME)
    out += "\n".join(m.L) + "\n"
    out += """.section .rodata,"a"
.p2align 6
.amdhsa_kernel %s_kernel
  .amdhsa_next_free_vgpr 256
  .amdhsa_next_free_sgpr 102
  .amdhsa_accum_offset 256
  .amdhsa_group_segment_fixed_size 0
  .amdhsa_kernarg_size 112
  .amdhsa_user_sgpr_count 2
  .amdhsa_user_sgpr_kernarg_segment_ptr 1
  .amdhsa_system_sgpr_workgroup_id_x 1
.end_amdhsa_kernel
""" % NAME
    return out


if __name__ == "__main__":
    kw = {}
    outp = sys.argv[1]
    for a in sys.argv[2:]:
        k, v = a.split("=")
        kw[k] = int(v) if v.lstrip("-").isdigit() else v
    open(outp, "w").write(gen(**kw))
```

```python
import sys

NAME = "gated_mix__sliding_block_cached__sliding_block_cached__decode"

WS_EPOCH = 0x0
WS_ML = 0x10000
WS_Q = 0x20000
WS_F = 0x40000
WS_QB = 0x60000
WS_O = 0x80000
WS_STAMP = 0x300000
TB = 10
TM = (1 << TB) - 1

L_QP = 0x0
L_Q = 0x800
L_MX = 0xC00
L_CNT = 0xC40
L_LOC = 0xC44
L_LS = 0xC80
L_OP = 0x1000

DEF = dict(
    stamps=0, window=6, nv_before=11, ldflag="nt", lds=90112, spin=200000,
    nfast=32, wo_win=10, swz=1, wo_early=0, n_b3=2, tlbwarm=0, omask=1, osleep=0, fsleep=0, fwait=7, spt=2,
)


class Em:
    def __init__(self):
        self.L = []
        self.q = []

    def e(self, s):
        self.L.append("    " + s)

    def lab(self, s):
        self.L.append(s + ":")

    def c(self, s):
        self.L.append("    ; " + s)

    def vm(self, name, s):
        self.e(s)
        self.q.append(name)

    def wait(self, name):
        if name not in self.q:
            return
        i = self.q.index(name)
        n = len(self.q) - 1 - i
        self.e("s_waitcnt vmcnt(%d)" % n)
        self.q = self.q[i + 1:]

    def window(self, w):
        if w and len(self.q) >= w:
            self.wait(self.q[len(self.q) - w])


def vr(a, n=1):
    return "v%d" % a if n == 1 else "v[%d:%d]" % (a, a + n - 1)


def sp(a):
    return "s[%d:%d]" % (a, a + 1)


DPPALL = "row_mask:0xf bank_mask:0xf"


def gen(**kw):
    P = dict(DEF)
    P.update(kw)
    W = P["window"]
    FL = P["ldflag"]
    ST = P["stamps"]
    m = Em()
    e = m.e

    sX = 4
    sPC = 6
    sK, sV, sWQ, sWO = 8, 10, 12, 14
    sGATE, sOUT, sDBG, sWS = 16, 18, 20, 22
    sKVH, sBR, sJ, sWAVE, sGRP = 24, 25, 26, 27, 28
    sT0, sT1, sT2 = 29, 30, 31
    sTAG, sTM, sMASK, sSPIN = 32, 33, 34, 35
    sSC = 36
    sL2E = 38
    sLOC = 40
    sSAVE = 42
    sHI = 50
    sSTAMP = 70

    def stamp(idx):
        if ST:
            e("s_memrealtime s[%d:%d]" % (sSTAMP + 2 * idx, sSTAMP + 2 * idx + 1))

    def dump_stamps(n):
        if not ST:
            return
        e("s_waitcnt lgkmcnt(0)")
        if P.get("late_dump", 1):
            lab = "L_ld%d" % len(m.L)
            m.lab(lab)
            e("s_sleep 8")
            e("s_memrealtime s[44:45]")
            e("s_waitcnt lgkmcnt(0)")
            e("s_sub_u32 s44, s44, s%d" % sSTAMP)
            e("s_cmp_lt_u32 s44, 2000")
            e("s_cbranch_scc1 " + lab)
        e("s_mov_b64 exec, 1")
        for i in range(n):
            e("v_mov_b32 v%d, s%d" % (8 + i, sSTAMP + 2 * i))
        for i in range(n, 16):
            e("v_mov_b32 v%d, 0" % (8 + i))
        e("s_lshl_b32 s%d, s2, 3" % sT0)
        e("s_add_u32 s%d, s%d, s%d" % (sT0, sT0, sWAVE))
        e("s_lshl_b32 s%d, s%d, 6" % (sT0, sT0))
        e("s_add_u32 s%d, s%d, 0x%x" % (sT0, sT0, WS_STAMP))
        e("v_mov_b32 v1, s%d" % sT0)
        for i in range(4):
            e("global_store_dwordx4 v1, v[%d:%d], %s offset:%d" % (8 + 4 * i, 11 + 4 * i, sp(sWS), 16 * i))

    def make_tags(v):
        e("s_add_u32 s%d, s%d, 0x9E3779B9" % (sTAG, sTAG))
        for k, sh in enumerate((0, 10, 20, 22)):
            e("s_bfe_u32 s%d, s%d, 0x%x" % (sT0, sTAG, (TB << 16) | sh))
            e("v_mov_b32 v%d, s%d" % (v + k, sT0))
        e("s_mov_b32 s%d, 0x%x" % (sTM, 0xffffffff ^ TM))

    def allreduce_groups(v, tmp, op):
        e("v_mov_b32 v%d, v%d" % (tmp, v))
        e("s_nop 1")
        e("v_permlane32_swap_b32 v%d, v%d" % (v, tmp))
        e("%s v%d, v%d, v%d" % (op, v, v, tmp))
        e("v_mov_b32 v%d, v%d" % (tmp, v))
        e("s_nop 1")
        e("v_permlane16_swap_b32 v%d, v%d" % (v, tmp))
        e("%s v%d, v%d, v%d" % (op, v, v, tmp))

    def row_allreduce(v, op):
        for r in (8, 4, 2, 1):
            e("s_nop 1")
            e("%s_dpp v%d, v%d, v%d row_ror:%d %s" % (op, v, v, v, r, DPPALL))

    def sum_halves_and_tag(t, tg, dst, rnd=False):
        for k in range(4):
            e("v_add_f32 v%d, v%d, v%d" % (t + k, t + k, t + 4 + k))
        for k in range(4):
            e("v_mov_b32 v%d, v%d" % (t + 4 + k, t + k))
        e("s_nop 0")
        for k in range(4):
            e("v_permlane32_swap_b32 v%d, v%d" % (t + k, t + 4 + k))
        for k in range(4):
            e("v_add_f32 v%d, v%d, v%d" % (t + k, t + k, t + 4 + k))
        if rnd:
            for k in range(4):
                e("v_add_u32 v%d, 0x%x, v%d" % (t + k, 1 << (TB - 1), t + k))
        for k in range(4):
            e("v_and_or_b32 v%d, v%d, s%d, v%d" % (dst + k, t + k, sTM, tg[k]))

    def check_embedded(u, n, tg, acc):
        for k in range(n):
            e("v_xor_b32 v%d, v%d, v%d" % (u + k, u + k, tg + (k & 3)))
        e("v_or3_b32 v%d, v%d, v%d, v%d" % (acc, u, u + 1, u + 2))
        k = 3
        while k < n:
            if k + 1 < n:
                e("v_or3_b32 v%d, v%d, v%d, v%d" % (acc, acc, u + k, u + k + 1))
                k += 2
            else:
                e("v_or_b32 v%d, v%d, v%d" % (acc, acc, u + k))
                k += 1
        e("v_and_b32 v%d, 0x%x, v%d" % (acc, TM, acc))
        e("v_cmp_ne_u32 vcc, 0, v%d" % acc)

    def store_loc(name, text):
        e("s_cmp_lg_u32 s%d, 0" % sLOC)
        e("s_cbranch_scc1 L_wt_" + name)
        e(text)
        e("s_branch L_sd_" + name)
        m.lab("L_wt_" + name)
        e(text + " sc1")
        m.lab("L_sd_" + name)
        m.q.append(name)

    e("s_and_b32 s%d, s2, 8" % sT0)
    e("s_mul_i32 s%d, s%d, 5" % (sT0, sT0))
    e("s_load_dwordx8 s[8:15], s[0:1], s%d offset:0x8" % sT0)
    e("s_load_dwordx2 %s, s[0:1], 0" % sp(sX))
    stamp(0)
    e("v_readfirstlane_b32 s%d, v0" % sWAVE)
    e("s_cmpk_ge_u32 s2, 0x100")
    e("s_cbranch_scc1 L_end")
    e("v_and_b32 v4, 15, v0")
    e("s_and_b32 s%d, s2, 7" % sKVH)
    e("s_cmpk_lt_u32 s%d, 0x100" % sWAVE)
    e("s_cbranch_scc1 L_comp")
    e("s_getpc_b64 %s" % sp(sPC))
    m.lab("L_pc")
    e("v_lshlrev_b32 v5, 7, v0")
    e("v_min_u32 v5, L_end-L_pc+0x8000, v5")
    e("s_sub_u32 s%d, s%d, 0x8000" % (sPC, sPC))
    e("s_subb_u32 s%d, s%d, 0" % (sPC + 1, sPC + 1))
    e("global_load_dword v6, v5, %s %s" % (sp(sPC), P.get("cpflag", "")))
    e("s_branch L_comm")
    m.lab("L_comp")

    vOK, vOV, vOO, vOX = 6, 7, 8, 9
    vMK = 10
    vMP = 14
    vAD = 16
    vZERO, vONE = 18, 19
    vA_OW, vA_OR, vA_OG, vA_OP = 20, 21, 22, 23
    vX = 24
    vTG = 24
    vQ = 28
    vACC = 32
    vT = 40
    vS = 56
    vWQ = 72
    vAX = 104
    vWO = 104
    vK = 136
    vVregs = [200 + 4 * i for i in range(14)] + [vWQ + 0, vWQ + 4]
    vD = [vWQ + 8 + 4 * i for i in range(4)]
    vA_QP, vA_W, vA_H, vMH = vWQ + 24, vWQ + 25, vWQ + 26, vWQ + 27

    e("s_lshr_b32 s%d, s2, 6" % sT1)
    e("s_lshl2_add_u32 s%d, s%d, s%d" % (sT0, sKVH, sT1))
    e("s_and_b32 s%d, s2, 48" % sT1)
    e("v_lshrrev_b32 v6, 4, v0")
    e("v_lshl_or_b32 v5, s%d, 4, v4" % sT0)
    e("v_add_u32 v6, s%d, v6" % sT1)
    e("s_movk_i32 s%d, 0x2000" % sT1)
    e("v_lshlrev_b32 v%d, 4, v6" % vOX)
    e("v_lshl_or_b32 v5, v6, 12, v5")
    e("v_lshlrev_b32 v%d, 4, v5" % vT)
    for i in range(1, 8):
        e("v_add_u32 v%d, s%d, v%d" % (vT + i, sT1, vT + i - 1))
    e("s_waitcnt lgkmcnt(0)")
    m.vm("x", "global_load_dwordx4 %s, v%d, %s %s" % (vr(vX, 4), vOX, sp(sX), P.get("xflag", "")))
    for i in range(8):
        m.vm("wq%d" % i, "global_load_dwordx4 %s, v%d, %s %s" % (vr(vWQ + 4 * i, 4), vT + i, sp(sWQ), FL))
    m.lab("L_first")
    stamp(1)

    def decode():
        e("s_load_dwordx8 s[16:23], s[0:1], 80")
        if P.get("padto"):
            e("s_memrealtime s[98:99]")
        e("v_lshrrev_b32 v2, 6, v0")
        e("v_and_b32 v1, 63, v0")
        e("v_bfe_u32 v3, v0, 4, 2")
        e("s_lshr_b32 s%d, s%d, 6" % (sWAVE, sWAVE))
        e("s_bfe_u32 s%d, s2, 0x10003" % sBR)
        e("s_lshr_b32 s%d, s2, 4" % sJ)
        e("s_lshl1_add_u32 s%d, s%d, s%d" % (sGRP, sKVH, sBR))

    decode()
    e("s_lshl_b32 s%d, s%d, 8" % (sT0, sT0))
    e("s_lshl_b32 s%d, s%d, 24" % (sT1, sKVH))
    e("s_lshl_b32 s%d, s%d, 12" % (sT2, sJ))
    e("s_add_u32 s%d, s%d, s%d" % (sT1, sT1, sT2))
    e("s_add_u32 s%d, s%d, 0xF00000" % (sT1, sT1))
    e("v_bfe_u32 v%d, v1, 2, 2" % vOK)
    e("v_lshlrev_b32 v%d, 8, v%d" % (vOK, vOK))
    e("v_lshl_add_u32 v%d, v3, 6, v%d" % (vOK, vOK))
    e("v_and_b32 v5, 3, v1")
    e("v_lshl_add_u32 v%d, v5, 4, v%d" % (vOK, vOK))
    e("v_lshl_add_u32 v%d, v2, 10, v%d" % (vOK, vOK))
    e("v_add_u32 v%d, s%d, v%d" % (vOK, sT1, vOK))
    e("v_lshlrev_b32 v%d, 4, v0" % vOV)
    e("v_add_u32 v%d, s%d, v%d" % (vOV, sT1, vOV))
    e("s_lshl_b32 s%d, s%d, 9" % (sT0, sT0))
    e("s_and_b32 s%d, s%d, 3" % (sT1, sJ))
    e("s_lshl_b32 s%d, s%d, 8" % (sT1, sT1))
    e("s_add_u32 s%d, s%d, s%d" % (sT0, sT0, sT1))
    e("v_and_b32 v5, 1, v3")
    e("v_lshlrev_b32 v%d, 11, v5" % vOO)
    e("v_lshrrev_b32 v5, 1, v3")
    e("v_lshl_add_u32 v%d, v5, 10, v%d" % (vOO, vOO))
    e("v_lshl_add_u32 v%d, v2, 15, v%d" % (vOO, vOO))
    e("v_lshl_add_u32 v%d, v4, 4, v%d" % (vOO, vOO))
    e("v_add_u32 v%d, s%d, v%d" % (vOO, sT0, vOO))
    e("s_waitcnt lgkmcnt(0)")
    e("s_load_dword s%d, %s, 0x%x" % (sTAG, sp(sWS), WS_EPOCH))

    def swz(i):
        return (i << 16) | (((i * P["swz"]) & 15) << 12)

    nad = [0]

    def ld_x(name, dst, off, const, base):
        if const:
            a = vAD + (nad[0] & 1)
            nad[0] += 1
            e("v_xor_b32 v%d, 0x%x, v%d" % (a, const, off))
        else:
            a = off
        m.vm(name, "global_load_dwordx4 %s, v%d, %s %s" % (vr(dst, 4), a, sp(base), FL))

    def ld_k(i):
        ld_x("k%d" % i, vK + 4 * i, vOK, swz(i), sK)

    def ld_v(i):
        ld_x("v%d" % i, vVregs[i], vOV, swz(i), sV)

    def ld_wo(i):
        ld_x("wo%d" % i, vWO + 4 * i, vOO, i << 12, sWO)

    nk = 0
    while nk < P.get("k_early", 0):
        ld_k(nk)
        nk += 1

    m.c("masks")
    e("v_and_b32 v5, 1, v1")
    e("v_lshlrev_b32 v5, 4, v5")
    e("s_mov_b32 s%d, 0xffff" % sT0)
    e("v_lshlrev_b32 v5, v5, s%d" % sT0)
    e("v_bfe_u32 v%d, v1, 1, 2" % (vT + 8))
    for d in range(4):
        e("v_cmp_eq_u32 vcc, %d, v%d" % (d, vT + 8))
        e("s_nop 1")
        e("v_cndmask_b32 v%d, 0, v5, vcc" % (vMK + d))
    e("v_or_b32 v%d, v%d, v%d" % (vMP + 0, vMK + 0, vMK + 2))
    e("v_or_b32 v%d, v%d, v%d" % (vMP + 1, vMK + 1, vMK + 3))
    e("s_mov_b32 s%d, 0x3db504f3" % sSC)
    e("s_mov_b32 s%d, 0x3db504f3" % (sSC + 1))
    e("s_mov_b32 s%d, 0x3fb8aa3b" % sL2E)
    e("s_mov_b32 s%d, 0x3fb8aa3b" % (sL2E + 1))
    e("s_mov_b32 s%d, 0xffff0000" % sMASK)
    e("s_mov_b32 s%d, 0x01000100" % sT0)
    e("s_mov_b32 s%d, 0x03020302" % sT1)
    e("v_mov_b32 v%d, 0" % vZERO)
    e("v_mov_b32 v%d, 1" % vONE)

    m.c("q projection")
    m.wait("x")
    for i in range(8):
        e("v_perm_b32 v%d, v%d, v%d, s%d" % (vT + 8 + i, vX + i // 2, vX + i // 2, sT1 if i & 1 else sT0))
    for i in range(8):
        for d in range(4):
            e("v_and_b32 v%d, v%d, v%d" % (vAX + 4 * i + d, vT + 8 + i, vMK + d))
    for i in range(8):
        m.wait("wq%d" % i)
        e("v_mfma_f32_16x16x32_bf16 %s, %s, %s, %s" % (vr(vACC, 4), vr(vAX + 4 * i, 4), vr(vWQ + 4 * i, 4), "0" if i == 0 else vr(vACC, 4)))
        if nk < 16 and len(m.q) < W:
            ld_k(nk)
            nk += 1
    stamp(2)
    e("v_and_b32 v%d, 1, v3" % vA_QP)
    e("v_lshlrev_b32 v%d, 4, v%d" % (vA_QP, vA_QP))
    e("v_lshl_add_u32 v%d, v4, 5, v%d" % (vA_QP, vA_QP))
    e("v_lshl_add_u32 v%d, v2, 9, v%d" % (vA_QP, vA_QP))
    e("s_mov_b32 exec_hi, 0")
    e("s_nop 2")
    e("ds_write_b128 v%d, %s offset:%d" % (vA_QP, vr(vACC, 4), L_QP))
    e("s_mov_b64 exec, -1")
    e("s_waitcnt lgkmcnt(0)")
    e("s_barrier")
    for _ in range(P.get("k_after_b1", 2)):
        if nk < 16:
            m.window(W)
            ld_k(nk)
            nk += 1
    make_tags(vTG)
    if nk < 16:
        m.window(W)
        ld_k(nk)
        nk += 1

    m.c("addresses used later")
    e("v_lshlrev_b32 v%d, 11, v2" % vA_OW)
    e("v_lshl_add_u32 v%d, v1, 4, v%d" % (vA_OW, vA_OW))
    e("v_lshrrev_b32 v%d, 5, v1" % vA_OR)
    e("v_lshlrev_b32 v%d, 12, v%d" % (vA_OR, vA_OR))
    e("v_and_b32 v5, 1, v1")
    e("v_lshl_add_u32 v%d, v5, 10, v%d" % (vA_OR, vA_OR))
    e("v_lshl_add_u32 v%d, v2, 8, v%d" % (vA_OR, vA_OR))
    e("v_bfe_u32 v5, v1, 1, 4")
    e("v_lshl_add_u32 v%d, v5, 4, v%d" % (vA_OR, vA_OR))
    if nk < 16:
        m.window(W)
        ld_k(nk)
        nk += 1
    e("s_lshl_b32 s%d, s%d, 15" % (sT0, sGRP))
    e("s_add_u32 s%d, s%d, 0x%x" % (sT0, sT0, WS_O))
    e("s_lshl_b32 s%d, s%d, 7" % (sT1, sJ))
    e("s_add_u32 s%d, s%d, s%d" % (sT1, sT1, sT0))
    e("v_bfe_u32 v%d, v1, 3, 2" % vA_OG)
    e("v_lshl_add_u32 v%d, v2, 2, v%d" % (vA_OG, vA_OG))
    e("v_lshlrev_b32 v%d, 11, v%d" % (vA_OG, vA_OG))
    e("v_and_b32 v5, 7, v1")
    e("v_lshl_add_u32 v%d, v5, 4, v%d" % (vA_OG, vA_OG))
    e("v_add_u32 v%d, s%d, v%d" % (vA_OG, sT1, vA_OG))
    e("s_and_b32 s%d, s%d, 12" % (sT1, sJ))
    e("s_lshl_b32 s%d, s%d, 11" % (sT1, sT1))
    e("s_add_u32 s%d, s%d, s%d" % (sT1, sT1, sT0))
    e("v_add_u32 v%d, s%d, v%d" % (vA_OP, sT1, vA_OW))
    e("s_mov_b32 s%d, 0" % sHI)
    e("s_mov_b32 s%d, -1" % (sHI + 1))
    e("s_lshl_b32 s%d, s%d, 10" % (sT0, sGRP))
    e("s_add_u32 s%d, s%d, 0x%x" % (sT0, sT0, WS_ML))
    e("s_lshl_b32 s%d, s%d, 4" % (sT1, sJ))
    e("s_add_u32 s%d, s%d, s%d" % (sT1, sT1, sT0))
    e("v_lshlrev_b32 v5, 8, v2")
    e("v_add_u32 v5, s%d, v5" % sT1)
    e("v_cndmask_b32 v%d, v%d, v5, %s" % (vA_OG, vA_OG, sp(sHI)))
    e("s_lshr_b32 s%d, s%d, 2" % (sT1, sJ))
    e("s_lshl_b32 s%d, s%d, 8" % (sT1, sT1))
    e("s_add_u32 s%d, s%d, s%d" % (sT1, sT1, sT0))
    e("v_lshrrev_b32 v%d, 3, v1" % vA_W)
    e("v_and_b32 v5, 1, v1")
    e("v_lshl_add_u32 v%d, v5, 3, v%d" % (vA_W, vA_W))
    e("v_lshlrev_b32 v%d, 4, v%d" % (vA_W, vA_W))
    e("v_add_u32 v%d, s%d, v%d" % (vA_W, sT1, vA_W))
    e("v_lshlrev_b32 v%d, 4, v2" % vA_H)

    while nk < 16:
        m.window(W)
        ld_k(nk)
        nk += 1
    rest = [("wo", i) for i in range(P["wo_early"])] + [("v", i) for i in range(16)] + [("wo", i) for i in range(P["wo_early"], 8)]

    def ld_next():
        kind, i = rest.pop(0)
        (ld_wo if kind == "wo" else ld_v)(i)

    for _ in range(P["nv_before"]):
        if "k15" in m.q:
            m.window(W)
        ld_next()
    stamp(3)
    e("s_barrier")
    e("v_lshlrev_b32 v5, 4, v1")
    e("ds_read_b128 %s, v5 offset:%d" % (vr(vQ, 4), L_Q))
    e("ds_read_b32 v%d, v%d offset:%d" % (vT, vZERO, L_LOC))
    stamp(4)
    e("s_waitcnt lgkmcnt(0)")
    e("v_readfirstlane_b32 s%d, v%d" % (sLOC, vT))

    m.c("scores")

    def more(n=1):
        for _ in range(n):
            if rest:
                ld_next()

    qp = ["[0,0,0,0]", "[1,1,1,1]", "[2,2,2,2]", "[3,3,3,3]"]
    for b in range(4):
        for t in range(4):
            i = 4 * b + t
            m.wait("k%d" % i)
            e("v_mfma_f32_16x16x32_bf16 %s, %s, %s, 0" % (vr(vD[t], 4), vr(vK + 4 * i, 4), vr(vQ, 4)))
        more(1)
        e("s_nop 4")
        for u in range(4):
            for t in range(4):
                i = 4 * b + t
                if u == 0:
                    e("v_mov_b32_dpp v%d, v%d quad_perm:%s %s" % (vS + i, vD[t], qp[0], DPPALL))
                else:
                    e("v_add_f32_dpp v%d, v%d, v%d quad_perm:%s %s" % (vS + i, vD[t] + u, vS + i, qp[u], DPPALL))
    m.c("round to bf16, scale, round to bf16")

    def round16():
        for i in range(0, 16, 2):
            e("v_cvt_pk_bf16_f32 v%d, v%d, v%d" % (vT + i // 2, vS + i, vS + i + 1))
        for i in range(0, 16, 2):
            e("v_lshlrev_b32 v%d, 16, v%d" % (vS + i, vT + i // 2))
            e("v_and_b32 v%d, s%d, v%d" % (vS + i + 1, sMASK, vT + i // 2))

    round16()
    for i in range(0, 16, 2):
        e("v_pk_mul_f32 %s, %s, %s" % (vr(vS + i, 2), vr(vS + i, 2), sp(sSC)))
    round16()
    m.c("max")
    vM, vM2, vA1, vA2 = vT + 8, vT + 10, vT + 12, vT + 13
    e("v_max3_f32 v%d, v%d, v%d, v%d" % (vM, vS, vS + 1, vS + 2))
    e("v_max3_f32 v%d, v%d, v%d, v%d" % (vM2, vS + 3, vS + 4, vS + 5))
    for i in range(6, 14, 4):
        e("v_max3_f32 v%d, v%d, v%d, v%d" % (vM, vM, vS + i, vS + i + 1))
        e("v_max3_f32 v%d, v%d, v%d, v%d" % (vM2, vM2, vS + i + 2, vS + i + 3))
    e("v_max3_f32 v%d, v%d, v%d, v%d" % (vM, vM, vS + 14, vS + 15))
    e("v_max_f32 v%d, v%d, v%d" % (vM, vM, vM2))
    allreduce_groups(vM, vM2, "v_max_f32")
    e("v_lshrrev_b32 v%d, 2, v4" % vA2)
    e("v_lshlrev_b32 v%d, 4, v%d" % (vA2, vA2))
    e("v_lshl_add_u32 v%d, v2, 2, v%d" % (vA1, vA2))
    e("ds_write_b32 v%d, v%d offset:%d" % (vA1, vM, L_MX))
    e("s_waitcnt lgkmcnt(0)")
    e("s_barrier")
    e("ds_read_b128 %s, v%d offset:%d" % (vr(vT, 4), vA2, L_MX))
    e("ds_read_b128 %s, v%d offset:%d" % (vr(vT + 4, 4), vA_H, L_MX))
    more(P["n_b3"])
    e("s_waitcnt lgkmcnt(0)")
    e("v_max3_f32 v%d, v%d, v%d, v%d" % (vMH, vT + 4, vT + 5, vT + 6))
    e("v_max_f32 v%d, v%d, v%d" % (vMH, vMH, vT + 7))
    e("v_max3_f32 v%d, v%d, v%d, v%d" % (vM, vT, vT + 1, vT + 2))
    e("v_max_f32 v%d, v%d, v%d" % (vM, vM, vT + 3))
    e("v_mul_f32 v%d, s%d, v%d" % (vM2, sL2E, vM))
    e("v_mov_b32 v%d, v%d" % (vM2 + 1, vM2))
    m.c("exp")
    for i in range(0, 16, 2):
        e("v_pk_fma_f32 %s, %s, %s, %s neg_lo:[0,0,1] neg_hi:[0,0,1]" % (vr(vS + i, 2), vr(vS + i, 2), sp(sL2E), vr(vM2, 2)))
    for i in range(16):
        e("v_exp_f32 v%d, v%d" % (vS + i, vS + i))
    vPA = vK
    for i in range(16):
        e("v_cvt_pk_bf16_f32 v%d, v%d, v%d" % (vPA + 2 * i, vS + i, vS + i))
    for i in range(16):
        e("v_and_b32 v%d, v%d, v%d" % (vPA + 2 * i + 1, vPA + 2 * i, vMP + 1))
        e("v_and_b32 v%d, v%d, v%d" % (vPA + 2 * i, vPA + 2 * i, vMP + 0))
    for st in (8, 4, 2):
        for i in range(0, st, 2):
            e("v_pk_add_f32 %s, %s, %s" % (vr(vS + i, 2), vr(vS + i, 2), vr(vS + st + i, 2)))
    vU = vS + 8
    e("v_add_f32 v%d, v%d, v%d" % (vU + 2, vS, vS + 1))
    allreduce_groups(vU + 2, vS + 4, "v_add_f32")
    e("ds_write_b32 v%d, v%d offset:%d" % (vA1, vU + 2, L_LS))
    stamp(5)

    m.c("PV")
    for i in range(16):
        while ("v", i) in rest:
            m.window(P["wo_win"])
            ld_next()
        while rest and "v%d" % i in m.q and m.q.index("v%d" % i) > 0:
            m.window(P["wo_win"])
            if len(m.q) < P["wo_win"]:
                ld_next()
        m.wait("v%d" % i)
        for w in range(2):
            e("v_mfma_f32_16x16x16_bf16 %s, %s, %s, %s" % (vr(vACC + 4 * w, 4), vr(vPA + 2 * i, 2), vr(vVregs[i] + 2 * w, 2), "0" if i == 0 else vr(vACC + 4 * w, 4)))
        while rest and len(m.q) < P["wo_win"]:
            ld_next()
    while rest:
        ld_next()
    stamp(6)
    e("s_nop 6")
    e("ds_write_b128 v%d, %s offset:%d" % (vA_OW, vr(vACC, 4), L_OP))
    e("ds_write_b128 v%d, %s offset:%d" % (vA_OW, vr(vACC + 4, 4), L_OP + 1024))
    e("s_mov_b64 exec, 1")
    e("ds_add_u32 v%d, v%d offset:%d" % (vZERO, vONE, L_CNT))
    e("s_mov_b64 exec, -1")
    m.lab("L_cnt")
    e("ds_read_b32 v%d, v%d offset:%d" % (vT + 12, vZERO, L_CNT))
    e("ds_read_b128 %s, v%d offset:%d" % (vr(vT, 4), vA_OR, L_OP))
    e("ds_read_b128 %s, v%d offset:%d" % (vr(vT + 4, 4), vA_OR, L_OP + 2048))
    e("ds_read_b128 %s, v%d offset:%d" % (vr(vT + 8, 4), vA_H, L_LS))
    e("s_waitcnt lgkmcnt(0)")
    e("v_cmp_ne_u32 vcc, 4, v%d" % (vT + 12))
    e("s_cbranch_vccnz L_cnt")
    e("v_pk_add_f32 %s, %s, %s" % (vr(vT, 2), vr(vT, 2), vr(vT + 4, 2)))
    e("v_pk_add_f32 %s, %s, %s" % (vr(vT + 2, 2), vr(vT + 2, 2), vr(vT + 6, 2)))
    e("v_pk_add_f32 %s, %s, %s" % (vr(vT + 8, 2), vr(vT + 8, 2), vr(vT + 10, 2)))
    for k in range(4):
        e("v_mov_b32 v%d, v%d" % (vT + 4 + k, vT + k))
    e("v_add_f32 v%d, v%d, v%d" % (vT + 8, vT + 8, vT + 9))
    for k in range(4):
        e("v_permlane32_swap_b32 v%d, v%d" % (vT + k, vT + 4 + k))
    e("v_pk_add_f32 %s, %s, %s" % (vr(vT, 2), vr(vT, 2), vr(vT + 4, 2)))
    e("v_pk_add_f32 %s, %s, %s" % (vr(vT + 2, 2), vr(vT + 2, 2), vr(vT + 6, 2)))
    e("v_cndmask_b32 v%d, v%d, v%d, %s" % (vT, vT, vMH, sp(sHI)))
    e("v_cndmask_b32 v%d, v%d, v%d, %s" % (vT + 1, vT + 1, vT + 8, sp(sHI)))
    for k in (2, 3, 0, 1):
        e("v_and_or_b32 v%d, v%d, s%d, v%d" % (vT + k, vT + k, sTM, vTG + k))
    e("s_mov_b32 exec_hi, 1")
    store_loc("o", "global_store_dwordx4 v%d, %s, %s" % (vA_OG, vr(vT, 4), sp(sWS)))
    stamp(7)
    if ST and P.get("wostamp"):
        m.wait("wo7")
        stamp(10)
    vO = vS
    vR = vK + 0
    sM = [44, 46, 48]
    e("s_mov_b32 s%d, 0" % sSPIN)
    for h in range(3):
        e("s_mov_b64 %s, -1" % sp(sM[h]))
    m.lab("L_opoll")
    if P["osleep"]:
        e("s_sleep %d" % P["osleep"])
    e("s_mov_b64 exec, %s" % sp(sM[2]))
    e("global_load_dwordx4 %s, v%d, %s sc1" % (vr(vR + 8, 4), vA_W, sp(sWS)))
    e("s_mov_b64 exec, %s" % sp(sM[0]))
    e("global_load_dwordx4 %s, v%d, %s sc1" % (vr(vR, 4), vA_OP, sp(sWS)))
    e("s_mov_b64 exec, %s" % sp(sM[1]))
    e("global_load_dwordx4 %s, v%d, %s offset:1024 sc1" % (vr(vR + 4, 4), vA_OP, sp(sWS)))
    e("s_mov_b64 exec, -1")
    e("s_add_u32 s%d, s%d, 1" % (sSPIN, sSPIN))
    e("s_waitcnt vmcnt(0)")
    m.q = []
    for k in list(range(8, 12)) + list(range(8)):
        e("v_xor_b32 v%d, v%d, v%d" % (vO + k, vR + k, vTG + (k & 3)))
    vM_, vL_, vE, vX1, vX2 = vO + 8, vO + 9, vT + 12, vT + 13, vT + 14
    e("v_max_f32_dpp v%d, v%d, v%d quad_perm:[1,0,3,2] %s" % (vX1, vM_, vM_, DPPALL))
    for h in range(3):
        e("v_or3_b32 v%d, v%d, v%d, v%d" % (vT + 8 + h, vO + 4 * h, vO + 4 * h + 1, vO + 4 * h + 2))
    e("v_max_f32_dpp v%d, v%d, v%d row_ror:8 %s" % (vX1, vX1, vX1, DPPALL))
    e("v_mov_b32 v%d, v%d" % (vX2, vX1))
    for h in range(3):
        e("v_bitop3_b32 v%d, v%d, v%d, s%d bitop3:0x54" % (vT + 8 + h, vT + 8 + h, vO + 4 * h + 3, sTM))
    e("v_permlane16_swap_b32 v%d, v%d" % (vX1, vX2))
    e("v_max_f32 v%d, v%d, v%d" % (vX1, vX1, vX2))
    e("v_mov_b32 v%d, v%d" % (vX2, vX1))
    for h in range(3):
        e("v_cmp_ne_u32 %s, 0, v%d" % (sp(sM[h]), vT + 8 + h))
    e("v_permlane32_swap_b32 v%d, v%d" % (vX1, vX2))
    e("v_max_f32 v%d, v%d, v%d" % (vX1, vX1, vX2))
    e("s_or_b64 %s, %s, %s" % (sp(sSAVE), sp(sM[0]), sp(sM[1])))
    e("v_sub_f32 v%d, v%d, v%d" % (vE, vM_, vX1))
    e("s_or_b64 %s, %s, %s" % (sp(sSAVE), sp(sSAVE), sp(sM[2])))
    e("v_mul_f32 v%d, s%d, v%d" % (vE, sL2E, vE))
    e("s_cbranch_scc0 L_ogot")
    e("s_cmp_lt_u32 s%d, %d" % (sSPIN, P["spin"]))
    e("s_cbranch_scc1 L_opoll")
    m.lab("L_ogot")
    e("v_exp_f32 v%d, v%d" % (vE, vE))
    stamp(8)
    e("s_nop 0")
    e("v_mul_f32 v%d, v%d, v%d" % (vX1, vE, vL_))
    for k in range(4):
        e("v_mul_f32_dpp v%d, v%d, v%d quad_perm:[0,0,2,2] %s" % (vO + k, vE, vO + k, DPPALL))
        if k == 2:
            e("v_add_f32_dpp v%d, v%d, v%d quad_perm:[1,0,3,2] %s" % (vX1, vX1, vX1, DPPALL))
    for k in range(4):
        e("v_fmac_f32_dpp v%d, v%d, v%d quad_perm:[1,1,3,3] %s" % (vO + k, vE, vO + 4 + k, DPPALL))
        if k == 1:
            e("v_add_f32_dpp v%d, v%d, v%d row_ror:8 %s" % (vX1, vX1, vX1, DPPALL))
    e("v_mov_b32 v%d, v%d" % (vX2, vX1))
    e("v_permlane32_swap_b32 v%d, v%d" % (vO + 0, vO + 1))
    e("v_permlane32_swap_b32 v%d, v%d" % (vO + 2, vO + 3))
    e("v_permlane32_swap_b32 v%d, v%d" % (vX1, vX2))
    e("v_add_f32 v%d, v%d, v%d" % (vO + 0, vO + 0, vO + 1))
    e("v_add_f32 v%d, v%d, v%d" % (vO + 2, vO + 2, vO + 3))
    e("v_add_f32 v%d, v%d, v%d" % (vX1, vX1, vX2))
    e("v_mov_b32 v%d, v%d" % (vX2, vX1))
    e("v_permlane16_swap_b32 v%d, v%d" % (vO + 0, vO + 2))
    e("v_add_f32 v%d, v%d, v%d" % (vO + 0, vO + 0, vO + 2))
    e("v_permlane16_swap_b32 v%d, v%d" % (vX1, vX2))
    e("v_add_f32 v%d, v%d, v%d" % (vX1, vX1, vX2))
    e("v_rcp_f32 v%d, v%d" % (vX1, vX1))
    e("v_add_f32_dpp v%d, v%d, v%d row_ror:8 %s" % (vO + 0, vO + 0, vO + 0, DPPALL))
    e("v_mul_f32 v%d, v%d, v%d" % (vO + 0, vO + 0, vX1))
    e("v_cvt_pk_bf16_f32 v%d, v%d, v%d" % (vO + 0, vO + 0, vO + 0))
    e("s_nop 1")
    vAI = vK + 32

    def build_ai(i):
        for d in range(4):
            e("v_and_b32_dpp v%d, v%d, v%d row_newbcast:%d %s" % (vAI + 4 * i + d, vO, vMK + d, i, DPPALL))

    build_ai(0)
    for i in range(8):
        if i < 7:
            build_ai(i + 1)
        else:
            e("s_nop 0")
        e("v_mfma_f32_16x16x32_bf16 %s, %s, %s, %s" % (vr(vACC, 4), vr(vAI + 4 * i, 4), vr(vWO + 4 * i, 4), "0" if i == 0 else vr(vACC, 4)))
    e("s_mov_b32 exec_hi, 0")
    e("s_nop 6")
    e("ds_write_b128 v%d, %s offset:%d" % (vA_QP, vr(vACC, 4), L_QP))
    e("s_waitcnt lgkmcnt(0)")
    e("s_barrier")
    stamp(9)
    dump_stamps(11)
    e("s_endpgm")

    m.q = []
    m.lab("L_comm")
    cA, cB, cC, cD = 7, 8, 9, 10
    cGS = 11
    cT = 12
    cQA, cQG, cML, cFP = 28, 29, 30, 31
    cU = 32
    cTG = 64
    cTQ = 68
    cOA, cFG = 69, 70
    cPT = 72
    cFU = 84

    decode()
    e("v_mov_b32 v%d, 0" % cT)
    e("ds_write_b32 v%d, v%d offset:%d" % (cT, cT, L_CNT))
    e("v_lshlrev_b32 v%d, 4, v1" % cA)
    e("v_lshrrev_b32 v%d, 5, v1" % cB)
    e("v_lshlrev_b32 v%d, 10, v%d" % (cB, cB))
    e("v_and_b32 v%d, 31, v1" % cC)
    e("v_lshlrev_b32 v%d, 4, v%d" % (cC, cC))
    e("v_add_u32 v%d, v%d, v%d" % (cB, cB, cC))
    e("s_lshl_b32 s%d, s%d, 13" % (sT0, sGRP))
    e("s_add_u32 s%d, s%d, 0x%x" % (sT0, sT0, WS_Q))
    e("s_lshl_b32 s%d, s%d, 9" % (sT1, sJ))
    e("s_add_u32 s%d, s%d, s%d" % (sT1, sT1, sT0))
    e("v_add_u32 v%d, s%d, v%d" % (cQA, sT1, cC))
    e("s_waitcnt lgkmcnt(0)")
    e("s_load_dword s%d, %s, 0x%x" % (sTAG, sp(sWS), WS_EPOCH))
    e("s_mov_b32 exec_hi, 0")
    if P["spt"]:
        for k in range(4):
            e("s_load_dword s%d, %s, s%d offset:%d" % (52 + k, sp(sWS), sT1, 128 * k))
    else:
        e("global_load_dwordx4 %s, v%d, %s %s" % (vr(cPT, 4), cQA, sp(sWS), P.get("ptflag", "sc1 nt")))
    if P["tlbwarm"]:
        e("s_lshl_b32 s%d, s%d, 24" % (sT1, sKVH))
        e("s_add_u32 s%d, s%d, 0xF00000" % (sT1, sT1))
        e("v_lshlrev_b32 v%d, 16, v1" % (cPT + 4))
        e("v_add_u32 v%d, s%d, v%d" % (cPT + 4, sT1, cPT + 4))
        e("s_lshl_b32 s%d, s%d, 2" % (sT1, sKVH))
        e("s_lshr_b32 s%d, s%d, 2" % (sT2, sJ))
        e("s_add_u32 s%d, s%d, s%d" % (sT1, sT1, sT2))
        e("s_lshl_b32 s%d, s%d, 17" % (sT1, sT1))
        e("v_lshlrev_b32 v%d, 16, v1" % (cPT + 5))
        e("v_add_u32 v%d, s%d, v%d" % (cPT + 5, sT1, cPT + 5))
        e("v_mov_b32 v%d, 0" % (cPT + 6))
        e("s_mov_b64 exec, 0x%x" % (0xffff if P["tlbwarm"] == 2 else 1))
        e("global_load_dword v%d, v%d, %s" % (cPT + 7, cPT + 4, sp(sK)))
        e("global_load_dword v%d, v%d, %s" % (cPT + 8, cPT + 4, sp(sV)))
        e("s_mov_b64 exec, 0x%x" % (3 if P["tlbwarm"] == 2 else 1))
        e("global_load_dword v%d, v%d, %s" % (cPT + 9, cPT + 5, sp(sWO)))
        e("s_mov_b64 exec, 1")
        e("global_load_dword v%d, v%d, %s" % (cPT + 10, cPT + 6, sp(sOUT)))
        e("global_load_dword v%d, v%d, %s" % (cPT + 11, cPT + 6, sp(sGATE)))
    e("s_mov_b64 exec, -1")
    e("v_lshrrev_b32 v%d, 2, v4" % cQG)
    e("v_lshlrev_b32 v%d, 11, v%d" % (cQG, cQG))
    e("v_lshl_add_u32 v%d, v3, 7, v%d" % (cQG, cQG))
    e("v_and_b32 v%d, 3, v1" % cT)
    e("v_lshl_add_u32 v%d, v%d, 5, v%d" % (cQG, cT, cQG))
    e("v_add_u32 v%d, s%d, v%d" % (cQG, sT0, cQG))
    e("v_add_u32 v%d, 0x%x, v%d" % (cD, WS_QB - WS_Q, cQA))
    e("s_mov_b32 s%d, 0x3fb8aa3b" % sL2E)
    e("s_mov_b32 s%d, 0xffff0000" % sMASK)
    e("s_getreg_b32 s%d, hwreg(HW_REG_XCC_ID, 0, 4)" % sT2)
    stamp(1)
    e("s_waitcnt lgkmcnt(0)")
    make_tags(cTG)
    e("v_and_b32 v%d, 0x%x, v%d" % (cTQ, TM & ~15, cTG + 3))
    e("v_or_b32 v%d, s%d, v%d" % (cTQ, sT2, cTQ))
    stamp(2)
    e("s_barrier")
    e("ds_read_b128 %s, v%d offset:%d" % (vr(cT, 4), cB, L_QP))
    e("ds_read_b128 %s, v%d offset:%d" % (vr(cT + 4, 4), cB, L_QP + 512))
    e("s_waitcnt lgkmcnt(0)")
    sum_halves_and_tag(cT, [cTG, cTG + 1, cTG + 2, cTQ], cT + 8, rnd=True)
    e("s_mov_b32 exec_hi, 0")
    e("global_store_dwordx4 v%d, %s, %s" % (cQA, vr(cT + 8, 4), sp(sWS)))
    if P.get("eagerb"):
        e("global_store_dwordx4 v%d, %s, %s sc1" % (cD, vr(cT + 8, 4), sp(sWS)))
    e("s_mov_b64 exec, -1")
    stamp(3)
    if P["spt"]:
        e("s_lshl4_add_u32 s%d, s%d, s%d" % (sT0, sGRP, sJ))
        e("s_lshl_b32 s%d, s%d, 11" % (sT1, sT0))
        for k in range(16):
            e("s_load_dword s%d, %s, s%d offset:0x%x" % (52 + (k & 7), sp(sWS), sT1, WS_O + 128 * k))
        e("s_lshr_b32 s%d, s%d, 2" % (sT1, sT0))
        e("s_lshl_b32 s%d, s%d, 8" % (sT1, sT1))
        for k in range(2):
            e("s_load_dword s%d, %s, s%d offset:0x%x" % (60 + k, sp(sWS), sT1, WS_ML + 128 * k))
        if P["spt"] > 1:
            e("s_lshr_b32 s%d, s%d, 1" % (sT0, sKVH))
            e("s_lshl_b32 s%d, s%d, 15" % (sT0, sT0))
            e("s_lshr_b32 s%d, s2, 3" % sT1)
            e("s_lshl_b32 s%d, s%d, 10" % (sT1, sT1))
            e("s_add_u32 s%d, s%d, s%d" % (sT0, sT0, sT1))
            e("s_and_b32 s%d, s%d, 1" % (sT1, sKVH))
            e("s_lshl_b32 s%d, s%d, 8" % (sT1, sT1))
            e("s_add_u32 s%d, s%d, s%d" % (sT0, sT0, sT1))
            for k in range(4):
                e("s_load_dword s%d, %s, s%d offset:0x%x" % (62 + k, sp(sWS), sT0, WS_F + 512 * (k >> 1) + 128 * (k & 1)))
    e("s_mov_b32 s%d, 0" % sSPIN)
    if P.get("d_noq"):
        e("s_branch L_gotq")
    m.lab("L_pollq")
    for rq in range(4):
        for hf in range(2):
            e("global_load_dwordx4 %s, v%d, %s offset:%d sc1" % (vr(cU + 8 * rq + 4 * hf, 4), cQG, sp(sWS), rq * 512 + hf * 16))
    e("s_add_u32 s%d, s%d, 1" % (sSPIN, sSPIN))
    e("s_waitcnt vmcnt(0)")
    for k in range(32):
        e("v_xor_b32 v%d, v%d, v%d" % (cU + k, cU + k, cTQ if (k & 3) == 3 else cTG + (k & 3)))
    e("v_or3_b32 v%d, v%d, v%d, v%d" % (cT + 1, cU + 3, cU + 7, cU + 11))
    e("v_or3_b32 v%d, v%d, v%d, v%d" % (cT + 1, cT + 1, cU + 15, cU + 19))
    e("v_or3_b32 v%d, v%d, v%d, v%d" % (cT + 1, cT + 1, cU + 23, cU + 27))
    e("v_or_b32 v%d, v%d, v%d" % (cT + 1, cT + 1, cU + 31))
    e("v_and_b32 v%d, -16, v%d" % (cT, cT + 1))
    rest3 = [cU + k for k in range(32) if (k & 3) != 3]
    for k in range(0, 24, 2):
        e("v_or3_b32 v%d, v%d, v%d, v%d" % (cT, cT, rest3[k], rest3[k + 1]))
    e("v_and_b32 v%d, 0x%x, v%d" % (cT, TM, cT))
    e("v_cmp_ne_u32 vcc, 0, v%d" % cT)
    e("s_cbranch_vccz L_gotq")
    e("s_cmp_lt_u32 s%d, %d" % (sSPIN, P["nfast"]))
    e("s_cbranch_scc1 L_pollq")
    e("v_xor_b32 v%d, 0x%x, v%d" % (cQG, WS_QB ^ WS_Q, cQG))
    e("s_cmp_lg_u32 s%d, %d" % (sSPIN, P["nfast"]))
    e("s_cbranch_scc1 L_nswq")
    e("s_mov_b32 exec_hi, 0")
    e("global_store_dwordx4 v%d, %s, %s sc1" % (cD, vr(cT + 8, 4), sp(sWS)))
    e("s_mov_b64 exec, -1")
    m.lab("L_nswq")
    e("s_cmp_lt_u32 s%d, %d" % (sSPIN, P["spin"]))
    e("s_cbranch_scc1 L_pollq")
    m.lab("L_gotq")
    e("v_and_b32 v%d, 15, v%d" % (cT + 1, cT + 1))
    e("v_cmp_ne_u32 vcc, 0, v%d" % (cT + 1))
    for k in range(3, 32, 4):
        e("v_and_b32 v%d, -16, v%d" % (cU + k, cU + k))
    e("s_or_b32 s%d, vcc_lo, vcc_hi" % sLOC)
    if P.get("force_wt"):
        e("s_mov_b32 s%d, 1" % sLOC)
    e("s_cmp_eq_u32 s%d, 0" % sLOC)
    e("s_cbranch_scc1 L_qloc")
    e("s_mov_b32 exec_hi, 0")
    e("global_store_dwordx4 v%d, %s, %s sc1" % (cD, vr(cT + 8, 4), sp(sWS)))
    e("s_mov_b64 exec, -1")
    m.lab("L_qloc")
    for k in range(0, 8, 2):
        e("v_pk_add_f32 %s, %s, %s" % (vr(cU + k, 2), vr(cU + k, 2), vr(cU + 8 + k, 2)))
        e("v_pk_add_f32 %s, %s, %s" % (vr(cU + 16 + k, 2), vr(cU + 16 + k, 2), vr(cU + 24 + k, 2)))
    for k in range(0, 8, 2):
        e("v_pk_add_f32 %s, %s, %s" % (vr(cU + k, 2), vr(cU + k, 2), vr(cU + 16 + k, 2)))
    for k in range(4):
        e("v_cvt_pk_bf16_f32 v%d, v%d, v%d" % (cT + k, cU + 2 * k, cU + 2 * k + 1))
    e("v_mov_b32 v%d, s%d" % (cT + 4, sLOC))
    e("v_mov_b32 v%d, 0" % (cT + 5))
    e("ds_write_b128 v%d, %s offset:%d" % (cA, vr(cT, 4), L_Q))
    e("ds_write_b32 v%d, v%d offset:%d" % (cT + 5, cT + 4, L_LOC))
    e("s_waitcnt lgkmcnt(0)")
    stamp(4)
    e("s_barrier")
    e("s_lshl_b32 s%d, s%d, 4" % (sT0, sGRP))
    e("s_add_u32 s%d, s%d, s%d" % (sT0, sT0, sJ))
    e("s_lshl_b32 s%d, s%d, 11" % (sT1, sT0))
    e("s_add_u32 s%d, s%d, 0x%x" % (sT1, sT1, WS_O))
    e("v_add_u32 v%d, s%d, v%d" % (cD, sT1, cA))
    e("s_lshr_b32 s%d, s%d, 2" % (sT1, sT0))
    e("s_lshl_b32 s%d, s%d, 8" % (sT1, sT1))
    e("s_add_u32 s%d, s%d, 0x%x" % (sT1, sT1, WS_ML))
    e("v_lshlrev_b32 v%d, 4, v4" % cML)
    e("v_add_u32 v%d, s%d, v%d" % (cML, sT1, cML))
    e("global_load_dwordx4 %s, v%d, %s %s" % (vr(cU, 4), cA, sp(sX), P.get("xflag", "")))
    e("global_load_dwordx4 %s, v%d, %s %s" % (vr(cU + 4, 4), cA, sp(sGATE), P.get("xflag", "")))
    PF = P.get("ptflag", "sc1 nt")
    if not P["spt"]:
        e("global_load_dwordx4 %s, v%d, %s %s" % (vr(cPT, 4), cD, sp(sWS), PF))
        e("global_load_dwordx4 %s, v%d, %s offset:1024 %s" % (vr(cPT + 4, 4), cD, sp(sWS), PF))
        e("global_load_dwordx4 %s, v%d, %s %s" % (vr(cPT + 8, 4), cML, sp(sWS), PF))
    e("s_barrier")
    e("s_and_b32 s%d, s%d, 3" % (sT0, sJ))
    e("s_lshl_b32 s%d, s%d, 6" % (sT0, sT0))
    e("s_lshl_b32 s%d, s%d, 5" % (sT1, sBR))
    e("s_add_u32 s%d, s%d, s%d" % (sT0, sT0, sT1))
    e("s_lshl_b32 s%d, s%d, 2" % (sT1, sKVH))
    e("s_add_u32 s%d, s%d, s%d" % (sT0, sT0, sT1))
    e("s_lshr_b32 s%d, s%d, 2" % (sT1, sJ))
    e("s_add_u32 s%d, s%d, s%d" % (sT0, sT0, sT1))
    e("s_lshl_b32 s%d, s%d, 9" % (sT0, sT0))
    e("s_add_u32 s%d, s%d, 0x%x" % (sT0, sT0, WS_F))
    e("v_add_u32 v%d, s%d, v%d" % (cFP, sT0, cC))
    e("s_lshl_b32 s%d, s%d, 4" % (sT0, sKVH))
    e("s_bfe_u32 s%d, s2, 0x40003" % sT1)
    e("s_add_u32 s%d, s%d, s%d" % (sT0, sT0, sT1))
    e("s_lshr_b32 s%d, s%d, 5" % (sT1, sT0))
    e("s_lshl_b32 s%d, s%d, 15" % (sT1, sT1))
    e("s_and_b32 s%d, s%d, 31" % (sT2, sT0))
    e("s_lshl_b32 s%d, s%d, 4" % (sT2, sT2))
    e("s_add_u32 s%d, s%d, s%d" % (sT1, sT1, sT2))
    e("s_add_u32 s%d, s%d, 0x%x" % (sT1, sT1, WS_F))
    e("v_lshlrev_b32 v%d, 9, v1" % cFG)
    e("v_add_u32 v%d, s%d, v%d" % (cFG, sT1, cFG))
    e("v_and_b32 v%d, 1, v3" % cOA)
    e("v_bfe_u32 v%d, v1, 3, 1" % cD)
    e("v_lshl_add_u32 v%d, v%d, 1, v%d" % (cOA, cD, cOA))
    e("v_lshlrev_b32 v%d, 1, v%d" % (cOA, cOA))
    e("s_lshl_b32 s%d, s%d, 3" % (sT0, sT0))
    e("v_add_u32 v%d, s%d, v%d" % (cOA, sT0, cOA))
    e("s_waitcnt vmcnt(%d)" % (0 if P["spt"] else 3))
    m.c("gate")
    for i in range(4):
        e("v_lshlrev_b32 v%d, 16, v%d" % (cT + 2 * i, cU + i))
        e("v_and_b32 v%d, s%d, v%d" % (cT + 2 * i + 1, sMASK, cU + i))
        e("v_lshlrev_b32 v%d, 16, v%d" % (cT + 8 + 2 * i, cU + 4 + i))
        e("v_and_b32 v%d, s%d, v%d" % (cT + 8 + 2 * i + 1, sMASK, cU + 4 + i))
    for i in range(8):
        e("v_mul_f32 v%d, v%d, v%d" % (cT + i, cT + i, cT + 8 + i))
    for i in range(4):
        e("v_cvt_pk_bf16_f32 v%d, v%d, v%d" % (cT + 8 + i, cT + 2 * i, cT + 2 * i + 1))
    for i in range(4):
        e("v_lshlrev_b32 v%d, 16, v%d" % (cT + 2 * i, cT + 8 + i))
        e("v_and_b32 v%d, s%d, v%d" % (cT + 2 * i + 1, sMASK, cT + 8 + i))
    for i in range(4):
        e("v_add_f32 v%d, v%d, v%d" % (cT + i, cT + i, cT + 4 + i))
    e("v_add_f32 v%d, v%d, v%d" % (cT + 0, cT + 0, cT + 2))
    e("v_add_f32 v%d, v%d, v%d" % (cT + 1, cT + 1, cT + 3))
    e("v_add_f32 v%d, v%d, v%d" % (cT + 0, cT + 0, cT + 1))
    row_allreduce(cT, "v_add_f32")
    allreduce_groups(cT, cT + 1, "v_add_f32")
    e("v_cvt_pk_bf16_f32 v%d, v%d, v%d" % (cT, cT, cT))
    e("v_and_b32 v%d, s%d, v%d" % (cT, sMASK, cT))
    e("v_mul_f32 v%d, s%d, v%d" % (cT, sL2E, cT))
    e("v_exp_f32 v%d, -v%d" % (cT, cT))
    e("s_nop 0")
    e("v_add_f32 v%d, 1.0, v%d" % (cT, cT))
    e("v_rcp_f32 v%d, v%d" % (cT, cT))
    e("s_nop 0")
    e("v_cvt_pk_bf16_f32 v%d, v%d, v%d" % (cT, cT, cT))
    e("v_and_b32 v%d, s%d, v%d" % (cT + 1, sMASK, cT))
    e("v_sub_f32 v%d, 1.0, v%d" % (cT, cT + 1))
    e("v_cmp_gt_u32 vcc, 32, v1")
    e("v_cvt_pk_bf16_f32 v%d, v%d, v%d" % (cT, cT, cT))
    e("v_and_b32 v%d, s%d, v%d" % (cT, sMASK, cT))
    e("v_cndmask_b32 v%d, v%d, v%d, vcc" % (cGS, cT, cT + 1))
    stamp(5)
    e("s_barrier")
    e("ds_read_b128 %s, v%d offset:%d" % (vr(cT, 4), cB, L_QP))
    e("ds_read_b128 %s, v%d offset:%d" % (vr(cT + 4, 4), cB, L_QP + 512))
    stamp(6)
    e("s_waitcnt lgkmcnt(0)")
    sum_halves_and_tag(cT, [cTG + k for k in range(4)], cT + 8)
    e("s_mov_b32 exec_hi, 0")
    e("global_store_dwordx4 v%d, %s, %s %s" % (cFP, vr(cT + 8, 4), sp(sWS), P.get("fsflag", "sc1")))
    e("s_mov_b64 exec, -1")
    stamp(7)
    e("s_cmp_ge_u32 s2, 128")
    e("s_cbranch_scc1 L_fin")
    if P["fwait"]:
        e("s_sleep %d" % P["fwait"])
    e("s_mov_b32 s%d, 0" % sSPIN)
    e("s_mov_b64 vcc, -1")
    m.lab("L_pollf")
    if P["fsleep"]:
        e("s_sleep %d" % P["fsleep"])
    e("s_mov_b64 exec, vcc")
    e("global_load_dwordx4 %s, v%d, %s %s" % (vr(cFU, 4), cFG, sp(sWS), P.get("fflag", "sc1")))
    e("s_mov_b64 exec, -1")
    e("s_add_u32 s%d, s%d, 1" % (sSPIN, sSPIN))
    e("s_waitcnt vmcnt(0)")
    for d in range(4):
        e("v_xor_b32 v%d, v%d, v%d" % (cU + d, cFU + d, cTG + d))
    e("v_or3_b32 v%d, v%d, v%d, v%d" % (cT, cU, cU + 1, cU + 2))
    e("v_bitop3_b32 v%d, v%d, v%d, s%d bitop3:0x54" % (cT, cT, cU + 3, sTM))
    e("v_cmp_ne_u32 vcc, 0, v%d" % cT)
    e("s_cbranch_vccz L_gotf")
    e("s_cmp_lt_u32 s%d, %d" % (sSPIN, P["spin"]))
    e("s_cbranch_scc1 L_pollf")
    m.lab("L_gotf")
    stamp(8)
    e("v_permlane16_swap_b32 v%d, v%d" % (cU + 0, cU + 1))
    e("v_permlane16_swap_b32 v%d, v%d" % (cU + 2, cU + 3))
    e("v_add_f32 v%d, v%d, v%d" % (cU + 0, cU + 0, cU + 1))
    e("v_add_f32 v%d, v%d, v%d" % (cU + 2, cU + 2, cU + 3))
    e("s_nop 0")
    e("v_add_f32_dpp v%d, v%d, v%d row_ror:8 row_mask:0xf bank_mask:0x3" % (cT, cU + 0, cU + 0))
    e("v_add_f32_dpp v%d, v%d, v%d row_ror:8 row_mask:0xf bank_mask:0xc" % (cT, cU + 2, cU + 2))
    for md in ("quad_perm:[1,0,3,2]", "quad_perm:[2,3,0,1]", "row_half_mirror"):
        e("s_nop 1")
        e("v_add_f32_dpp v%d, v%d, v%d %s %s" % (cT, cT, cT, md, DPPALL))
    e("v_cvt_pk_bf16_f32 v%d, v%d, v%d" % (cT, cT, cT))
    e("v_and_b32 v%d, s%d, v%d" % (cT, sMASK, cT))
    e("v_mul_f32 v%d, v%d, v%d" % (cT, cT, cGS))
    e("v_cvt_pk_bf16_f32 v%d, v%d, v%d" % (cT, cT, cT))
    e("v_and_b32 v%d, s%d, v%d" % (cT, sMASK, cT))
    e("v_mov_b32 v%d, v%d" % (cT + 1, cT))
    e("s_nop 1")
    e("v_permlane32_swap_b32 v%d, v%d" % (cT, cT + 1))
    e("v_add_f32 v%d, v%d, v%d" % (cT, cT, cT + 1))
    e("v_cvt_pk_bf16_f32 v%d, v%d, v%d" % (cT, cT, cT))
    e("s_mov_b64 exec, 0x01010101")
    e("global_store_short v%d, v%d, %s" % (cOA, cT, sp(sOUT)))
    e("s_cmp_lg_u32 s2, 0")
    e("s_cbranch_scc1 L_fin")
    e("s_mov_b64 exec, 1")
    e("v_mov_b32 v%d, s%d" % (cT + 2, sTAG))
    e("v_mov_b32 v%d, 0" % (cT + 3))
    e("global_store_dword v%d, v%d, %s offset:%d" % (cT + 3, cT + 2, sp(sWS), WS_EPOCH))
    m.lab("L_fin")
    stamp(9)
    if P.get("padto"):
        m.lab("L_pad")
        e("s_memrealtime s[96:97]")
        e("s_waitcnt lgkmcnt(0)")
        e("s_sub_u32 s96, s96, s98")
        e("s_cmp_lt_u32 s96, %d" % P["padto"])
        e("s_cbranch_scc1 L_pad")
    dump_stamps(10)
    m.lab("L_end")
    e("s_endpgm")

    hdr = open("cdna_kernels/%s.s.ref" % NAME).read().split("; Override launch")[0]
    out = hdr
    out += "; @launch grid=(256,1,1) block=(320,1,1) lds=%d\n" % P["lds"]
    out += '.amdgcn_target "amdgcn-amd-amdhsa--gfx950"\n.text\n.globl %s_kernel\n.p2align 8\n.type %s_kernel,@function\n%s_kernel:\n' % (NAME, NAME, NAME)
    out += "\n".join(m.L) + "\n"
    out += """.section .rodata,"a"
.p2align 6
.amdhsa_kernel %s_kernel
  .amdhsa_next_free_vgpr 256
  .amdhsa_next_free_sgpr 102
  .amdhsa_accum_offset 256
  .amdhsa_group_segment_fixed_size 0
  .amdhsa_kernarg_size 112
  .amdhsa_user_sgpr_count 2
  .amdhsa_user_sgpr_kernarg_segment_ptr 1
  .amdhsa_system_sgpr_workgroup_id_x 1
.end_amdhsa_kernel
""" % NAME
    return out


if __name__ == "__main__":
    kw = {}
    outp = sys.argv[1]
    for a in sys.argv[2:]:
        k, v = a.split("=")
        kw[k] = int(v) if v.lstrip("-").isdigit() else v
    open(outp, "w").write(gen(**kw))
```

```python
import sys

NAME = "gated_mix__sliding_block_cached__sliding_block_cached__decode"

WS_EPOCH = 0x0
WS_ML = 0x10000
WS_Q = 0x20000
WS_F = 0x40000
WS_QB = 0x60000
WS_O = 0x80000
WS_STAMP = 0x300000
TB = 10
TM = (1 << TB) - 1

L_QP = 0x0
L_Q = 0x800
L_MX = 0xC00
L_CNT = 0xC40
L_LOC = 0xC44
L_LS = 0xC80
L_OP = 0x1000

DEF = dict(
    stamps=0, window=6, nv_before=11, ldflag="nt", lds=90112, spin=200000,
    nfast=12, wo_win=10, swz=1, wo_early=0, n_b3=2, tlbwarm=0, omask=1, osleep=0, fsleep=0, fwait=7, spt=0, ptflag="sc1", n_late=0, ptrig=-1, fdepth=1, odepth=2, fpre=1, lag=8, b2pos=16, n_qk=0, c_lag=1,
)


class Em:
    def __init__(self):
        self.L = []
        self.q = []

    def e(self, s):
        self.L.append("    " + s)

    def lab(self, s):
        self.L.append(s + ":")

    def c(self, s):
        self.L.append("    ; " + s)

    def vm(self, name, s):
        self.e(s)
        self.q.append(name)

    def wait(self, name):
        if name not in self.q:
            return
        i = self.q.index(name)
        n = len(self.q) - 1 - i
        self.e("s_waitcnt vmcnt(%d)" % n)
        self.q = self.q[i + 1:]

    def window(self, w):
        if w and len(self.q) >= w:
            self.wait(self.q[len(self.q) - w])


def vr(a, n=1):
    return "v%d" % a if n == 1 else "v[%d:%d]" % (a, a + n - 1)


def sp(a):
    return "s[%d:%d]" % (a, a + 1)


DPPALL = "row_mask:0xf bank_mask:0xf"


def gen(**kw):
    P = dict(DEF)
    P.update(kw)
    W = P["window"]
    FL = P["ldflag"]
    ST = P["stamps"]
    m = Em()
    e = m.e

    sX = 4
    sPC = 6
    sK, sV, sWQ, sWO = 8, 10, 12, 14
    sGATE, sOUT, sDBG, sWS = 16, 18, 20, 22
    sKVH, sBR, sJ, sWAVE, sGRP = 24, 25, 26, 27, 28
    sT0, sT1, sT2 = 29, 30, 31
    sTAG, sTM, sMASK, sSPIN = 32, 33, 34, 35
    sSC = 36
    sL2E = 38
    sLOC = 40
    sSAVE = 42
    sHI = 50
    sSTAMP = 70

    def stamp(idx):
        if ST:
            e("s_memrealtime s[%d:%d]" % (sSTAMP + 2 * idx, sSTAMP + 2 * idx + 1))

    def dump_stamps(n):
        if not ST:
            return
        e("s_waitcnt lgkmcnt(0)")
        if P.get("late_dump", 1):
            lab = "L_ld%d" % len(m.L)
            m.lab(lab)
            e("s_sleep 8")
            e("s_memrealtime s[44:45]")
            e("s_waitcnt lgkmcnt(0)")
            e("s_sub_u32 s44, s44, s%d" % sSTAMP)
            e("s_cmp_lt_u32 s44, 2000")
            e("s_cbranch_scc1 " + lab)
        e("s_mov_b64 exec, 1")
        for i in range(n):
            e("v_mov_b32 v%d, s%d" % (8 + i, sSTAMP + 2 * i))
        for i in range(n, 16):
            e("v_mov_b32 v%d, 0" % (8 + i))
        e("s_lshl_b32 s%d, s2, 3" % sT0)
        e("s_add_u32 s%d, s%d, s%d" % (sT0, sT0, sWAVE))
        e("s_lshl_b32 s%d, s%d, 6" % (sT0, sT0))
        e("s_add_u32 s%d, s%d, 0x%x" % (sT0, sT0, WS_STAMP))
        e("v_mov_b32 v1, s%d" % sT0)
        for i in range(4):
            e("global_store_dwordx4 v1, v[%d:%d], %s offset:%d" % (8 + 4 * i, 11 + 4 * i, sp(sWS), 16 * i))

    def make_tags(v):
        e("s_add_u32 s%d, s%d, 0x9E3779B9" % (sTAG, sTAG))
        for k, sh in enumerate((0, 10, 20, 22)):
            e("s_bfe_u32 s%d, s%d, 0x%x" % (sT0, sTAG, (TB << 16) | sh))
            e("v_mov_b32 v%d, s%d" % (v + k, sT0))
        e("s_mov_b32 s%d, 0x%x" % (sTM, 0xffffffff ^ TM))

    def allreduce_groups(v, tmp, op):
        e("v_mov_b32 v%d, v%d" % (tmp, v))
        e("s_nop 1")
        e("v_permlane32_swap_b32 v%d, v%d" % (v, tmp))
        e("%s v%d, v%d, v%d" % (op, v, v, tmp))
        e("v_mov_b32 v%d, v%d" % (tmp, v))
        e("s_nop 1")
        e("v_permlane16_swap_b32 v%d, v%d" % (v, tmp))
        e("%s v%d, v%d, v%d" % (op, v, v, tmp))

    def row_allreduce(v, op):
        for r in (8, 4, 2, 1):
            e("s_nop 1")
            e("%s_dpp v%d, v%d, v%d row_ror:%d %s" % (op, v, v, v, r, DPPALL))

    def sum4_and_tag(t, tg, dst, rnd=False):
        for k in (0, 2):
            e("v_pk_add_f32 %s, %s, %s" % (vr(t + k, 2), vr(t + k, 2), vr(t + 4 + k, 2)))
            e("v_pk_add_f32 %s, %s, %s" % (vr(t + 8 + k, 2), vr(t + 8 + k, 2), vr(t + 12 + k, 2)))
        for k in (0, 2):
            e("v_pk_add_f32 %s, %s, %s" % (vr(t + k, 2), vr(t + k, 2), vr(t + 8 + k, 2)))
        if rnd:
            for k in range(4):
                e("v_add_u32 v%d, 0x%x, v%d" % (t + k, 1 << (TB - 1), t + k))
        if tg:
            for k in range(4):
                e("v_and_or_b32 v%d, v%d, s%d, v%d" % (dst + k, t + k, sTM, tg[k]))

    def check_embedded(u, n, tg, acc):
        for k in range(n):
            e("v_xor_b32 v%d, v%d, v%d" % (u + k, u + k, tg + (k & 3)))
        e("v_or3_b32 v%d, v%d, v%d, v%d" % (acc, u, u + 1, u + 2))
        k = 3
        while k < n:
            if k + 1 < n:
                e("v_or3_b32 v%d, v%d, v%d, v%d" % (acc, acc, u + k, u + k + 1))
                k += 2
            else:
                e("v_or_b32 v%d, v%d, v%d" % (acc, acc, u + k))
                k += 1
        e("v_and_b32 v%d, 0x%x, v%d" % (acc, TM, acc))
        e("v_cmp_ne_u32 vcc, 0, v%d" % acc)

    def store_loc(name, text):
        e("s_cmp_lg_u32 s%d, 0" % sLOC)
        e("s_cbranch_scc1 L_wt_" + name)
        e(text)
        e("s_branch L_sd_" + name)
        m.lab("L_wt_" + name)
        e(text + " sc1")
        m.lab("L_sd_" + name)
        m.q.append(name)

    e("s_and_b32 s%d, s2, 8" % sT0)
    e("s_mul_i32 s%d, s%d, 5" % (sT0, sT0))
    e("s_load_dwordx8 s[8:15], s[0:1], s%d offset:0x8" % sT0)
    e("s_load_dwordx2 %s, s[0:1], 0" % sp(sX))
    stamp(0)
    e("v_readfirstlane_b32 s%d, v0" % sWAVE)
    e("s_cmpk_ge_u32 s2, 0x100")
    e("s_cbranch_scc1 L_end")
    e("v_and_b32 v4, 15, v0")
    e("s_and_b32 s%d, s2, 7" % sKVH)
    e("s_cmpk_lt_u32 s%d, 0x100" % sWAVE)
    e("s_cbranch_scc1 L_comp")
    e("s_getpc_b64 %s" % sp(sPC))
    m.lab("L_pc")
    e("v_lshlrev_b32 v5, 7, v0")
    e("v_min_u32 v5, L_end-L_pc+0x8000, v5")
    e("s_sub_u32 s%d, s%d, 0x8000" % (sPC, sPC))
    e("s_subb_u32 s%d, s%d, 0" % (sPC + 1, sPC + 1))
    e("global_load_dword v6, v5, %s %s" % (sp(sPC), P.get("cpflag", "")))
    e("s_branch L_comm")
    m.lab("L_comp")

    vOK, vOV, vOO, vOX = 6, 7, 8, 9
    vMK = 10
    vMP = 14
    vAD = 16
    vZERO, vONE = 18, 19
    vA_OW, vA_OR, vA_OG, vA_OP = 20, 21, 22, 23
    vX = 24
    vTG = 24
    vQ = 28
    vACC = 32
    vT = 40
    vS = 56
    vWQ = 72
    vAX = 104
    vWO = 104
    vK = 136
    vVregs = [200 + 4 * i for i in range(14)] + [vWQ + 0, vWQ + 4]
    vD = [vWQ + 8 + 4 * i for i in range(4)]
    vA_QP, vA_W, vA_H, vMH = vWQ + 24, vWQ + 25, vWQ + 26, vWQ + 27

    e("s_lshr_b32 s%d, s2, 6" % sT1)
    e("s_lshl2_add_u32 s%d, s%d, s%d" % (sT0, sKVH, sT1))
    e("s_and_b32 s%d, s2, 48" % sT1)
    e("v_lshrrev_b32 v6, 4, v0")
    e("v_lshl_or_b32 v5, s%d, 4, v4" % sT0)
    e("v_add_u32 v6, s%d, v6" % sT1)
    e("s_movk_i32 s%d, 0x2000" % sT1)
    e("v_lshlrev_b32 v%d, 4, v6" % vOX)
    e("v_lshl_or_b32 v5, v6, 12, v5")
    e("v_lshlrev_b32 v%d, 4, v5" % vT)
    for i in range(1, 8):
        e("v_add_u32 v%d, s%d, v%d" % (vT + i, sT1, vT + i - 1))
    e("s_waitcnt lgkmcnt(0)")
    m.vm("x", "global_load_dwordx4 %s, v%d, %s %s" % (vr(vX, 4), vOX, sp(sX), P.get("xflag", "")))
    for i in range(8):
        m.vm("wq%d" % i, "global_load_dwordx4 %s, v%d, %s %s" % (vr(vWQ + 4 * i, 4), vT + i, sp(sWQ), FL))
    m.lab("L_first")
    stamp(1)

    def decode():
        e("s_load_dwordx8 s[16:23], s[0:1], 80")
        if P.get("padto"):
            e("s_memrealtime s[98:99]")
        e("v_lshrrev_b32 v2, 6, v0")
        e("v_and_b32 v1, 63, v0")
        e("v_bfe_u32 v3, v0, 4, 2")
        e("s_lshr_b32 s%d, s%d, 6" % (sWAVE, sWAVE))
        e("s_bfe_u32 s%d, s2, 0x10003" % sBR)
        e("s_lshr_b32 s%d, s2, 4" % sJ)
        e("s_lshl1_add_u32 s%d, s%d, s%d" % (sGRP, sKVH, sBR))

    decode()
    e("s_lshl_b32 s%d, s%d, 8" % (sT0, sT0))
    e("s_lshl_b32 s%d, s%d, 24" % (sT1, sKVH))
    e("s_lshl_b32 s%d, s%d, 12" % (sT2, sJ))
    e("s_add_u32 s%d, s%d, s%d" % (sT1, sT1, sT2))
    e("s_add_u32 s%d, s%d, 0xF00000" % (sT1, sT1))
    e("v_bfe_u32 v%d, v1, 2, 2" % vOK)
    e("v_lshlrev_b32 v%d, 8, v%d" % (vOK, vOK))
    e("v_lshl_add_u32 v%d, v3, 6, v%d" % (vOK, vOK))
    e("v_and_b32 v5, 3, v1")
    e("v_lshl_add_u32 v%d, v5, 4, v%d" % (vOK, vOK))
    e("v_lshl_add_u32 v%d, v2, 10, v%d" % (vOK, vOK))
    e("v_add_u32 v%d, s%d, v%d" % (vOK, sT1, vOK))
    e("v_lshlrev_b32 v%d, 4, v0" % vOV)
    e("v_add_u32 v%d, s%d, v%d" % (vOV, sT1, vOV))
    e("s_lshl_b32 s%d, s%d, 9" % (sT0, sT0))
    e("s_and_b32 s%d, s%d, 3" % (sT1, sJ))
    e("s_lshl_b32 s%d, s%d, 8" % (sT1, sT1))
    e("s_add_u32 s%d, s%d, s%d" % (sT0, sT0, sT1))
    e("v_and_b32 v5, 1, v3")
    e("v_lshlrev_b32 v%d, 11, v5" % vOO)
    e("v_lshrrev_b32 v5, 1, v3")
    e("v_lshl_add_u32 v%d, v5, 10, v%d" % (vOO, vOO))
    e("v_lshl_add_u32 v%d, v2, 15, v%d" % (vOO, vOO))
    e("v_lshl_add_u32 v%d, v4, 4, v%d" % (vOO, vOO))
    e("v_add_u32 v%d, s%d, v%d" % (vOO, sT0, vOO))
    e("s_waitcnt lgkmcnt(0)")
    e("s_load_dword s%d, %s, 0x%x" % (sTAG, sp(sWS), WS_EPOCH))

    def swz(i):
        return (i << 16) | (((i * P["swz"]) & 15) << 12)

    nad = [0]

    def ld_x(name, dst, off, const, base):
        if const:
            a = vAD + (nad[0] & 1)
            nad[0] += 1
            e("v_xor_b32 v%d, 0x%x, v%d" % (a, const, off))
        else:
            a = off
        m.vm(name, "global_load_dwordx4 %s, v%d, %s %s" % (vr(dst, 4), a, sp(base), FL))

    def ld_k(i):
        ld_x("k%d" % i, vK + 4 * i, vOK, swz(i), sK)

    def ld_v(i):
        ld_x("v%d" % i, vVregs[i], vOV, swz(i), sV)

    def ld_wo(i):
        ld_x("wo%d" % i, vWO + 4 * i, vOO, i << 12, sWO)

    lag = P["lag"]
    KS = [("k", i) for i in range(16)]
    VS = [("v", i) for i in range(16)]
    WS_ = [("wo", i) for i in range(8)]
    rest = KS[:lag] + [x for p in zip(KS[lag:], VS[:16 - lag]) for x in p] + WS_[:P["wo_early"]] + VS[16 - lag:] + WS_[P["wo_early"]:]

    def ld_next():
        kind, i = rest.pop(0)
        {"k": ld_k, "v": ld_v, "wo": ld_wo}[kind](i)

    def paced(n):
        for _ in range(n):
            m.window(W)
            ld_next()

    m.c("masks")
    e("v_and_b32 v5, 1, v1")
    e("v_lshlrev_b32 v5, 4, v5")
    e("s_mov_b32 s%d, 0xffff" % sT0)
    e("v_lshlrev_b32 v5, v5, s%d" % sT0)
    e("v_bfe_u32 v%d, v1, 1, 2" % (vT + 8))
    for d in range(4):
        e("v_cmp_eq_u32 vcc, %d, v%d" % (d, vT + 8))
        e("s_nop 1")
        e("v_cndmask_b32 v%d, 0, v5, vcc" % (vMK + d))
    e("v_or_b32 v%d, v%d, v%d" % (vMP + 0, vMK + 0, vMK + 2))
    e("v_or_b32 v%d, v%d, v%d" % (vMP + 1, vMK + 1, vMK + 3))
    e("s_mov_b32 s%d, 0x3db504f3" % sSC)
    e("s_mov_b32 s%d, 0x3db504f3" % (sSC + 1))
    e("s_mov_b32 s%d, 0x3fb8aa3b" % sL2E)
    e("s_mov_b32 s%d, 0x3fb8aa3b" % (sL2E + 1))
    e("s_mov_b32 s%d, 0xffff0000" % sMASK)
    e("s_mov_b32 s%d, 0x01000100" % sT0)
    e("s_mov_b32 s%d, 0x03020302" % sT1)
    e("v_mov_b32 v%d, 0" % vZERO)
    e("v_mov_b32 v%d, 1" % vONE)

    m.c("q projection")
    m.wait("x")
    for i in range(8):
        e("v_perm_b32 v%d, v%d, v%d, s%d" % (vT + 8 + i, vX + i // 2, vX + i // 2, sT1 if i & 1 else sT0))
    for i in range(8):
        for d in range(4):
            e("v_and_b32 v%d, v%d, v%d" % (vAX + 4 * i + d, vT + 8 + i, vMK + d))
    for i in range(8):
        m.wait("wq%d" % i)
        e("v_mfma_f32_16x16x32_bf16 %s, %s, %s, %s" % (vr(vACC, 4), vr(vAX + 4 * i, 4), vr(vWQ + 4 * i, 4), "0" if i == 0 else vr(vACC, 4)))
        if len(m.q) < W:
            ld_next()
    stamp(2)
    e("v_and_b32 v%d, 1, v3" % vA_QP)
    e("v_lshlrev_b32 v%d, 4, v%d" % (vA_QP, vA_QP))
    e("v_lshl_add_u32 v%d, v4, 5, v%d" % (vA_QP, vA_QP))
    e("v_lshl_add_u32 v%d, v2, 9, v%d" % (vA_QP, vA_QP))
    e("s_mov_b32 exec_hi, 0")
    e("s_nop 2")
    e("ds_write_b128 v%d, %s offset:%d" % (vA_QP, vr(vACC, 4), L_QP))
    e("s_mov_b64 exec, -1")
    e("s_waitcnt lgkmcnt(0)")
    e("s_barrier")
    paced(2)
    make_tags(vTG)
    paced(1)

    m.c("addresses used later")
    e("v_lshlrev_b32 v%d, 11, v2" % vA_OW)
    e("v_lshl_add_u32 v%d, v1, 4, v%d" % (vA_OW, vA_OW))
    e("v_and_b32 v5, 1, v1")
    e("v_lshlrev_b32 v%d, 10, v5" % vA_OR)
    e("v_lshl_add_u32 v%d, v2, 8, v%d" % (vA_OR, vA_OR))
    e("v_bfe_u32 v5, v1, 1, 4")
    e("v_lshl_add_u32 v%d, v5, 4, v%d" % (vA_OR, vA_OR))
    paced(1)
    e("s_lshl_b32 s%d, s%d, 15" % (sT0, sGRP))
    e("s_add_u32 s%d, s%d, 0x%x" % (sT0, sT0, WS_O))
    e("s_lshl_b32 s%d, s%d, 7" % (sT1, sJ))
    e("s_add_u32 s%d, s%d, s%d" % (sT1, sT1, sT0))
    e("v_bfe_u32 v%d, v1, 3, 2" % vA_OG)
    e("v_lshl_add_u32 v%d, v2, 2, v%d" % (vA_OG, vA_OG))
    e("v_lshlrev_b32 v%d, 11, v%d" % (vA_OG, vA_OG))
    e("v_and_b32 v5, 7, v1")
    e("v_lshl_add_u32 v%d, v5, 4, v%d" % (vA_OG, vA_OG))
    e("v_add_u32 v%d, s%d, v%d" % (vA_OG, sT1, vA_OG))
    e("s_and_b32 s%d, s%d, 12" % (sT1, sJ))
    e("s_lshl_b32 s%d, s%d, 11" % (sT1, sT1))
    e("s_add_u32 s%d, s%d, s%d" % (sT1, sT1, sT0))
    e("v_add_u32 v%d, s%d, v%d" % (vA_OP, sT1, vA_OW))
    e("s_mov_b32 s%d, 0" % sHI)
    e("s_mov_b32 s%d, -1" % (sHI + 1))
    e("s_lshl_b32 s%d, s%d, 10" % (sT0, sGRP))
    e("s_add_u32 s%d, s%d, 0x%x" % (sT0, sT0, WS_ML))
    e("s_lshl_b32 s%d, s%d, 4" % (sT1, sJ))
    e("s_add_u32 s%d, s%d, s%d" % (sT1, sT1, sT0))
    e("v_lshlrev_b32 v5, 8, v2")
    e("v_add_u32 v5, s%d, v5" % sT1)
    e("v_cndmask_b32 v%d, v%d, v5, %s" % (vA_OG, vA_OG, sp(sHI)))
    e("s_lshr_b32 s%d, s%d, 2" % (sT1, sJ))
    e("s_lshl_b32 s%d, s%d, 8" % (sT1, sT1))
    e("s_add_u32 s%d, s%d, s%d" % (sT1, sT1, sT0))
    e("v_lshrrev_b32 v%d, 3, v1" % vA_W)
    e("v_and_b32 v5, 1, v1")
    e("v_lshl_add_u32 v%d, v5, 3, v%d" % (vA_W, vA_W))
    e("v_lshlrev_b32 v%d, 4, v%d" % (vA_W, vA_W))
    e("v_add_u32 v%d, s%d, v%d" % (vA_W, sT1, vA_W))
    e("v_lshlrev_b32 v%d, 4, v2" % vA_H)

    n_total = 40
    while n_total - len(rest) - len(m.q) < P["b2pos"]:
        paced(1)
    while len(m.q) < P["nv_before"] and rest:
        ld_next()
    stamp(3)
    e("s_barrier")
    e("v_lshlrev_b32 v5, 4, v1")
    e("ds_read_b128 %s, v5 offset:%d" % (vr(vQ, 4), L_Q))
    e("ds_read_b32 v%d, v%d offset:%d" % (vT, vZERO, L_LOC))
    stamp(4)
    e("s_waitcnt lgkmcnt(0)")
    e("v_readfirstlane_b32 s%d, v%d" % (sLOC, vT))

    late = []
    for _ in range(P["n_late"]):
        late.insert(0, rest.pop())
    WIN = P["wo_win"]

    def more(n=1):
        for _ in range(n):
            if rest:
                ld_next()

    def feed_wait(kind, i):
        name = "%s%d" % (kind, i)
        while (kind, i) in rest:
            m.window(WIN)
            ld_next()
        while rest and name in m.q and m.q.index(name) > 0:
            m.window(WIN)
            if len(m.q) < WIN:
                ld_next()
        m.wait(name)

    def top_up():
        while rest and len(m.q) < WIN:
            ld_next()

    m.c("scores: QK, round to bf16, scale, round to bf16, running max")
    vM, vM2, vA1, vA2 = vT + 8, vT + 10, vT + 12, vT + 13
    e("v_lshrrev_b32 v%d, 2, v4" % vA2)
    e("v_lshlrev_b32 v%d, 4, v%d" % (vA2, vA2))
    e("v_lshl_add_u32 v%d, v2, 2, v%d" % (vA1, vA2))
    qp = ["[0,0,0,0]", "[1,1,1,1]", "[2,2,2,2]", "[3,3,3,3]"]

    def round4(b):
        for i in (4 * b, 4 * b + 2):
            e("v_cvt_pk_bf16_f32 v%d, v%d, v%d" % (vT + (i & 2) // 2, vS + i, vS + i + 1))
        for i in (4 * b, 4 * b + 2):
            e("v_lshlrev_b32 v%d, 16, v%d" % (vS + i, vT + (i & 2) // 2))
            e("v_and_b32 v%d, s%d, v%d" % (vS + i + 1, sMASK, vT + (i & 2) // 2))

    for b in range(4):
        for t in range(4):
            i = 4 * b + t
            feed_wait("k", i)
            e("v_mfma_f32_16x16x32_bf16 %s, %s, %s, 0" % (vr(vD[t], 4), vr(vK + 4 * i, 4), vr(vQ, 4)))
        n0 = len(m.L)
        top_up()
        more(P["n_qk"])
        used = len(m.L) - n0
        if used < 5:
            e("s_nop %d" % (4 - used))
        for u in range(4):
            for t in range(4):
                i = 4 * b + t
                if u == 0:
                    e("v_mov_b32_dpp v%d, v%d quad_perm:%s %s" % (vS + i, vD[t], qp[0], DPPALL))
                else:
                    e("v_add_f32_dpp v%d, v%d, v%d quad_perm:%s %s" % (vS + i, vD[t] + u, vS + i, qp[u], DPPALL))
        round4(b)
        for i in (4 * b, 4 * b + 2):
            e("v_pk_mul_f32 %s, %s, %s" % (vr(vS + i, 2), vr(vS + i, 2), sp(sSC)))
        round4(b)
        if b == 0:
            e("v_max3_f32 v%d, v%d, v%d, v%d" % (vM, vS, vS + 1, vS + 2))
            e("v_max_f32 v%d, v%d, v%d" % (vM, vM, vS + 3))
        else:
            e("v_max3_f32 v%d, v%d, v%d, v%d" % (vM, vM, vS + 4 * b, vS + 4 * b + 1))
            e("v_max3_f32 v%d, v%d, v%d, v%d" % (vM, vM, vS + 4 * b + 2, vS + 4 * b + 3))
    allreduce_groups(vM, vM2, "v_max_f32")
    e("ds_write_b32 v%d, v%d offset:%d" % (vA1, vM, L_MX))
    e("s_waitcnt lgkmcnt(0)")
    e("s_barrier")
    e("ds_read_b128 %s, v%d offset:%d" % (vr(vT, 4), vA2, L_MX))
    e("ds_read_b128 %s, v%d offset:%d" % (vr(vT + 4, 4), vA_H, L_MX))
    more(P["n_b3"])
    e("s_waitcnt lgkmcnt(0)")
    e("v_max3_f32 v%d, v%d, v%d, v%d" % (vM, vT, vT + 1, vT + 2))
    e("v_max3_f32 v%d, v%d, v%d, v%d" % (vMH, vT + 4, vT + 5, vT + 6))
    e("v_max_f32 v%d, v%d, v%d" % (vM, vM, vT + 3))
    e("v_max_f32 v%d, v%d, v%d" % (vMH, vMH, vT + 7))
    e("v_mul_f32 v%d, s%d, v%d" % (vM2, sL2E, vM))
    e("v_mul_f32 v%d, s%d, v%d" % (vM2 + 1, sL2E, vM))
    stamp(5)
    m.c("exp, P operands and PV, software pipelined over pairs of key sets")
    vPA = vK
    vL = vT

    def stA(p):
        i = 2 * p
        e("v_pk_fma_f32 %s, %s, %s, %s neg_lo:[0,0,1] neg_hi:[0,0,1]" % (vr(vS + i, 2), vr(vS + i, 2), sp(sL2E), vr(vM2, 2)))
        e("v_exp_f32 v%d, v%d" % (vS + i, vS + i))
        e("v_exp_f32 v%d, v%d" % (vS + i + 1, vS + i + 1))

    def stB(p):
        for i in (2 * p, 2 * p + 1):
            e("v_cvt_pk_bf16_f32 v%d, v%d, v%d" % (vPA + 2 * i, vS + i, vS + i))
        for i in (2 * p, 2 * p + 1):
            e("v_and_b32 v%d, v%d, v%d" % (vPA + 2 * i + 1, vPA + 2 * i, vMP + 1))
            e("v_and_b32 v%d, v%d, v%d" % (vPA + 2 * i, vPA + 2 * i, vMP + 0))
        if p == 1:
            e("v_pk_add_f32 %s, %s, %s" % (vr(vL, 2), vr(vS, 2), vr(vS + 2, 2)))
        elif p > 1:
            e("v_pk_add_f32 %s, %s, %s" % (vr(vL, 2), vr(vL, 2), vr(vS + 2 * p, 2)))

    def stC(p):
        for i in (2 * p, 2 * p + 1):
            feed_wait("v", i)
            for w in range(2):
                e("v_mfma_f32_16x16x16_bf16 %s, %s, %s, %s" % (vr(vACC + 4 * w, 4), vr(vPA + 2 * i, 2), vr(vVregs[i] + 2 * w, 2), "0" if i == 0 else vr(vACC + 4 * w, 4)))
            top_up()

    cl = P["c_lag"]
    def capture(fn, *a):
        keep = m.L
        m.L = []
        fn(*a)
        got, m.L = m.L, keep
        return got

    def weave(valu, mf):
        chunks, cur = [], []
        for ln in mf:
            cur.append(ln)
            if "v_mfma" in ln:
                chunks.append(cur)
                cur = []
        if cur:
            chunks[-1].extend(cur)
        n = len(chunks)
        per = -(-len(valu) // n)
        for k in range(n):
            m.L.extend(chunks[k])
            m.L.extend(valu[k * per:(k + 1) * per])

    stA(0)
    for p in range(8):
        va = capture(stA, p + 1) if p + 1 < 8 else []
        vb = capture(stB, p)
        if p - cl >= 0:
            if cl == 1:
                m.L.extend(va[:2] if va else ["    s_nop 1"])
                va = va[2:]
            weave(va + vb, capture(stC, p - cl))
        else:
            m.L.extend(va + vb)
    e("v_add_f32 v%d, v%d, v%d" % (vL, vL, vL + 1))
    allreduce_groups(vL, vL + 1, "v_add_f32")
    e("ds_write_b32 v%d, v%d offset:%d" % (vA1, vL, L_LS))
    for p in range(max(0, 8 - cl), 8):
        stC(p)
    while rest:
        ld_next()
    stamp(6)
    e("s_nop 6")
    e("ds_write_b128 v%d, %s offset:%d" % (vA_OW, vr(vACC, 4), L_OP))
    e("ds_write_b128 v%d, %s offset:%d" % (vA_OW, vr(vACC + 4, 4), L_OP + 1024))
    e("s_mov_b64 exec, 1")
    e("ds_add_u32 v%d, v%d offset:%d" % (vZERO, vONE, L_CNT))
    e("s_mov_b32 exec_lo, -1")
    e("s_mov_b32 exec_hi, 1")
    vLS = vS + 12
    m.lab("L_cnt")
    e("ds_read_b32 v5, v%d offset:%d" % (vZERO, L_CNT))
    for w in range(4):
        e("ds_read_b128 %s, v%d offset:%d" % (vr(vT + 4 * w, 4), vA_OR, L_OP + 2048 * w))
    e("ds_read_b128 %s, v%d offset:%d" % (vr(vLS, 4), vA_H, L_LS))
    e("s_waitcnt lgkmcnt(0)")
    e("v_cmp_ne_u32 vcc, 4, v5")
    e("s_cbranch_vccnz L_cnt")
    e("v_pk_add_f32 %s, %s, %s" % (vr(vLS, 2), vr(vLS, 2), vr(vLS + 2, 2)))
    sum4_and_tag(vT, None, vT)
    e("v_add_f32 v%d, v%d, v%d" % (vLS, vLS, vLS + 1))
    e("v_cndmask_b32 v%d, v%d, v%d, %s" % (vT, vT, vMH, sp(sHI)))
    e("v_cndmask_b32 v%d, v%d, v%d, %s" % (vT + 1, vT + 1, vLS, sp(sHI)))
    for k in (2, 3, 0, 1):
        e("v_and_or_b32 v%d, v%d, s%d, v%d" % (vT + k, vT + k, sTM, vTG + k))
    store_loc("o", "global_store_dwordx4 v%d, %s, %s" % (vA_OG, vr(vT, 4), sp(sWS)))
    stamp(7)
    e("s_mov_b64 exec, -1")
    rest.extend(late)
    while rest:
        ld_next()
    if ST and P.get("wostamp"):
        m.wait("wo7")
        stamp(10)
    if P["ptrig"] >= 0:
        m.wait("wo%d" % P["ptrig"])
    vO = vS
    vR = vK + 0
    sM = [44, 46, 48]
    e("s_mov_b32 s%d, 0" % sSPIN)
    for h in range(3):
        e("s_mov_b64 %s, -1" % sp(sM[h]))
    if P["odepth"] > 1:
        e("global_load_dwordx4 %s, v%d, %s sc1" % (vr(vR + 8, 4), vA_W, sp(sWS)))
        e("global_load_dwordx4 %s, v%d, %s sc1" % (vr(vR, 4), vA_OP, sp(sWS)))
        e("global_load_dwordx4 %s, v%d, %s offset:1024 sc1" % (vr(vR + 4, 4), vA_OP, sp(sWS)))
        e("s_waitcnt vmcnt(3)")
    m.lab("L_opoll")
    if P["osleep"]:
        e("s_sleep %d" % P["osleep"])
    e("s_mov_b64 exec, %s" % sp(sM[2]))
    e("global_load_dwordx4 %s, v%d, %s sc1" % (vr(vR + 8, 4), vA_W, sp(sWS)))
    e("s_mov_b64 exec, %s" % sp(sM[0]))
    e("global_load_dwordx4 %s, v%d, %s sc1" % (vr(vR, 4), vA_OP, sp(sWS)))
    e("s_mov_b64 exec, %s" % sp(sM[1]))
    e("global_load_dwordx4 %s, v%d, %s offset:1024 sc1" % (vr(vR + 4, 4), vA_OP, sp(sWS)))
    e("s_mov_b64 exec, -1")
    e("s_add_u32 s%d, s%d, 1" % (sSPIN, sSPIN))
    e("s_waitcnt vmcnt(%d)" % (3 if P["odepth"] > 1 else 0))
    m.q = []
    for k in list(range(8, 12)) + list(range(8)):
        e("v_xor_b32 v%d, v%d, v%d" % (vO + k, vR + k, vTG + (k & 3)))
    vM_, vL_, vE, vX1, vX2 = vO + 8, vO + 9, vT + 12, vT + 13, vT + 14
    e("v_max_f32_dpp v%d, v%d, v%d quad_perm:[1,0,3,2] %s" % (vX1, vM_, vM_, DPPALL))
    for h in range(3):
        e("v_or3_b32 v%d, v%d, v%d, v%d" % (vT + 8 + h, vO + 4 * h, vO + 4 * h + 1, vO + 4 * h + 2))
    e("v_max_f32_dpp v%d, v%d, v%d row_ror:8 %s" % (vX1, vX1, vX1, DPPALL))
    e("v_mov_b32 v%d, v%d" % (vX2, vX1))
    for h in range(3):
        e("v_bitop3_b32 v%d, v%d, v%d, s%d bitop3:0x54" % (vT + 8 + h, vT + 8 + h, vO + 4 * h + 3, sTM))
    e("v_permlane16_swap_b32 v%d, v%d" % (vX1, vX2))
    e("v_max_f32 v%d, v%d, v%d" % (vX1, vX1, vX2))
    e("v_mov_b32 v%d, v%d" % (vX2, vX1))
    for h in range(3):
        e("v_cmp_ne_u32 %s, 0, v%d" % (sp(sM[h]), vT + 8 + h))
    e("v_permlane32_swap_b32 v%d, v%d" % (vX1, vX2))
    e("v_max_f32 v%d, v%d, v%d" % (vX1, vX1, vX2))
    e("s_or_b64 %s, %s, %s" % (sp(sSAVE), sp(sM[0]), sp(sM[1])))
    e("v_sub_f32 v%d, v%d, v%d" % (vE, vM_, vX1))
    e("s_or_b64 %s, %s, %s" % (sp(sSAVE), sp(sSAVE), sp(sM[2])))
    e("v_mul_f32 v%d, s%d, v%d" % (vE, sL2E, vE))
    e("s_cbranch_scc0 L_ogot")
    e("s_cmp_lt_u32 s%d, %d" % (sSPIN, P["spin"]))
    e("s_cbranch_scc1 L_opoll")
    m.lab("L_ogot")
    e("v_exp_f32 v%d, v%d" % (vE, vE))
    stamp(8)
    e("s_nop 0")
    e("v_mul_f32 v%d, v%d, v%d" % (vX1, vE, vL_))
    for k in range(4):
        e("v_mul_f32_dpp v%d, v%d, v%d quad_perm:[0,0,2,2] %s" % (vO + k, vE, vO + k, DPPALL))
        if k == 2:
            e("v_add_f32_dpp v%d, v%d, v%d quad_perm:[1,0,3,2] %s" % (vX1, vX1, vX1, DPPALL))
    for k in range(4):
        e("v_fmac_f32_dpp v%d, v%d, v%d quad_perm:[1,1,3,3] %s" % (vO + k, vE, vO + 4 + k, DPPALL))
        if k == 1:
            e("v_add_f32_dpp v%d, v%d, v%d row_ror:8 %s" % (vX1, vX1, vX1, DPPALL))
    e("v_mov_b32 v%d, v%d" % (vX2, vX1))
    e("v_permlane32_swap_b32 v%d, v%d" % (vO + 0, vO + 1))
    e("v_permlane32_swap_b32 v%d, v%d" % (vO + 2, vO + 3))
    e("v_permlane32_swap_b32 v%d, v%d" % (vX1, vX2))
    e("v_add_f32 v%d, v%d, v%d" % (vO + 0, vO + 0, vO + 1))
    e("v_add_f32 v%d, v%d, v%d" % (vO + 2, vO + 2, vO + 3))
    e("v_add_f32 v%d, v%d, v%d" % (vX1, vX1, vX2))
    e("v_mov_b32 v%d, v%d" % (vX2, vX1))
    e("v_permlane16_swap_b32 v%d, v%d" % (vO + 0, vO + 2))
    e("v_add_f32 v%d, v%d, v%d" % (vO + 0, vO + 0, vO + 2))
    e("v_permlane16_swap_b32 v%d, v%d" % (vX1, vX2))
    e("v_add_f32 v%d, v%d, v%d" % (vX1, vX1, vX2))
    e("v_rcp_f32 v%d, v%d" % (vX1, vX1))
    e("v_add_f32_dpp v%d, v%d, v%d row_ror:8 %s" % (vO + 0, vO + 0, vO + 0, DPPALL))
    e("v_mul_f32 v%d, v%d, v%d" % (vO + 0, vO + 0, vX1))
    e("v_cvt_pk_bf16_f32 v%d, v%d, v%d" % (vO + 0, vO + 0, vO + 0))
    e("s_nop 1")
    vAI = vK + 32

    def build_ai(i):
        for d in range(4):
            e("v_and_b32_dpp v%d, v%d, v%d row_newbcast:%d %s" % (vAI + 4 * i + d, vO, vMK + d, i, DPPALL))

    build_ai(0)
    for i in range(8):
        if i < 7:
            build_ai(i + 1)
        else:
            e("s_nop 0")
        e("v_mfma_f32_16x16x32_bf16 %s, %s, %s, %s" % (vr(vACC, 4), vr(vAI + 4 * i, 4), vr(vWO + 4 * i, 4), "0" if i == 0 else vr(vACC, 4)))
    e("s_mov_b32 exec_hi, 0")
    e("s_nop 6")
    e("ds_write_b128 v%d, %s offset:%d" % (vA_QP, vr(vACC, 4), L_QP))
    e("s_waitcnt lgkmcnt(0)")
    e("s_barrier")
    stamp(9)
    dump_stamps(11)
    e("s_endpgm")

    m.q = []
    m.lab("L_comm")
    cA, cB, cC, cD = 7, 8, 9, 10
    cGS = 11
    cT = 12
    cQA, cQG, cML, cFP = 28, 29, 30, 31
    cU = 32
    cTG = 64
    cTQ = 68
    cOA, cFG, cOP = 69, 70, 71
    cPT = 72
    cFU = 84

    decode()
    e("v_mov_b32 v%d, 0" % cT)
    e("ds_write_b32 v%d, v%d offset:%d" % (cT, cT, L_CNT))
    e("v_lshlrev_b32 v%d, 4, v1" % cA)
    e("v_and_b32 v%d, 31, v1" % cC)
    e("v_lshlrev_b32 v%d, 4, v%d" % (cC, cC))
    e("s_lshl_b32 s%d, s%d, 13" % (sT0, sGRP))
    e("s_add_u32 s%d, s%d, 0x%x" % (sT0, sT0, WS_Q))
    e("s_lshl_b32 s%d, s%d, 9" % (sT1, sJ))
    e("s_add_u32 s%d, s%d, s%d" % (sT1, sT1, sT0))
    e("v_add_u32 v%d, s%d, v%d" % (cQA, sT1, cC))
    e("s_waitcnt lgkmcnt(0)")
    e("s_load_dword s%d, %s, 0x%x" % (sTAG, sp(sWS), WS_EPOCH))
    e("s_mov_b32 exec_hi, 0")
    e("global_load_dwordx4 %s, v%d, %s %s" % (vr(cPT, 4), cQA, sp(sWS), P.get("ptflag", "sc1")))
    if P["tlbwarm"]:
        e("s_lshl_b32 s%d, s%d, 24" % (sT1, sKVH))
        e("s_add_u32 s%d, s%d, 0xF00000" % (sT1, sT1))
        e("v_lshlrev_b32 v%d, 16, v1" % (cPT + 4))
        e("v_add_u32 v%d, s%d, v%d" % (cPT + 4, sT1, cPT + 4))
        e("s_lshl_b32 s%d, s%d, 2" % (sT1, sKVH))
        e("s_lshr_b32 s%d, s%d, 2" % (sT2, sJ))
        e("s_add_u32 s%d, s%d, s%d" % (sT1, sT1, sT2))
        e("s_lshl_b32 s%d, s%d, 17" % (sT1, sT1))
        e("v_lshlrev_b32 v%d, 16, v1" % (cPT + 5))
        e("v_add_u32 v%d, s%d, v%d" % (cPT + 5, sT1, cPT + 5))
        e("v_mov_b32 v%d, 0" % (cPT + 6))
        e("s_mov_b64 exec, 0x%x" % (0xffff if P["tlbwarm"] == 2 else 1))
        e("global_load_dword v%d, v%d, %s" % (cPT + 7, cPT + 4, sp(sK)))
        e("global_load_dword v%d, v%d, %s" % (cPT + 8, cPT + 4, sp(sV)))
        e("s_mov_b64 exec, 0x%x" % (3 if P["tlbwarm"] == 2 else 1))
        e("global_load_dword v%d, v%d, %s" % (cPT + 9, cPT + 5, sp(sWO)))
        e("s_mov_b64 exec, 1")
        e("global_load_dword v%d, v%d, %s" % (cPT + 10, cPT + 6, sp(sOUT)))
        e("global_load_dword v%d, v%d, %s" % (cPT + 11, cPT + 6, sp(sGATE)))
    e("s_mov_b64 exec, -1")
    e("v_lshrrev_b32 v%d, 2, v4" % cQG)
    e("v_lshlrev_b32 v%d, 11, v%d" % (cQG, cQG))
    e("v_lshl_add_u32 v%d, v3, 7, v%d" % (cQG, cQG))
    e("v_and_b32 v%d, 3, v1" % cT)
    e("v_lshl_add_u32 v%d, v%d, 5, v%d" % (cQG, cT, cQG))
    e("v_add_u32 v%d, s%d, v%d" % (cQG, sT0, cQG))
    e("v_add_u32 v%d, 0x%x, v%d" % (cD, WS_QB - WS_Q, cQA))
    e("s_mov_b32 s%d, 0x3fb8aa3b" % sL2E)
    e("s_mov_b32 s%d, 0xffff0000" % sMASK)
    e("s_getreg_b32 s%d, hwreg(HW_REG_XCC_ID, 0, 4)" % sT2)
    stamp(1)
    e("s_waitcnt lgkmcnt(0)")
    make_tags(cTG)
    e("v_and_b32 v%d, 0x%x, v%d" % (cTQ, TM & ~15, cTG + 3))
    e("v_or_b32 v%d, s%d, v%d" % (cTQ, sT2, cTQ))
    stamp(2)
    e("s_mov_b32 exec_hi, 0")
    e("s_barrier")
    for w in range(4):
        e("ds_read_b128 %s, v%d offset:%d" % (vr(cU + 4 * w, 4), cC, L_QP + 512 * w))
    e("s_waitcnt lgkmcnt(0)")
    sum4_and_tag(cU, [cTG, cTG + 1, cTG + 2, cTQ], cT + 8, rnd=True)
    e("global_store_dwordx4 v%d, %s, %s" % (cQA, vr(cT + 8, 4), sp(sWS)))
    if P.get("eagerb"):
        e("global_store_dwordx4 v%d, %s, %s sc1" % (cD, vr(cT + 8, 4), sp(sWS)))
    e("s_mov_b64 exec, -1")
    stamp(3)
    e("s_lshl_b32 s%d, s%d, 4" % (sT0, sGRP))
    e("s_add_u32 s%d, s%d, s%d" % (sT0, sT0, sJ))
    e("s_lshl_b32 s%d, s%d, 11" % (sT1, sT0))
    e("s_add_u32 s%d, s%d, 0x%x" % (sT1, sT1, WS_O))
    e("v_add_u32 v%d, s%d, v%d" % (cOP, sT1, cA))
    e("s_lshr_b32 s%d, s%d, 2" % (sT1, sT0))
    e("s_lshl_b32 s%d, s%d, 8" % (sT1, sT1))
    e("s_add_u32 s%d, s%d, 0x%x" % (sT1, sT1, WS_ML))
    e("v_lshlrev_b32 v%d, 4, v4" % cML)
    e("v_add_u32 v%d, s%d, v%d" % (cML, sT1, cML))
    e("s_and_b32 s%d, s%d, 3" % (sT0, sJ))
    e("s_lshl_b32 s%d, s%d, 6" % (sT0, sT0))
    e("s_lshl_b32 s%d, s%d, 5" % (sT1, sBR))
    e("s_add_u32 s%d, s%d, s%d" % (sT0, sT0, sT1))
    e("s_lshl_b32 s%d, s%d, 2" % (sT1, sKVH))
    e("s_add_u32 s%d, s%d, s%d" % (sT0, sT0, sT1))
    e("s_lshr_b32 s%d, s%d, 2" % (sT1, sJ))
    e("s_add_u32 s%d, s%d, s%d" % (sT0, sT0, sT1))
    e("s_lshl_b32 s%d, s%d, 9" % (sT0, sT0))
    e("s_add_u32 s%d, s%d, 0x%x" % (sT0, sT0, WS_F))
    e("v_add_u32 v%d, s%d, v%d" % (cFP, sT0, cC))
    e("s_lshl_b32 s%d, s%d, 4" % (sT0, sKVH))
    e("s_bfe_u32 s%d, s2, 0x40003" % sT1)
    e("s_add_u32 s%d, s%d, s%d" % (sT0, sT0, sT1))
    e("s_lshr_b32 s%d, s%d, 5" % (sT1, sT0))
    e("s_lshl_b32 s%d, s%d, 15" % (sT1, sT1))
    e("s_and_b32 s%d, s%d, 31" % (sT2, sT0))
    e("s_lshl_b32 s%d, s%d, 4" % (sT2, sT2))
    e("s_add_u32 s%d, s%d, s%d" % (sT1, sT1, sT2))
    e("s_add_u32 s%d, s%d, 0x%x" % (sT1, sT1, WS_F))
    e("v_lshlrev_b32 v%d, 9, v1" % cFG)
    e("v_add_u32 v%d, s%d, v%d" % (cFG, sT1, cFG))
    e("v_and_b32 v%d, 1, v3" % cOA)
    e("v_bfe_u32 v%d, v1, 3, 1" % cT)
    e("v_lshl_add_u32 v%d, v%d, 1, v%d" % (cOA, cT, cOA))
    e("v_lshlrev_b32 v%d, 1, v%d" % (cOA, cOA))
    e("s_lshl_b32 s%d, s%d, 3" % (sT0, sT0))
    e("v_add_u32 v%d, s%d, v%d" % (cOA, sT0, cOA))
    e("s_mov_b32 s%d, 0" % sSPIN)
    if P.get("d_noq"):
        e("s_branch L_gotq")
    m.lab("L_pollq")
    for rq in range(4):
        for hf in range(2):
            e("global_load_dwordx4 %s, v%d, %s offset:%d sc1" % (vr(cU + 8 * rq + 4 * hf, 4), cQG, sp(sWS), rq * 512 + hf * 16))
    e("s_add_u32 s%d, s%d, 1" % (sSPIN, sSPIN))
    e("s_waitcnt vmcnt(0)")
    for k in range(32):
        e("v_xor_b32 v%d, v%d, v%d" % (cU + k, cU + k, cTQ if (k & 3) == 3 else cTG + (k & 3)))
    e("v_or3_b32 v%d, v%d, v%d, v%d" % (cT + 1, cU + 3, cU + 7, cU + 11))
    e("v_or3_b32 v%d, v%d, v%d, v%d" % (cT + 1, cT + 1, cU + 15, cU + 19))
    e("v_or3_b32 v%d, v%d, v%d, v%d" % (cT + 1, cT + 1, cU + 23, cU + 27))
    e("v_or_b32 v%d, v%d, v%d" % (cT + 1, cT + 1, cU + 31))
    e("v_and_b32 v%d, -16, v%d" % (cT, cT + 1))
    rest3 = [cU + k for k in range(32) if (k & 3) != 3]
    for k in range(0, 24, 2):
        e("v_or3_b32 v%d, v%d, v%d, v%d" % (cT, cT, rest3[k], rest3[k + 1]))
    e("v_and_b32 v%d, 0x%x, v%d" % (cT, TM, cT))
    e("v_cmp_ne_u32 vcc, 0, v%d" % cT)
    e("s_cbranch_vccz L_gotq")
    e("s_cmp_lt_u32 s%d, %d" % (sSPIN, P["nfast"]))
    e("s_cbranch_scc1 L_pollq")
    e("v_xor_b32 v%d, 0x%x, v%d" % (cQG, WS_QB ^ WS_Q, cQG))
    e("s_cmp_lg_u32 s%d, %d" % (sSPIN, P["nfast"]))
    e("s_cbranch_scc1 L_nswq")
    e("s_mov_b32 exec_hi, 0")
    e("global_store_dwordx4 v%d, %s, %s sc1" % (cD, vr(cT + 8, 4), sp(sWS)))
    e("s_mov_b64 exec, -1")
    m.lab("L_nswq")
    e("s_cmp_lt_u32 s%d, %d" % (sSPIN, P["spin"]))
    e("s_cbranch_scc1 L_pollq")
    m.lab("L_gotq")
    e("v_and_b32 v%d, 15, v%d" % (cT + 1, cT + 1))
    e("v_cmp_ne_u32 vcc, 0, v%d" % (cT + 1))
    for k in range(3, 32, 4):
        e("v_and_b32 v%d, -16, v%d" % (cU + k, cU + k))
    e("s_or_b32 s%d, vcc_lo, vcc_hi" % sLOC)
    if P.get("force_wt"):
        e("s_mov_b32 s%d, 1" % sLOC)
    e("s_cmp_eq_u32 s%d, 0" % sLOC)
    e("s_cbranch_scc1 L_qloc")
    e("s_mov_b32 exec_hi, 0")
    e("global_store_dwordx4 v%d, %s, %s sc1" % (cD, vr(cT + 8, 4), sp(sWS)))
    e("s_mov_b64 exec, -1")
    m.lab("L_qloc")
    for k in range(0, 8, 2):
        e("v_pk_add_f32 %s, %s, %s" % (vr(cU + k, 2), vr(cU + k, 2), vr(cU + 8 + k, 2)))
        e("v_pk_add_f32 %s, %s, %s" % (vr(cU + 16 + k, 2), vr(cU + 16 + k, 2), vr(cU + 24 + k, 2)))
    for k in range(0, 8, 2):
        e("v_pk_add_f32 %s, %s, %s" % (vr(cU + k, 2), vr(cU + k, 2), vr(cU + 16 + k, 2)))
    for k in range(4):
        e("v_cvt_pk_bf16_f32 v%d, v%d, v%d" % (cT + k, cU + 2 * k, cU + 2 * k + 1))
    e("v_mov_b32 v%d, s%d" % (cT + 4, sLOC))
    e("v_mov_b32 v%d, 0" % (cT + 5))
    e("ds_write_b128 v%d, %s offset:%d" % (cA, vr(cT, 4), L_Q))
    e("ds_write_b32 v%d, v%d offset:%d" % (cT + 5, cT + 4, L_LOC))
    PF = P.get("ptflag", "sc1")
    early_pt = P.get("early_pt", P["lag"] < 16)
    if not early_pt:
        e("s_waitcnt lgkmcnt(0)")
        stamp(4)
        e("s_barrier")
    e("global_load_dwordx4 %s, v%d, %s %s" % (vr(cU, 4), cA, sp(sX), P.get("xflag", "")))
    e("global_load_dwordx4 %s, v%d, %s %s" % (vr(cU + 4, 4), cA, sp(sGATE), P.get("xflag", "")))
    e("global_load_dwordx4 %s, v%d, %s %s" % (vr(cPT, 4), cOP, sp(sWS), PF))
    e("global_load_dwordx4 %s, v%d, %s offset:1024 %s" % (vr(cPT + 4, 4), cOP, sp(sWS), PF))
    e("global_load_dwordx4 %s, v%d, %s %s" % (vr(cPT + 8, 4), cML, sp(sWS), PF))
    if P["fpre"]:
        e("s_cmp_ge_u32 s2, 128")
        e("s_cbranch_scc1 L_nofp")
        e("global_load_dwordx4 %s, v%d, %s sc1" % (vr(cFU, 4), cFG, sp(sWS)))
        m.lab("L_nofp")
    if early_pt:
        e("s_waitcnt lgkmcnt(0)")
        stamp(4)
        e("s_barrier")
    e("s_barrier")
    e("s_waitcnt vmcnt(0)")
    m.c("gate")
    for i in range(4):
        e("v_lshlrev_b32 v%d, 16, v%d" % (cT + 2 * i, cU + i))
        e("v_and_b32 v%d, s%d, v%d" % (cT + 2 * i + 1, sMASK, cU + i))
        e("v_lshlrev_b32 v%d, 16, v%d" % (cT + 8 + 2 * i, cU + 4 + i))
        e("v_and_b32 v%d, s%d, v%d" % (cT + 8 + 2 * i + 1, sMASK, cU + 4 + i))
    for i in range(8):
        e("v_mul_f32 v%d, v%d, v%d" % (cT + i, cT + i, cT + 8 + i))
    for i in range(4):
        e("v_cvt_pk_bf16_f32 v%d, v%d, v%d" % (cT + 8 + i, cT + 2 * i, cT + 2 * i + 1))
    for i in range(4):
        e("v_lshlrev_b32 v%d, 16, v%d" % (cT + 2 * i, cT + 8 + i))
        e("v_and_b32 v%d, s%d, v%d" % (cT + 2 * i + 1, sMASK, cT + 8 + i))
    for i in range(4):
        e("v_add_f32 v%d, v%d, v%d" % (cT + i, cT + i, cT + 4 + i))
    e("v_add_f32 v%d, v%d, v%d" % (cT + 0, cT + 0, cT + 2))
    e("v_add_f32 v%d, v%d, v%d" % (cT + 1, cT + 1, cT + 3))
    e("v_add_f32 v%d, v%d, v%d" % (cT + 0, cT + 0, cT + 1))
    row_allreduce(cT, "v_add_f32")
    allreduce_groups(cT, cT + 1, "v_add_f32")
    e("v_cvt_pk_bf16_f32 v%d, v%d, v%d" % (cT, cT, cT))
    e("v_and_b32 v%d, s%d, v%d" % (cT, sMASK, cT))
    e("v_mul_f32 v%d, s%d, v%d" % (cT, sL2E, cT))
    e("v_exp_f32 v%d, -v%d" % (cT, cT))
    e("s_nop 0")
    e("v_add_f32 v%d, 1.0, v%d" % (cT, cT))
    e("v_rcp_f32 v%d, v%d" % (cT, cT))
    e("s_nop 0")
    e("v_cvt_pk_bf16_f32 v%d, v%d, v%d" % (cT, cT, cT))
    e("v_and_b32 v%d, s%d, v%d" % (cT + 1, sMASK, cT))
    e("v_sub_f32 v%d, 1.0, v%d" % (cT, cT + 1))
    e("v_cmp_gt_u32 vcc, 32, v1")
    e("v_cvt_pk_bf16_f32 v%d, v%d, v%d" % (cT, cT, cT))
    e("v_and_b32 v%d, s%d, v%d" % (cT, sMASK, cT))
    e("v_cndmask_b32 v%d, v%d, v%d, vcc" % (cGS, cT, cT + 1))
    stamp(5)
    e("s_mov_b32 exec_hi, 0")
    e("s_barrier")
    for w in range(4):
        e("ds_read_b128 %s, v%d offset:%d" % (vr(cU + 4 * w, 4), cC, L_QP + 512 * w))
    stamp(6)
    e("s_waitcnt lgkmcnt(0)")
    sum4_and_tag(cU, [cTG + k for k in range(4)], cT + 8)
    e("global_store_dwordx4 v%d, %s, %s %s" % (cFP, vr(cT + 8, 4), sp(sWS), P.get("fsflag", "sc1")))
    e("s_mov_b64 exec, -1")
    stamp(7)
    e("s_cmp_ge_u32 s2, 128")
    e("s_cbranch_scc1 L_fin")
    if P["fwait"]:
        e("s_sleep %d" % P["fwait"])
    e("s_mov_b32 s%d, 0" % sSPIN)
    e("s_mov_b64 vcc, -1")
    for _ in range(P["fdepth"] - 1):
        e("global_load_dwordx4 %s, v%d, %s %s" % (vr(cFU, 4), cFG, sp(sWS), P.get("fflag", "sc1")))
        e("s_sleep 1")
    m.lab("L_pollf")
    if P["fsleep"]:
        e("s_sleep %d" % P["fsleep"])
    e("s_mov_b64 exec, vcc")
    e("global_load_dwordx4 %s, v%d, %s %s" % (vr(cFU, 4), cFG, sp(sWS), P.get("fflag", "sc1")))
    e("s_mov_b64 exec, -1")
    e("s_add_u32 s%d, s%d, 1" % (sSPIN, sSPIN))
    e("s_waitcnt vmcnt(%d)" % (P["fdepth"] - 1))
    for d in range(4):
        e("v_xor_b32 v%d, v%d, v%d" % (cU + d, cFU + d, cTG + d))
    e("v_or3_b32 v%d, v%d, v%d, v%d" % (cT, cU, cU + 1, cU + 2))
    e("v_bitop3_b32 v%d, v%d, v%d, s%d bitop3:0x54" % (cT, cT, cU + 3, sTM))
    e("v_cmp_ne_u32 vcc, 0, v%d" % cT)
    e("s_cbranch_vccz L_gotf")
    e("s_cmp_lt_u32 s%d, %d" % (sSPIN, P["spin"]))
    e("s_cbranch_scc1 L_pollf")
    m.lab("L_gotf")
    stamp(8)
    e("v_permlane16_swap_b32 v%d, v%d" % (cU + 0, cU + 1))
    e("v_permlane16_swap_b32 v%d, v%d" % (cU + 2, cU + 3))
    e("v_add_f32 v%d, v%d, v%d" % (cU + 0, cU + 0, cU + 1))
    e("v_add_f32 v%d, v%d, v%d" % (cU + 2, cU + 2, cU + 3))
    e("s_nop 0")
    e("v_add_f32_dpp v%d, v%d, v%d row_ror:8 row_mask:0xf bank_mask:0x3" % (cT, cU + 0, cU + 0))
    e("v_add_f32_dpp v%d, v%d, v%d row_ror:8 row_mask:0xf bank_mask:0xc" % (cT, cU + 2, cU + 2))
    for md in ("quad_perm:[1,0,3,2]", "quad_perm:[2,3,0,1]", "row_half_mirror"):
        e("s_nop 1")
        e("v_add_f32_dpp v%d, v%d, v%d %s %s" % (cT, cT, cT, md, DPPALL))
    e("v_cvt_pk_bf16_f32 v%d, v%d, v%d" % (cT, cT, cT))
    e("v_and_b32 v%d, s%d, v%d" % (cT, sMASK, cT))
    e("v_mul_f32 v%d, v%d, v%d" % (cT, cT, cGS))
    e("v_cvt_pk_bf16_f32 v%d, v%d, v%d" % (cT, cT, cT))
    e("v_and_b32 v%d, s%d, v%d" % (cT, sMASK, cT))
    e("v_mov_b32 v%d, v%d" % (cT + 1, cT))
    e("s_nop 1")
    e("v_permlane32_swap_b32 v%d, v%d" % (cT, cT + 1))
    e("v_add_f32 v%d, v%d, v%d" % (cT, cT, cT + 1))
    e("v_cvt_pk_bf16_f32 v%d, v%d, v%d" % (cT, cT, cT))
    e("s_mov_b64 exec, 0x01010101")
    e("global_store_short v%d, v%d, %s %s" % (cOA, cT, sp(sOUT), P.get("outflag", "")))
    e("s_cmp_lg_u32 s2, 0")
    e("s_cbranch_scc1 L_fin")
    e("s_mov_b64 exec, 1")
    e("v_mov_b32 v%d, s%d" % (cT + 2, sTAG))
    e("v_mov_b32 v%d, 0" % (cT + 3))
    e("global_store_dword v%d, v%d, %s offset:%d" % (cT + 3, cT + 2, sp(sWS), WS_EPOCH))
    m.lab("L_fin")
    stamp(9)
    if P.get("padto"):
        m.lab("L_pad")
        e("s_memrealtime s[96:97]")
        e("s_waitcnt lgkmcnt(0)")
        e("s_sub_u32 s96, s96, s98")
        e("s_cmp_lt_u32 s96, %d" % P["padto"])
        e("s_cbranch_scc1 L_pad")
    dump_stamps(10)
    m.lab("L_end")
    e("s_endpgm")

    hdr = open("cdna_kernels/%s.s.ref" % NAME).read().split("; Override launch")[0]
    out = hdr
    out += "; @launch grid=(256,1,1) block=(320,1,1) lds=%d\n" % P["lds"]
    out += '.amdgcn_target "amdgcn-amd-amdhsa--gfx950"\n.text\n.globl %s_kernel\n.p2align 8\n.type %s_kernel,@function\n%s_kernel:\n' % (NAME, NAME, NAME)
    out += "\n".join(m.L) + "\n"
    out += """.section .rodata,"a"
.p2align 6
.amdhsa_kernel %s_kernel
  .amdhsa_next_free_vgpr 256
  .amdhsa_next_free_sgpr 102
  .amdhsa_accum_offset 256
  .amdhsa_group_segment_fixed_size 0
  .amdhsa_kernarg_size 112
  .amdhsa_user_sgpr_count 2
  .amdhsa_user_sgpr_kernarg_segment_ptr 1
  .amdhsa_system_sgpr_workgroup_id_x 1
.end_amdhsa_kernel
""" % NAME
    return out


if __name__ == "__main__":
    kw = {}
    outp = sys.argv[1]
    for a in sys.argv[2:]:
        k, v = a.split("=")
        kw[k] = int(v) if v.lstrip("-").isdigit() else v
    open(outp, "w").write(gen(**kw))
```

```python
import sys

NAME = "gated_mix__sliding_block_cached__sliding_block_cached__decode"

WS_EPOCH = 0x0
WS_ML = 0x10000
WS_Q = 0x20000
WS_F = 0x40000
WS_QB = 0x60000
WS_O = 0x80000
WS_STAMP = 0x300000
TB = 10
TM = (1 << TB) - 1

L_QP = 0x0
L_Q = 0x800
L_MX = 0xC00
L_CNT = 0xC40
L_LOC = 0xC44
L_LS = 0xC80
L_OP = 0x1000

DEF = dict(
    stamps=0, window=6, nv_before=11, ldflag="nt", lds=90112, spin=200000,
    nfast=12, wo_win=10, swz=1, wo_early=0, n_b3=2, tlbwarm=0, omask=1, osleep=0, fsleep=0, fwait=7, spt=0, ptflag="sc1", n_late=0, ptrig=-1, fdepth=1, odepth=2, fpre=1, lag=8, b2pos=16, n_qk=0, c_lag=1,
)


class Em:
    def __init__(self):
        self.L = []
        self.q = []

    def e(self, s):
        self.L.append("    " + s)

    def lab(self, s):
        self.L.append(s + ":")

    def c(self, s):
        self.L.append("    ; " + s)

    def vm(self, name, s):
        self.e(s)
        self.q.append(name)

    def wait(self, name):
        if name not in self.q:
            return
        i = self.q.index(name)
        n = len(self.q) - 1 - i
        self.e("s_waitcnt vmcnt(%d)" % n)
        self.q = self.q[i + 1:]

    def window(self, w):
        if w and len(self.q) >= w:
            self.wait(self.q[len(self.q) - w])


def vr(a, n=1):
    return "v%d" % a if n == 1 else "v[%d:%d]" % (a, a + n - 1)


def sp(a):
    return "s[%d:%d]" % (a, a + 1)


DPPALL = "row_mask:0xf bank_mask:0xf"


def gen(**kw):
    P = dict(DEF)
    P.update(kw)
    W = P["window"]
    FL = P["ldflag"]
    ST = P["stamps"]
    m = Em()
    e = m.e

    sX = 4
    sPC = 6
    sK, sV, sWQ, sWO = 8, 10, 12, 14
    sGATE, sOUT, sDBG, sWS = 16, 18, 20, 22
    sKVH, sBR, sJ, sWAVE, sGRP = 24, 25, 26, 27, 28
    sT0, sT1, sT2 = 29, 30, 31
    sTAG, sTM, sMASK, sSPIN = 32, 33, 34, 35
    sSC = 36
    sL2E = 38
    sLOC = 40
    sSAVE = 42
    sHI = 50
    sSTAMP = 70

    def stamp(idx):
        if ST:
            e("s_memrealtime s[%d:%d]" % (sSTAMP + 2 * idx, sSTAMP + 2 * idx + 1))

    def dump_stamps(n):
        if not ST:
            return
        e("s_waitcnt lgkmcnt(0)")
        if P.get("late_dump", 1):
            lab = "L_ld%d" % len(m.L)
            m.lab(lab)
            e("s_sleep 8")
            e("s_memrealtime s[44:45]")
            e("s_waitcnt lgkmcnt(0)")
            e("s_sub_u32 s44, s44, s%d" % sSTAMP)
            e("s_cmp_lt_u32 s44, 2000")
            e("s_cbranch_scc1 " + lab)
        e("s_mov_b64 exec, 1")
        for i in range(n):
            e("v_mov_b32 v%d, s%d" % (8 + i, sSTAMP + 2 * i))
        for i in range(n, 16):
            e("v_mov_b32 v%d, 0" % (8 + i))
        e("s_lshl_b32 s%d, s2, 3" % sT0)
        e("s_add_u32 s%d, s%d, s%d" % (sT0, sT0, sWAVE))
        e("s_lshl_b32 s%d, s%d, 6" % (sT0, sT0))
        e("s_add_u32 s%d, s%d, 0x%x" % (sT0, sT0, WS_STAMP))
        e("v_mov_b32 v1, s%d" % sT0)
        for i in range(4):
            e("global_store_dwordx4 v1, v[%d:%d], %s offset:%d" % (8 + 4 * i, 11 + 4 * i, sp(sWS), 16 * i))

    def make_tags(v):
        e("s_add_u32 s%d, s%d, 0x9E3779B9" % (sTAG, sTAG))
        for k, sh in enumerate((0, 10, 20, 22)):
            e("s_bfe_u32 s%d, s%d, 0x%x" % (sT0, sTAG, (TB << 16) | sh))
            e("v_mov_b32 v%d, s%d" % (v + k, sT0))
        e("s_mov_b32 s%d, 0x%x" % (sTM, 0xffffffff ^ TM))

    def allreduce_groups(v, tmp, op):
        e("v_mov_b32 v%d, v%d" % (tmp, v))
        e("s_nop 1")
        e("v_permlane32_swap_b32 v%d, v%d" % (v, tmp))
        e("%s v%d, v%d, v%d" % (op, v, v, tmp))
        e("v_mov_b32 v%d, v%d" % (tmp, v))
        e("s_nop 1")
        e("v_permlane16_swap_b32 v%d, v%d" % (v, tmp))
        e("%s v%d, v%d, v%d" % (op, v, v, tmp))

    def row_allreduce(v, op):
        for r in (8, 4, 2, 1):
            e("s_nop 1")
            e("%s_dpp v%d, v%d, v%d row_ror:%d %s" % (op, v, v, v, r, DPPALL))

    def sum4_and_tag(t, tg, dst, rnd=False):
        for k in (0, 2):
            e("v_pk_add_f32 %s, %s, %s" % (vr(t + k, 2), vr(t + k, 2), vr(t + 4 + k, 2)))
            e("v_pk_add_f32 %s, %s, %s" % (vr(t + 8 + k, 2), vr(t + 8 + k, 2), vr(t + 12 + k, 2)))
        for k in (0, 2):
            e("v_pk_add_f32 %s, %s, %s" % (vr(t + k, 2), vr(t + k, 2), vr(t + 8 + k, 2)))
        if rnd:
            for k in range(4):
                e("v_add_u32 v%d, 0x%x, v%d" % (t + k, 1 << (TB - 1), t + k))
        if tg:
            for k in range(4):
                e("v_and_or_b32 v%d, v%d, s%d, v%d" % (dst + k, t + k, sTM, tg[k]))

    def check_embedded(u, n, tg, acc):
        for k in range(n):
            e("v_xor_b32 v%d, v%d, v%d" % (u + k, u + k, tg + (k & 3)))
        e("v_or3_b32 v%d, v%d, v%d, v%d" % (acc, u, u + 1, u + 2))
        k = 3
        while k < n:
            if k + 1 < n:
                e("v_or3_b32 v%d, v%d, v%d, v%d" % (acc, acc, u + k, u + k + 1))
                k += 2
            else:
                e("v_or_b32 v%d, v%d, v%d" % (acc, acc, u + k))
                k += 1
        e("v_and_b32 v%d, 0x%x, v%d" % (acc, TM, acc))
        e("v_cmp_ne_u32 vcc, 0, v%d" % acc)

    def store_loc(name, text):
        e("s_cmp_lg_u32 s%d, 0" % sLOC)
        e("s_cbranch_scc1 L_wt_" + name)
        e(text)
        e("s_branch L_sd_" + name)
        m.lab("L_wt_" + name)
        e(text + " sc1")
        m.lab("L_sd_" + name)
        m.q.append(name)

    e("s_and_b32 s%d, s2, 8" % sT0)
    e("s_mul_i32 s%d, s%d, 5" % (sT0, sT0))
    e("s_load_dwordx8 s[8:15], s[0:1], s%d offset:0x8" % sT0)
    e("s_load_dwordx2 %s, s[0:1], 0" % sp(sX))
    stamp(0)
    e("v_readfirstlane_b32 s%d, v0" % sWAVE)
    e("s_cmpk_ge_u32 s2, 0x100")
    e("s_cbranch_scc1 L_end")
    e("v_and_b32 v4, 15, v0")
    e("s_and_b32 s%d, s2, 7" % sKVH)
    e("s_cmpk_lt_u32 s%d, 0x100" % sWAVE)
    e("s_cbranch_scc1 L_comp")
    e("s_getpc_b64 %s" % sp(sPC))
    m.lab("L_pc")
    e("v_lshlrev_b32 v5, 7, v0")
    e("v_min_u32 v5, L_end-L_pc+0x8000, v5")
    e("s_sub_u32 s%d, s%d, 0x8000" % (sPC, sPC))
    e("s_subb_u32 s%d, s%d, 0" % (sPC + 1, sPC + 1))
    e("global_load_dword v6, v5, %s %s" % (sp(sPC), P.get("cpflag", "")))
    e("s_branch L_comm")
    m.lab("L_comp")

    vOK, vOV, vOO, vOX = 6, 7, 8, 9
    vMK = 10
    vMP = 14
    vAD = 16
    vZERO, vONE = 18, 19
    vA_OW, vA_OR, vA_OG, vA_OP = 20, 21, 22, 23
    vX = 24
    vTG = 24
    vQ = 28
    vACC = 32
    vT = 40
    vS = 56
    vWQ = 72
    vAX = 104
    vWO = 104
    vK = 136
    vVregs = [200 + 4 * i for i in range(14)] + [vWQ + 0, vWQ + 4]
    vD = [vWQ + 8 + 4 * i for i in range(4)]
    vA_QP, vA_W, vA_H, vMH = vWQ + 24, vWQ + 25, vWQ + 26, vWQ + 27

    e("s_lshr_b32 s%d, s2, 6" % sT1)
    e("s_lshl2_add_u32 s%d, s%d, s%d" % (sT0, sKVH, sT1))
    e("s_and_b32 s%d, s2, 48" % sT1)
    e("v_lshrrev_b32 v6, 4, v0")
    e("v_lshl_or_b32 v5, s%d, 4, v4" % sT0)
    e("v_add_u32 v6, s%d, v6" % sT1)
    e("s_movk_i32 s%d, 0x2000" % sT1)
    e("v_lshlrev_b32 v%d, 4, v6" % vOX)
    e("v_lshl_or_b32 v5, v6, 12, v5")
    e("v_lshlrev_b32 v%d, 4, v5" % vT)
    for i in range(1, 8):
        e("v_add_u32 v%d, s%d, v%d" % (vT + i, sT1, vT + i - 1))
    e("s_waitcnt lgkmcnt(0)")
    m.vm("x", "global_load_dwordx4 %s, v%d, %s %s" % (vr(vX, 4), vOX, sp(sX), P.get("xflag", "")))
    for i in range(8):
        m.vm("wq%d" % i, "global_load_dwordx4 %s, v%d, %s %s" % (vr(vWQ + 4 * i, 4), vT + i, sp(sWQ), FL))
    m.lab("L_first")
    stamp(1)

    def decode():
        e("s_load_dwordx8 s[16:23], s[0:1], 80")
        if P.get("padto"):
            e("s_memrealtime s[98:99]")
        e("v_lshrrev_b32 v2, 6, v0")
        e("v_and_b32 v1, 63, v0")
        e("v_bfe_u32 v3, v0, 4, 2")
        e("s_lshr_b32 s%d, s%d, 6" % (sWAVE, sWAVE))
        e("s_bfe_u32 s%d, s2, 0x10003" % sBR)
        e("s_lshr_b32 s%d, s2, 4" % sJ)
        e("s_lshl1_add_u32 s%d, s%d, s%d" % (sGRP, sKVH, sBR))

    decode()
    e("s_lshl_b32 s%d, s%d, 8" % (sT0, sT0))
    e("s_lshl_b32 s%d, s%d, 24" % (sT1, sKVH))
    e("s_lshl_b32 s%d, s%d, 12" % (sT2, sJ))
    e("s_add_u32 s%d, s%d, s%d" % (sT1, sT1, sT2))
    e("s_add_u32 s%d, s%d, 0xF00000" % (sT1, sT1))
    e("v_bfe_u32 v%d, v1, 2, 2" % vOK)
    e("v_lshlrev_b32 v%d, 8, v%d" % (vOK, vOK))
    e("v_lshl_add_u32 v%d, v3, 6, v%d" % (vOK, vOK))
    e("v_and_b32 v5, 3, v1")
    e("v_lshl_add_u32 v%d, v5, 4, v%d" % (vOK, vOK))
    e("v_lshl_add_u32 v%d, v2, 10, v%d" % (vOK, vOK))
    e("v_add_u32 v%d, s%d, v%d" % (vOK, sT1, vOK))
    e("v_lshlrev_b32 v%d, 4, v0" % vOV)
    e("v_add_u32 v%d, s%d, v%d" % (vOV, sT1, vOV))
    e("s_lshl_b32 s%d, s%d, 9" % (sT0, sT0))
    e("s_and_b32 s%d, s%d, 3" % (sT1, sJ))
    e("s_lshl_b32 s%d, s%d, 8" % (sT1, sT1))
    e("s_add_u32 s%d, s%d, s%d" % (sT0, sT0, sT1))
    e("v_and_b32 v5, 1, v3")
    e("v_lshlrev_b32 v%d, 11, v5" % vOO)
    e("v_lshrrev_b32 v5, 1, v3")
    e("v_lshl_add_u32 v%d, v5, 10, v%d" % (vOO, vOO))
    e("v_lshl_add_u32 v%d, v2, 15, v%d" % (vOO, vOO))
    e("v_lshl_add_u32 v%d, v4, 4, v%d" % (vOO, vOO))
    e("v_add_u32 v%d, s%d, v%d" % (vOO, sT0, vOO))
    e("s_waitcnt lgkmcnt(0)")
    e("s_load_dword s%d, %s, 0x%x" % (sTAG, sp(sWS), WS_EPOCH))

    def swz(i):
        return (i << 16) | (((i * P["swz"]) & 15) << 12)

    nad = [0]

    def ld_x(name, dst, off, const, base):
        if const:
            a = vAD + (nad[0] & 1)
            nad[0] += 1
            e("v_xor_b32 v%d, 0x%x, v%d" % (a, const, off))
        else:
            a = off
        m.vm(name, "global_load_dwordx4 %s, v%d, %s %s" % (vr(dst, 4), a, sp(base), FL))

    def ld_k(i):
        ld_x("k%d" % i, vK + 4 * i, vOK, swz(i), sK)

    def ld_v(i):
        ld_x("v%d" % i, vVregs[i], vOV, swz(i), sV)

    def ld_wo(i):
        ld_x("wo%d" % i, vWO + 4 * i, vOO, i << 12, sWO)

    lag = P["lag"]
    KS = [("k", i) for i in range(16)]
    VS = [("v", i) for i in range(16)]
    WS_ = [("wo", i) for i in range(8)]
    rest = KS[:lag] + [x for p in zip(KS[lag:], VS[:16 - lag]) for x in p] + WS_[:P["wo_early"]] + VS[16 - lag:] + WS_[P["wo_early"]:]

    if P.get("seq"):
        sq = P["seq"]
        assert sq.count("k") == 16 and sq.count("v") == 16 and sq.count("o") == 8, sq
        its = {"k": iter(KS), "v": iter(VS), "o": iter(WS_)}
        rest = [next(its[ch]) for ch in sq]

    def ld_next():
        kind, i = rest.pop(0)
        {"k": ld_k, "v": ld_v, "wo": ld_wo}[kind](i)

    def paced(n):
        for _ in range(n):
            m.window(W)
            ld_next()

    m.c("masks")
    e("v_and_b32 v5, 1, v1")
    e("v_lshlrev_b32 v5, 4, v5")
    e("s_mov_b32 s%d, 0xffff" % sT0)
    e("v_lshlrev_b32 v5, v5, s%d" % sT0)
    e("v_bfe_u32 v%d, v1, 1, 2" % (vT + 8))
    for d in range(4):
        e("v_cmp_eq_u32 vcc, %d, v%d" % (d, vT + 8))
        e("s_nop 1")
        e("v_cndmask_b32 v%d, 0, v5, vcc" % (vMK + d))
    e("v_or_b32 v%d, v%d, v%d" % (vMP + 0, vMK + 0, vMK + 2))
    e("v_or_b32 v%d, v%d, v%d" % (vMP + 1, vMK + 1, vMK + 3))
    e("s_mov_b32 s%d, 0x3db504f3" % sSC)
    e("s_mov_b32 s%d, 0x3db504f3" % (sSC + 1))
    e("s_mov_b32 s%d, 0x3fb8aa3b" % sL2E)
    e("s_mov_b32 s%d, 0x3fb8aa3b" % (sL2E + 1))
    e("s_mov_b32 s%d, 0xffff0000" % sMASK)
    e("s_mov_b32 s%d, 0x01000100" % sT0)
    e("s_mov_b32 s%d, 0x03020302" % sT1)
    e("v_mov_b32 v%d, 0" % vZERO)
    e("v_mov_b32 v%d, 1" % vONE)

    m.c("q projection")
    m.wait("x")
    for i in range(8):
        e("v_perm_b32 v%d, v%d, v%d, s%d" % (vT + 8 + i, vX + i // 2, vX + i // 2, sT1 if i & 1 else sT0))
    for i in range(8):
        for d in range(4):
            e("v_and_b32 v%d, v%d, v%d" % (vAX + 4 * i + d, vT + 8 + i, vMK + d))
    for i in range(8):
        m.wait("wq%d" % i)
        e("v_mfma_f32_16x16x32_bf16 %s, %s, %s, %s" % (vr(vACC, 4), vr(vAX + 4 * i, 4), vr(vWQ + 4 * i, 4), "0" if i == 0 else vr(vACC, 4)))
        if len(m.q) < W:
            ld_next()
    stamp(2)
    e("v_and_b32 v%d, 1, v3" % vA_QP)
    e("v_lshlrev_b32 v%d, 4, v%d" % (vA_QP, vA_QP))
    e("v_lshl_add_u32 v%d, v4, 5, v%d" % (vA_QP, vA_QP))
    e("v_lshl_add_u32 v%d, v2, 9, v%d" % (vA_QP, vA_QP))
    e("s_mov_b32 exec_hi, 0")
    e("s_nop 2")
    e("ds_write_b128 v%d, %s offset:%d" % (vA_QP, vr(vACC, 4), L_QP))
    e("s_mov_b64 exec, -1")
    e("s_waitcnt lgkmcnt(0)")
    e("s_barrier")
    paced(2)
    make_tags(vTG)
    paced(1)

    m.c("addresses used later")
    e("v_lshlrev_b32 v%d, 11, v2" % vA_OW)
    e("v_lshl_add_u32 v%d, v1, 4, v%d" % (vA_OW, vA_OW))
    e("v_and_b32 v5, 1, v1")
    e("v_lshlrev_b32 v%d, 10, v5" % vA_OR)
    e("v_lshl_add_u32 v%d, v2, 8, v%d" % (vA_OR, vA_OR))
    e("v_bfe_u32 v5, v1, 1, 4")
    e("v_lshl_add_u32 v%d, v5, 4, v%d" % (vA_OR, vA_OR))
    paced(1)
    e("s_lshl_b32 s%d, s%d, 15" % (sT0, sGRP))
    e("s_add_u32 s%d, s%d, 0x%x" % (sT0, sT0, WS_O))
    e("s_lshl_b32 s%d, s%d, 7" % (sT1, sJ))
    e("s_add_u32 s%d, s%d, s%d" % (sT1, sT1, sT0))
    e("v_bfe_u32 v%d, v1, 3, 2" % vA_OG)
    e("v_lshl_add_u32 v%d, v2, 2, v%d" % (vA_OG, vA_OG))
    e("v_lshlrev_b32 v%d, 11, v%d" % (vA_OG, vA_OG))
    e("v_and_b32 v5, 7, v1")
    e("v_lshl_add_u32 v%d, v5, 4, v%d" % (vA_OG, vA_OG))
    e("v_add_u32 v%d, s%d, v%d" % (vA_OG, sT1, vA_OG))
    e("s_and_b32 s%d, s%d, 12" % (sT1, sJ))
    e("s_lshl_b32 s%d, s%d, 11" % (sT1, sT1))
    e("s_add_u32 s%d, s%d, s%d" % (sT1, sT1, sT0))
    e("v_add_u32 v%d, s%d, v%d" % (vA_OP, sT1, vA_OW))
    e("s_mov_b32 s%d, 0" % sHI)
    e("s_mov_b32 s%d, -1" % (sHI + 1))
    e("s_lshl_b32 s%d, s%d, 10" % (sT0, sGRP))
    e("s_add_u32 s%d, s%d, 0x%x" % (sT0, sT0, WS_ML))
    e("s_lshl_b32 s%d, s%d, 4" % (sT1, sJ))
    e("s_add_u32 s%d, s%d, s%d" % (sT1, sT1, sT0))
    e("v_lshlrev_b32 v5, 8, v2")
    e("v_add_u32 v5, s%d, v5" % sT1)
    e("v_cndmask_b32 v%d, v%d, v5, %s" % (vA_OG, vA_OG, sp(sHI)))
    e("s_lshr_b32 s%d, s%d, 2" % (sT1, sJ))
    e("s_lshl_b32 s%d, s%d, 8" % (sT1, sT1))
    e("s_add_u32 s%d, s%d, s%d" % (sT1, sT1, sT0))
    e("v_lshrrev_b32 v%d, 3, v1" % vA_W)
    e("v_and_b32 v5, 1, v1")
    e("v_lshl_add_u32 v%d, v5, 3, v%d" % (vA_W, vA_W))
    e("v_lshlrev_b32 v%d, 4, v%d" % (vA_W, vA_W))
    e("v_add_u32 v%d, s%d, v%d" % (vA_W, sT1, vA_W))
    e("v_lshlrev_b32 v%d, 4, v2" % vA_H)

    n_total = 40
    while n_total - len(rest) - len(m.q) < P["b2pos"]:
        paced(1)
    while len(m.q) < P["nv_before"] and rest:
        ld_next()
    stamp(3)
    e("s_barrier")
    e("v_lshlrev_b32 v5, 4, v1")
    e("ds_read_b128 %s, v5 offset:%d" % (vr(vQ, 4), L_Q))
    e("ds_read_b32 v%d, v%d offset:%d" % (vT, vZERO, L_LOC))
    stamp(4)
    e("s_waitcnt lgkmcnt(0)")
    e("v_readfirstlane_b32 s%d, v%d" % (sLOC, vT))

    late = []
    for _ in range(P["n_late"]):
        late.insert(0, rest.pop())
    WIN = P["wo_win"]

    def more(n=1):
        for _ in range(n):
            if rest:
                ld_next()

    def feed_wait(kind, i):
        name = "%s%d" % (kind, i)
        while (kind, i) in rest:
            m.window(WIN)
            ld_next()
        while rest and name in m.q and m.q.index(name) > 0:
            m.window(WIN)
            if len(m.q) < WIN:
                ld_next()
        m.wait(name)

    def top_up():
        while rest and len(m.q) < WIN:
            ld_next()

    m.c("scores: QK, round to bf16, scale, round to bf16, running max")
    vM, vM2, vA1, vA2 = vT + 8, vT + 10, vT + 12, vT + 13
    e("v_lshrrev_b32 v%d, 2, v4" % vA2)
    e("v_lshlrev_b32 v%d, 4, v%d" % (vA2, vA2))
    e("v_lshl_add_u32 v%d, v2, 2, v%d" % (vA1, vA2))
    qp = ["[0,0,0,0]", "[1,1,1,1]", "[2,2,2,2]", "[3,3,3,3]"]

    def round4(b):
        for i in (4 * b, 4 * b + 2):
            e("v_cvt_pk_bf16_f32 v%d, v%d, v%d" % (vT + (i & 2) // 2, vS + i, vS + i + 1))
        for i in (4 * b, 4 * b + 2):
            e("v_lshlrev_b32 v%d, 16, v%d" % (vS + i, vT + (i & 2) // 2))
            e("v_and_b32 v%d, s%d, v%d" % (vS + i + 1, sMASK, vT + (i & 2) // 2))

    for b in range(4):
        for t in range(4):
            i = 4 * b + t
            feed_wait("k", i)
            e("v_mfma_f32_16x16x32_bf16 %s, %s, %s, 0" % (vr(vD[t], 4), vr(vK + 4 * i, 4), vr(vQ, 4)))
        n0 = len(m.L)
        top_up()
        more(P["n_qk"])
        used = len(m.L) - n0
        if used < 5:
            e("s_nop %d" % (4 - used))
        for u in range(4):
            for t in range(4):
                i = 4 * b + t
                if u == 0:
                    e("v_mov_b32_dpp v%d, v%d quad_perm:%s %s" % (vS + i, vD[t], qp[0], DPPALL))
                else:
                    e("v_add_f32_dpp v%d, v%d, v%d quad_perm:%s %s" % (vS + i, vD[t] + u, vS + i, qp[u], DPPALL))
        round4(b)
        for i in (4 * b, 4 * b + 2):
            e("v_pk_mul_f32 %s, %s, %s" % (vr(vS + i, 2), vr(vS + i, 2), sp(sSC)))
        round4(b)
        if b == 0:
            e("v_max3_f32 v%d, v%d, v%d, v%d" % (vM, vS, vS + 1, vS + 2))
            e("v_max_f32 v%d, v%d, v%d" % (vM, vM, vS + 3))
        else:
            e("v_max3_f32 v%d, v%d, v%d, v%d" % (vM, vM, vS + 4 * b, vS + 4 * b + 1))
            e("v_max3_f32 v%d, v%d, v%d, v%d" % (vM, vM, vS + 4 * b + 2, vS + 4 * b + 3))
    allreduce_groups(vM, vM2, "v_max_f32")
    e("ds_write_b32 v%d, v%d offset:%d" % (vA1, vM, L_MX))
    e("s_waitcnt lgkmcnt(0)")
    e("s_barrier")
    e("ds_read_b128 %s, v%d offset:%d" % (vr(vT, 4), vA2, L_MX))
    e("ds_read_b128 %s, v%d offset:%d" % (vr(vT + 4, 4), vA_H, L_MX))
    more(P["n_b3"])
    e("s_waitcnt lgkmcnt(0)")
    e("v_max3_f32 v%d, v%d, v%d, v%d" % (vM, vT, vT + 1, vT + 2))
    e("v_max3_f32 v%d, v%d, v%d, v%d" % (vMH, vT + 4, vT + 5, vT + 6))
    e("v_max_f32 v%d, v%d, v%d" % (vM, vM, vT + 3))
    e("v_max_f32 v%d, v%d, v%d" % (vMH, vMH, vT + 7))
    e("v_mul_f32 v%d, s%d, v%d" % (vM2, sL2E, vM))
    e("v_mul_f32 v%d, s%d, v%d" % (vM2 + 1, sL2E, vM))
    stamp(5)
    m.c("exp, P operands and PV, software pipelined over pairs of key sets")
    vPA = vK
    vL = vT

    def stA(p):
        i = 2 * p
        e("v_pk_fma_f32 %s, %s, %s, %s neg_lo:[0,0,1] neg_hi:[0,0,1]" % (vr(vS + i, 2), vr(vS + i, 2), sp(sL2E), vr(vM2, 2)))
        e("v_exp_f32 v%d, v%d" % (vS + i, vS + i))
        e("v_exp_f32 v%d, v%d" % (vS + i + 1, vS + i + 1))

    def stB(p):
        for i in (2 * p, 2 * p + 1):
            e("v_cvt_pk_bf16_f32 v%d, v%d, v%d" % (vPA + 2 * i, vS + i, vS + i))
        for i in (2 * p, 2 * p + 1):
            e("v_and_b32 v%d, v%d, v%d" % (vPA + 2 * i + 1, vPA + 2 * i, vMP + 1))
            e("v_and_b32 v%d, v%d, v%d" % (vPA + 2 * i, vPA + 2 * i, vMP + 0))
        if p == 1:
            e("v_pk_add_f32 %s, %s, %s" % (vr(vL, 2), vr(vS, 2), vr(vS + 2, 2)))
        elif p > 1:
            e("v_pk_add_f32 %s, %s, %s" % (vr(vL, 2), vr(vL, 2), vr(vS + 2 * p, 2)))

    def stC(p):
        for i in (2 * p, 2 * p + 1):
            feed_wait("v", i)
            for w in range(2):
                e("v_mfma_f32_16x16x16_bf16 %s, %s, %s, %s" % (vr(vACC + 4 * w, 4), vr(vPA + 2 * i, 2), vr(vVregs[i] + 2 * w, 2), "0" if i == 0 else vr(vACC + 4 * w, 4)))
            top_up()

    cl = P["c_lag"]
    def capture(fn, *a):
        keep = m.L
        m.L = []
        fn(*a)
        got, m.L = m.L, keep
        return got

    def weave(valu, mf):
        chunks, cur = [], []
        for ln in mf:
            cur.append(ln)
            if "v_mfma" in ln:
                chunks.append(cur)
                cur = []
        if cur:
            chunks[-1].extend(cur)
        n = len(chunks)
        per = -(-len(valu) // n)
        for k in range(n):
            m.L.extend(chunks[k])
            m.L.extend(valu[k * per:(k + 1) * per])

    stA(0)
    for p in range(8):
        va = capture(stA, p + 1) if p + 1 < 8 else []
        vb = capture(stB, p)
        if p - cl >= 0:
            if cl == 1:
                m.L.extend(va[:2] if va else ["    s_nop 1"])
                va = va[2:]
            weave(va + vb, capture(stC, p - cl))
        else:
            m.L.extend(va + vb)
    e("v_add_f32 v%d, v%d, v%d" % (vL, vL, vL + 1))
    allreduce_groups(vL, vL + 1, "v_add_f32")
    e("ds_write_b32 v%d, v%d offset:%d" % (vA1, vL, L_LS))
    for p in range(max(0, 8 - cl), 8):
        stC(p)
    while rest:
        ld_next()
    stamp(6)
    e("s_nop 6")
    e("ds_write_b128 v%d, %s offset:%d" % (vA_OW, vr(vACC, 4), L_OP))
    e("ds_write_b128 v%d, %s offset:%d" % (vA_OW, vr(vACC + 4, 4), L_OP + 1024))
    e("s_mov_b64 exec, 1")
    e("ds_add_u32 v%d, v%d offset:%d" % (vZERO, vONE, L_CNT))
    e("s_mov_b32 exec_lo, -1")
    e("s_mov_b32 exec_hi, 1")
    vLS = vS + 12
    m.lab("L_cnt")
    e("ds_read_b32 v5, v%d offset:%d" % (vZERO, L_CNT))
    for w in range(4):
        e("ds_read_b128 %s, v%d offset:%d" % (vr(vT + 4 * w, 4), vA_OR, L_OP + 2048 * w))
    e("ds_read_b128 %s, v%d offset:%d" % (vr(vLS, 4), vA_H, L_LS))
    e("s_waitcnt lgkmcnt(0)")
    e("v_cmp_ne_u32 vcc, 4, v5")
    e("s_cbranch_vccnz L_cnt")
    e("v_pk_add_f32 %s, %s, %s" % (vr(vLS, 2), vr(vLS, 2), vr(vLS + 2, 2)))
    sum4_and_tag(vT, None, vT)
    e("v_add_f32 v%d, v%d, v%d" % (vLS, vLS, vLS + 1))
    e("v_cndmask_b32 v%d, v%d, v%d, %s" % (vT, vT, vMH, sp(sHI)))
    e("v_cndmask_b32 v%d, v%d, v%d, %s" % (vT + 1, vT + 1, vLS, sp(sHI)))
    for k in (2, 3, 0, 1):
        e("v_and_or_b32 v%d, v%d, s%d, v%d" % (vT + k, vT + k, sTM, vTG + k))
    store_loc("o", "global_store_dwordx4 v%d, %s, %s" % (vA_OG, vr(vT, 4), sp(sWS)))
    stamp(7)
    e("s_mov_b64 exec, -1")
    rest.extend(late)
    while rest:
        ld_next()
    if ST and P.get("wostamp"):
        m.wait("wo7")
        stamp(10)
    if P["ptrig"] >= 0:
        m.wait("wo%d" % P["ptrig"])
    vO = vS
    vR = vK + 0
    sM = [44, 46, 48]
    e("s_mov_b32 s%d, 0" % sSPIN)
    for h in range(3):
        e("s_mov_b64 %s, -1" % sp(sM[h]))
    if P["odepth"] > 1:
        e("global_load_dwordx4 %s, v%d, %s sc1" % (vr(vR + 8, 4), vA_W, sp(sWS)))
        e("global_load_dwordx4 %s, v%d, %s sc1" % (vr(vR, 4), vA_OP, sp(sWS)))
        e("global_load_dwordx4 %s, v%d, %s offset:1024 sc1" % (vr(vR + 4, 4), vA_OP, sp(sWS)))
        e("s_waitcnt vmcnt(3)")
    m.lab("L_opoll")
    if P["osleep"]:
        e("s_sleep %d" % P["osleep"])
    e("s_mov_b64 exec, %s" % sp(sM[2]))
    e("global_load_dwordx4 %s, v%d, %s sc1" % (vr(vR + 8, 4), vA_W, sp(sWS)))
    e("s_mov_b64 exec, %s" % sp(sM[0]))
    e("global_load_dwordx4 %s, v%d, %s sc1" % (vr(vR, 4), vA_OP, sp(sWS)))
    e("s_mov_b64 exec, %s" % sp(sM[1]))
    e("global_load_dwordx4 %s, v%d, %s offset:1024 sc1" % (vr(vR + 4, 4), vA_OP, sp(sWS)))
    e("s_mov_b64 exec, -1")
    e("s_add_u32 s%d, s%d, 1" % (sSPIN, sSPIN))
    e("s_waitcnt vmcnt(%d)" % (3 if P["odepth"] > 1 else 0))
    m.q = []
    for k in list(range(8, 12)) + list(range(8)):
        e("v_xor_b32 v%d, v%d, v%d" % (vO + k, vR + k, vTG + (k & 3)))
    vM_, vL_, vE, vX1, vX2 = vO + 8, vO + 9, vT + 12, vT + 13, vT + 14
    e("v_max_f32_dpp v%d, v%d, v%d quad_perm:[1,0,3,2] %s" % (vX1, vM_, vM_, DPPALL))
    for h in range(3):
        e("v_or3_b32 v%d, v%d, v%d, v%d" % (vT + 8 + h, vO + 4 * h, vO + 4 * h + 1, vO + 4 * h + 2))
    e("v_max_f32_dpp v%d, v%d, v%d row_ror:8 %s" % (vX1, vX1, vX1, DPPALL))
    e("v_mov_b32 v%d, v%d" % (vX2, vX1))
    for h in range(3):
        e("v_bitop3_b32 v%d, v%d, v%d, s%d bitop3:0x54" % (vT + 8 + h, vT + 8 + h, vO + 4 * h + 3, sTM))
    e("v_permlane16_swap_b32 v%d, v%d" % (vX1, vX2))
    e("v_max_f32 v%d, v%d, v%d" % (vX1, vX1, vX2))
    e("v_mov_b32 v%d, v%d" % (vX2, vX1))
    for h in range(3):
        e("v_cmp_ne_u32 %s, 0, v%d" % (sp(sM[h]), vT + 8 + h))
    e("v_permlane32_swap_b32 v%d, v%d" % (vX1, vX2))
    e("v_max_f32 v%d, v%d, v%d" % (vX1, vX1, vX2))
    e("s_or_b64 %s, %s, %s" % (sp(sSAVE), sp(sM[0]), sp(sM[1])))
    e("v_sub_f32 v%d, v%d, v%d" % (vE, vM_, vX1))
    e("s_or_b64 %s, %s, %s" % (sp(sSAVE), sp(sSAVE), sp(sM[2])))
    e("v_mul_f32 v%d, s%d, v%d" % (vE, sL2E, vE))
    e("s_cbranch_scc0 L_ogot")
    e("s_cmp_lt_u32 s%d, %d" % (sSPIN, P["spin"]))
    e("s_cbranch_scc1 L_opoll")
    m.lab("L_ogot")
    e("v_exp_f32 v%d, v%d" % (vE, vE))
    stamp(8)
    e("s_nop 0")
    e("v_mul_f32 v%d, v%d, v%d" % (vX1, vE, vL_))
    for k in range(4):
        e("v_mul_f32_dpp v%d, v%d, v%d quad_perm:[0,0,2,2] %s" % (vO + k, vE, vO + k, DPPALL))
        if k == 2:
            e("v_add_f32_dpp v%d, v%d, v%d quad_perm:[1,0,3,2] %s" % (vX1, vX1, vX1, DPPALL))
    for k in range(4):
        e("v_fmac_f32_dpp v%d, v%d, v%d quad_perm:[1,1,3,3] %s" % (vO + k, vE, vO + 4 + k, DPPALL))
        if k == 1:
            e("v_add_f32_dpp v%d, v%d, v%d row_ror:8 %s" % (vX1, vX1, vX1, DPPALL))
    e("v_mov_b32 v%d, v%d" % (vX2, vX1))
    e("v_permlane32_swap_b32 v%d, v%d" % (vO + 0, vO + 1))
    e("v_permlane32_swap_b32 v%d, v%d" % (vO + 2, vO + 3))
    e("v_permlane32_swap_b32 v%d, v%d" % (vX1, vX2))
    e("v_add_f32 v%d, v%d, v%d" % (vO + 0, vO + 0, vO + 1))
    e("v_add_f32 v%d, v%d, v%d" % (vO + 2, vO + 2, vO + 3))
    e("v_add_f32 v%d, v%d, v%d" % (vX1, vX1, vX2))
    e("v_mov_b32 v%d, v%d" % (vX2, vX1))
    e("v_permlane16_swap_b32 v%d, v%d" % (vO + 0, vO + 2))
    e("v_add_f32 v%d, v%d, v%d" % (vO + 0, vO + 0, vO + 2))
    e("v_permlane16_swap_b32 v%d, v%d" % (vX1, vX2))
    e("v_add_f32 v%d, v%d, v%d" % (vX1, vX1, vX2))
    e("v_rcp_f32 v%d, v%d" % (vX1, vX1))
    e("v_add_f32_dpp v%d, v%d, v%d row_ror:8 %s" % (vO + 0, vO + 0, vO + 0, DPPALL))
    e("v_mul_f32 v%d, v%d, v%d" % (vO + 0, vO + 0, vX1))
    e("v_cvt_pk_bf16_f32 v%d, v%d, v%d" % (vO + 0, vO + 0, vO + 0))
    e("s_nop 1")
    vAI = vK + 32

    def build_ai(i):
        for d in range(4):
            e("v_and_b32_dpp v%d, v%d, v%d row_newbcast:%d %s" % (vAI + 4 * i + d, vO, vMK + d, i, DPPALL))

    build_ai(0)
    for i in range(8):
        if i < 7:
            build_ai(i + 1)
        else:
            e("s_nop 0")
        e("v_mfma_f32_16x16x32_bf16 %s, %s, %s, %s" % (vr(vACC, 4), vr(vAI + 4 * i, 4), vr(vWO + 4 * i, 4), "0" if i == 0 else vr(vACC, 4)))
    e("s_mov_b32 exec_hi, 0")
    e("s_nop 6")
    e("ds_write_b128 v%d, %s offset:%d" % (vA_QP, vr(vACC, 4), L_QP))
    e("s_waitcnt lgkmcnt(0)")
    e("s_barrier")
    stamp(9)
    dump_stamps(11)
    e("s_endpgm")

    m.q = []
    m.lab("L_comm")
    cA, cB, cC, cD = 7, 8, 9, 10
    cGS = 11
    cT = 12
    cQA, cQG, cML, cFP = 28, 29, 30, 31
    cU = 32
    cTG = 64
    cTQ = 68
    cOA, cFG, cOP = 69, 70, 71
    cPT = 72
    cFU = 84

    decode()
    e("v_mov_b32 v%d, 0" % cT)
    e("ds_write_b32 v%d, v%d offset:%d" % (cT, cT, L_CNT))
    e("v_lshlrev_b32 v%d, 4, v1" % cA)
    e("v_and_b32 v%d, 31, v1" % cC)
    e("v_lshlrev_b32 v%d, 4, v%d" % (cC, cC))
    e("s_lshl_b32 s%d, s%d, 13" % (sT0, sGRP))
    e("s_add_u32 s%d, s%d, 0x%x" % (sT0, sT0, WS_Q))
    e("s_lshl_b32 s%d, s%d, 9" % (sT1, sJ))
    e("s_add_u32 s%d, s%d, s%d" % (sT1, sT1, sT0))
    e("v_add_u32 v%d, s%d, v%d" % (cQA, sT1, cC))
    e("s_waitcnt lgkmcnt(0)")
    e("s_load_dword s%d, %s, 0x%x" % (sTAG, sp(sWS), WS_EPOCH))
    e("s_mov_b32 exec_hi, 0")
    e("global_load_dwordx4 %s, v%d, %s %s" % (vr(cPT, 4), cQA, sp(sWS), P.get("ptflag", "sc1")))
    if P["tlbwarm"]:
        e("s_lshl_b32 s%d, s%d, 24" % (sT1, sKVH))
        e("s_add_u32 s%d, s%d, 0xF00000" % (sT1, sT1))
        e("v_lshlrev_b32 v%d, 16, v1" % (cPT + 4))
        e("v_add_u32 v%d, s%d, v%d" % (cPT + 4, sT1, cPT + 4))
        e("s_lshl_b32 s%d, s%d, 2" % (sT1, sKVH))
        e("s_lshr_b32 s%d, s%d, 2" % (sT2, sJ))
        e("s_add_u32 s%d, s%d, s%d" % (sT1, sT1, sT2))
        e("s_lshl_b32 s%d, s%d, 17" % (sT1, sT1))
        e("v_lshlrev_b32 v%d, 16, v1" % (cPT + 5))
        e("v_add_u32 v%d, s%d, v%d" % (cPT + 5, sT1, cPT + 5))
        e("v_mov_b32 v%d, 0" % (cPT + 6))
        e("s_mov_b64 exec, 0x%x" % (0xffff if P["tlbwarm"] == 2 else 1))
        e("global_load_dword v%d, v%d, %s" % (cPT + 7, cPT + 4, sp(sK)))
        e("global_load_dword v%d, v%d, %s" % (cPT + 8, cPT + 4, sp(sV)))
        e("s_mov_b64 exec, 0x%x" % (3 if P["tlbwarm"] == 2 else 1))
        e("global_load_dword v%d, v%d, %s" % (cPT + 9, cPT + 5, sp(sWO)))
        e("s_mov_b64 exec, 1")
        e("global_load_dword v%d, v%d, %s" % (cPT + 10, cPT + 6, sp(sOUT)))
        e("global_load_dword v%d, v%d, %s" % (cPT + 11, cPT + 6, sp(sGATE)))
    e("s_mov_b64 exec, -1")
    e("v_lshrrev_b32 v%d, 2, v4" % cQG)
    e("v_lshlrev_b32 v%d, 11, v%d" % (cQG, cQG))
    e("v_lshl_add_u32 v%d, v3, 7, v%d" % (cQG, cQG))
    e("v_and_b32 v%d, 3, v1" % cT)
    e("v_lshl_add_u32 v%d, v%d, 5, v%d" % (cQG, cT, cQG))
    e("v_add_u32 v%d, s%d, v%d" % (cQG, sT0, cQG))
    e("v_add_u32 v%d, 0x%x, v%d" % (cD, WS_QB - WS_Q, cQA))
    e("s_mov_b32 s%d, 0x3fb8aa3b" % sL2E)
    e("s_mov_b32 s%d, 0xffff0000" % sMASK)
    e("s_getreg_b32 s%d, hwreg(HW_REG_XCC_ID, 0, 4)" % sT2)
    stamp(1)
    e("s_waitcnt lgkmcnt(0)")
    make_tags(cTG)
    e("v_and_b32 v%d, 0x%x, v%d" % (cTQ, TM & ~15, cTG + 3))
    e("v_or_b32 v%d, s%d, v%d" % (cTQ, sT2, cTQ))
    stamp(2)
    e("s_mov_b32 exec_hi, 0")
    e("s_barrier")
    for w in range(4):
        e("ds_read_b128 %s, v%d offset:%d" % (vr(cU + 4 * w, 4), cC, L_QP + 512 * w))
    e("s_waitcnt lgkmcnt(0)")
    sum4_and_tag(cU, [cTG, cTG + 1, cTG + 2, cTQ], cT + 8, rnd=True)
    e("global_store_dwordx4 v%d, %s, %s" % (cQA, vr(cT + 8, 4), sp(sWS)))
    if P.get("eagerb"):
        e("global_store_dwordx4 v%d, %s, %s sc1" % (cD, vr(cT + 8, 4), sp(sWS)))
    e("s_mov_b64 exec, -1")
    stamp(3)
    e("s_lshl_b32 s%d, s%d, 4" % (sT0, sGRP))
    e("s_add_u32 s%d, s%d, s%d" % (sT0, sT0, sJ))
    e("s_lshl_b32 s%d, s%d, 11" % (sT1, sT0))
    e("s_add_u32 s%d, s%d, 0x%x" % (sT1, sT1, WS_O))
    e("v_add_u32 v%d, s%d, v%d" % (cOP, sT1, cA))
    e("s_lshr_b32 s%d, s%d, 2" % (sT1, sT0))
    e("s_lshl_b32 s%d, s%d, 8" % (sT1, sT1))
    e("s_add_u32 s%d, s%d, 0x%x" % (sT1, sT1, WS_ML))
    e("v_lshlrev_b32 v%d, 4, v4" % cML)
    e("v_add_u32 v%d, s%d, v%d" % (cML, sT1, cML))
    e("s_and_b32 s%d, s%d, 3" % (sT0, sJ))
    e("s_lshl_b32 s%d, s%d, 6" % (sT0, sT0))
    e("s_lshl_b32 s%d, s%d, 5" % (sT1, sBR))
    e("s_add_u32 s%d, s%d, s%d" % (sT0, sT0, sT1))
    e("s_lshl_b32 s%d, s%d, 2" % (sT1, sKVH))
    e("s_add_u32 s%d, s%d, s%d" % (sT0, sT0, sT1))
    e("s_lshr_b32 s%d, s%d, 2" % (sT1, sJ))
    e("s_add_u32 s%d, s%d, s%d" % (sT0, sT0, sT1))
    e("s_lshl_b32 s%d, s%d, 9" % (sT0, sT0))
    e("s_add_u32 s%d, s%d, 0x%x" % (sT0, sT0, WS_F))
    e("v_add_u32 v%d, s%d, v%d" % (cFP, sT0, cC))
    e("s_lshl_b32 s%d, s%d, 4" % (sT0, sKVH))
    e("s_bfe_u32 s%d, s2, 0x40003" % sT1)
    e("s_add_u32 s%d, s%d, s%d" % (sT0, sT0, sT1))
    e("s_lshr_b32 s%d, s%d, 5" % (sT1, sT0))
    e("s_lshl_b32 s%d, s%d, 15" % (sT1, sT1))
    e("s_and_b32 s%d, s%d, 31" % (sT2, sT0))
    e("s_lshl_b32 s%d, s%d, 4" % (sT2, sT2))
    e("s_add_u32 s%d, s%d, s%d" % (sT1, sT1, sT2))
    e("s_add_u32 s%d, s%d, 0x%x" % (sT1, sT1, WS_F))
    e("v_lshlrev_b32 v%d, 9, v1" % cFG)
    e("v_add_u32 v%d, s%d, v%d" % (cFG, sT1, cFG))
    e("v_and_b32 v%d, 1, v3" % cOA)
    e("v_bfe_u32 v%d, v1, 3, 1" % cT)
    e("v_lshl_add_u32 v%d, v%d, 1, v%d" % (cOA, cT, cOA))
    e("v_lshlrev_b32 v%d, 1, v%d" % (cOA, cOA))
    e("s_lshl_b32 s%d, s%d, 3" % (sT0, sT0))
    e("v_add_u32 v%d, s%d, v%d" % (cOA, sT0, cOA))
    e("s_mov_b32 s%d, 0" % sSPIN)
    if P.get("d_noq"):
        e("s_branch L_gotq")
    m.lab("L_pollq")
    for rq in range(4):
        for hf in range(2):
            e("global_load_dwordx4 %s, v%d, %s offset:%d sc1" % (vr(cU + 8 * rq + 4 * hf, 4), cQG, sp(sWS), rq * 512 + hf * 16))
    e("s_add_u32 s%d, s%d, 1" % (sSPIN, sSPIN))
    e("s_waitcnt vmcnt(0)")
    for k in range(32):
        e("v_xor_b32 v%d, v%d, v%d" % (cU + k, cU + k, cTQ if (k & 3) == 3 else cTG + (k & 3)))
    e("v_or3_b32 v%d, v%d, v%d, v%d" % (cT + 1, cU + 3, cU + 7, cU + 11))
    e("v_or3_b32 v%d, v%d, v%d, v%d" % (cT + 1, cT + 1, cU + 15, cU + 19))
    e("v_or3_b32 v%d, v%d, v%d, v%d" % (cT + 1, cT + 1, cU + 23, cU + 27))
    e("v_or_b32 v%d, v%d, v%d" % (cT + 1, cT + 1, cU + 31))
    e("v_and_b32 v%d, -16, v%d" % (cT, cT + 1))
    rest3 = [cU + k for k in range(32) if (k & 3) != 3]
    for k in range(0, 24, 2):
        e("v_or3_b32 v%d, v%d, v%d, v%d" % (cT, cT, rest3[k], rest3[k + 1]))
    e("v_and_b32 v%d, 0x%x, v%d" % (cT, TM, cT))
    e("v_cmp_ne_u32 vcc, 0, v%d" % cT)
    e("s_cbranch_vccz L_gotq")
    e("s_cmp_lt_u32 s%d, %d" % (sSPIN, P["nfast"]))
    e("s_cbranch_scc1 L_pollq")
    e("v_xor_b32 v%d, 0x%x, v%d" % (cQG, WS_QB ^ WS_Q, cQG))
    e("s_cmp_lg_u32 s%d, %d" % (sSPIN, P["nfast"]))
    e("s_cbranch_scc1 L_nswq")
    e("s_mov_b32 exec_hi, 0")
    e("global_store_dwordx4 v%d, %s, %s sc1" % (cD, vr(cT + 8, 4), sp(sWS)))
    e("s_mov_b64 exec, -1")
    m.lab("L_nswq")
    e("s_cmp_lt_u32 s%d, %d" % (sSPIN, P["spin"]))
    e("s_cbranch_scc1 L_pollq")
    m.lab("L_gotq")
    e("v_and_b32 v%d, 15, v%d" % (cT + 1, cT + 1))
    e("v_cmp_ne_u32 vcc, 0, v%d" % (cT + 1))
    for k in range(3, 32, 4):
        e("v_and_b32 v%d, -16, v%d" % (cU + k, cU + k))
    e("s_or_b32 s%d, vcc_lo, vcc_hi" % sLOC)
    if P.get("force_wt"):
        e("s_mov_b32 s%d, 1" % sLOC)
    e("s_cmp_eq_u32 s%d, 0" % sLOC)
    e("s_cbranch_scc1 L_qloc")
    e("s_mov_b32 exec_hi, 0")
    e("global_store_dwordx4 v%d, %s, %s sc1" % (cD, vr(cT + 8, 4), sp(sWS)))
    e("s_mov_b64 exec, -1")
    m.lab("L_qloc")
    for k in range(0, 8, 2):
        e("v_pk_add_f32 %s, %s, %s" % (vr(cU + k, 2), vr(cU + k, 2), vr(cU + 8 + k, 2)))
        e("v_pk_add_f32 %s, %s, %s" % (vr(cU + 16 + k, 2), vr(cU + 16 + k, 2), vr(cU + 24 + k, 2)))
    for k in range(0, 8, 2):
        e("v_pk_add_f32 %s, %s, %s" % (vr(cU + k, 2), vr(cU + k, 2), vr(cU + 16 + k, 2)))
    for k in range(4):
        e("v_cvt_pk_bf16_f32 v%d, v%d, v%d" % (cT + k, cU + 2 * k, cU + 2 * k + 1))
    e("v_mov_b32 v%d, s%d" % (cT + 4, sLOC))
    e("v_mov_b32 v%d, 0" % (cT + 5))
    e("ds_write_b128 v%d, %s offset:%d" % (cA, vr(cT, 4), L_Q))
    e("ds_write_b32 v%d, v%d offset:%d" % (cT + 5, cT + 4, L_LOC))
    PF = P.get("ptflag", "sc1")
    early_pt = P.get("early_pt", P["lag"] < 16)
    if not early_pt:
        e("s_waitcnt lgkmcnt(0)")
        stamp(4)
        e("s_barrier")
    e("global_load_dwordx4 %s, v%d, %s %s" % (vr(cU, 4), cA, sp(sX), P.get("xflag", "")))
    e("global_load_dwordx4 %s, v%d, %s %s" % (vr(cU + 4, 4), cA, sp(sGATE), P.get("xflag", "")))
    e("global_load_dwordx4 %s, v%d, %s %s" % (vr(cPT, 4), cOP, sp(sWS), PF))
    e("global_load_dwordx4 %s, v%d, %s offset:1024 %s" % (vr(cPT + 4, 4), cOP, sp(sWS), PF))
    e("global_load_dwordx4 %s, v%d, %s %s" % (vr(cPT + 8, 4), cML, sp(sWS), PF))
    if P["fpre"]:
        e("s_cmp_ge_u32 s2, 128")
        e("s_cbranch_scc1 L_nofp")
        e("global_load_dwordx4 %s, v%d, %s sc1" % (vr(cFU, 4), cFG, sp(sWS)))
        m.lab("L_nofp")
    if early_pt:
        e("s_waitcnt lgkmcnt(0)")
        stamp(4)
        e("s_barrier")
    e("s_barrier")
    e("s_waitcnt vmcnt(0)")
    m.c("gate")
    for i in range(4):
        e("v_lshlrev_b32 v%d, 16, v%d" % (cT + 2 * i, cU + i))
        e("v_and_b32 v%d, s%d, v%d" % (cT + 2 * i + 1, sMASK, cU + i))
        e("v_lshlrev_b32 v%d, 16, v%d" % (cT + 8 + 2 * i, cU + 4 + i))
        e("v_and_b32 v%d, s%d, v%d" % (cT + 8 + 2 * i + 1, sMASK, cU + 4 + i))
    for i in range(8):
        e("v_mul_f32 v%d, v%d, v%d" % (cT + i, cT + i, cT + 8 + i))
    for i in range(4):
        e("v_cvt_pk_bf16_f32 v%d, v%d, v%d" % (cT + 8 + i, cT + 2 * i, cT + 2 * i + 1))
    for i in range(4):
        e("v_lshlrev_b32 v%d, 16, v%d" % (cT + 2 * i, cT + 8 + i))
        e("v_and_b32 v%d, s%d, v%d" % (cT + 2 * i + 1, sMASK, cT + 8 + i))
    for i in range(4):
        e("v_add_f32 v%d, v%d, v%d" % (cT + i, cT + i, cT + 4 + i))
    e("v_add_f32 v%d, v%d, v%d" % (cT + 0, cT + 0, cT + 2))
    e("v_add_f32 v%d, v%d, v%d" % (cT + 1, cT + 1, cT + 3))
    e("v_add_f32 v%d, v%d, v%d" % (cT + 0, cT + 0, cT + 1))
    row_allreduce(cT, "v_add_f32")
    allreduce_groups(cT, cT + 1, "v_add_f32")
    e("v_cvt_pk_bf16_f32 v%d, v%d, v%d" % (cT, cT, cT))
    e("v_and_b32 v%d, s%d, v%d" % (cT, sMASK, cT))
    e("v_mul_f32 v%d, s%d, v%d" % (cT, sL2E, cT))
    e("v_exp_f32 v%d, -v%d" % (cT, cT))
    e("s_nop 0")
    e("v_add_f32 v%d, 1.0, v%d" % (cT, cT))
    e("v_rcp_f32 v%d, v%d" % (cT, cT))
    e("s_nop 0")
    e("v_cvt_pk_bf16_f32 v%d, v%d, v%d" % (cT, cT, cT))
    e("v_and_b32 v%d, s%d, v%d" % (cT + 1, sMASK, cT))
    e("v_sub_f32 v%d, 1.0, v%d" % (cT, cT + 1))
    e("v_cmp_gt_u32 vcc, 32, v1")
    e("v_cvt_pk_bf16_f32 v%d, v%d, v%d" % (cT, cT, cT))
    e("v_and_b32 v%d, s%d, v%d" % (cT, sMASK, cT))
    e("v_cndmask_b32 v%d, v%d, v%d, vcc" % (cGS, cT, cT + 1))
    stamp(5)
    e("s_mov_b32 exec_hi, 0")
    e("s_barrier")
    for w in range(4):
        e("ds_read_b128 %s, v%d offset:%d" % (vr(cU + 4 * w, 4), cC, L_QP + 512 * w))
    stamp(6)
    e("s_waitcnt lgkmcnt(0)")
    sum4_and_tag(cU, [cTG + k for k in range(4)], cT + 8)
    e("global_store_dwordx4 v%d, %s, %s %s" % (cFP, vr(cT + 8, 4), sp(sWS), P.get("fsflag", "sc1")))
    e("s_mov_b64 exec, -1")
    stamp(7)
    e("s_cmp_ge_u32 s2, 128")
    e("s_cbranch_scc1 L_fin")
    if P["fwait"]:
        e("s_sleep %d" % P["fwait"])
    e("s_mov_b32 s%d, 0" % sSPIN)
    e("s_mov_b64 vcc, -1")
    for _ in range(P["fdepth"] - 1):
        e("global_load_dwordx4 %s, v%d, %s %s" % (vr(cFU, 4), cFG, sp(sWS), P.get("fflag", "sc1")))
        e("s_sleep 1")
    m.lab("L_pollf")
    if P["fsleep"]:
        e("s_sleep %d" % P["fsleep"])
    e("s_mov_b64 exec, vcc")
    e("global_load_dwordx4 %s, v%d, %s %s" % (vr(cFU, 4), cFG, sp(sWS), P.get("fflag", "sc1")))
    e("s_mov_b64 exec, -1")
    e("s_add_u32 s%d, s%d, 1" % (sSPIN, sSPIN))
    e("s_waitcnt vmcnt(%d)" % (P["fdepth"] - 1))
    for d in range(4):
        e("v_xor_b32 v%d, v%d, v%d" % (cU + d, cFU + d, cTG + d))
    e("v_or3_b32 v%d, v%d, v%d, v%d" % (cT, cU, cU + 1, cU + 2))
    e("v_bitop3_b32 v%d, v%d, v%d, s%d bitop3:0x54" % (cT, cT, cU + 3, sTM))
    e("v_cmp_ne_u32 vcc, 0, v%d" % cT)
    e("s_cbranch_vccz L_gotf")
    e("s_cmp_lt_u32 s%d, %d" % (sSPIN, P["spin"]))
    e("s_cbranch_scc1 L_pollf")
    m.lab("L_gotf")
    stamp(8)
    e("v_permlane16_swap_b32 v%d, v%d" % (cU + 0, cU + 1))
    e("v_permlane16_swap_b32 v%d, v%d" % (cU + 2, cU + 3))
    e("v_add_f32 v%d, v%d, v%d" % (cU + 0, cU + 0, cU + 1))
    e("v_add_f32 v%d, v%d, v%d" % (cU + 2, cU + 2, cU + 3))
    e("s_nop 0")
    e("v_add_f32_dpp v%d, v%d, v%d row_ror:8 row_mask:0xf bank_mask:0x3" % (cT, cU + 0, cU + 0))
    e("v_add_f32_dpp v%d, v%d, v%d row_ror:8 row_mask:0xf bank_mask:0xc" % (cT, cU + 2, cU + 2))
    for md in ("quad_perm:[1,0,3,2]", "quad_perm:[2,3,0,1]", "row_half_mirror"):
        e("s_nop 1")
        e("v_add_f32_dpp v%d, v%d, v%d %s %s" % (cT, cT, cT, md, DPPALL))
    e("v_cvt_pk_bf16_f32 v%d, v%d, v%d" % (cT, cT, cT))
    e("v_and_b32 v%d, s%d, v%d" % (cT, sMASK, cT))
    e("v_mul_f32 v%d, v%d, v%d" % (cT, cT, cGS))
    e("v_cvt_pk_bf16_f32 v%d, v%d, v%d" % (cT, cT, cT))
    e("v_and_b32 v%d, s%d, v%d" % (cT, sMASK, cT))
    e("v_mov_b32 v%d, v%d" % (cT + 1, cT))
    e("s_nop 1")
    e("v_permlane32_swap_b32 v%d, v%d" % (cT, cT + 1))
    e("v_add_f32 v%d, v%d, v%d" % (cT, cT, cT + 1))
    e("v_cvt_pk_bf16_f32 v%d, v%d, v%d" % (cT, cT, cT))
    e("s_mov_b64 exec, 0x01010101")
    e("global_store_short v%d, v%d, %s %s" % (cOA, cT, sp(sOUT), P.get("outflag", "")))
    e("s_cmp_lg_u32 s2, 0")
    e("s_cbranch_scc1 L_fin")
    e("s_mov_b64 exec, 1")
    e("v_mov_b32 v%d, s%d" % (cT + 2, sTAG))
    e("v_mov_b32 v%d, 0" % (cT + 3))
    e("global_store_dword v%d, v%d, %s offset:%d" % (cT + 3, cT + 2, sp(sWS), WS_EPOCH))
    m.lab("L_fin")
    stamp(9)
    if P.get("padto"):
        m.lab("L_pad")
        e("s_memrealtime s[96:97]")
        e("s_waitcnt lgkmcnt(0)")
        e("s_sub_u32 s96, s96, s98")
        e("s_cmp_lt_u32 s96, %d" % P["padto"])
        e("s_cbranch_scc1 L_pad")
    dump_stamps(10)
    m.lab("L_end")
    e("s_endpgm")

    hdr = open("cdna_kernels/%s.s.ref" % NAME).read().split("; Override launch")[0]
    out = hdr
    out += "; @launch grid=(256,1,1) block=(320,1,1) lds=%d\n" % P["lds"]
    out += '.amdgcn_target "amdgcn-amd-amdhsa--gfx950"\n.text\n.globl %s_kernel\n.p2align 8\n.type %s_kernel,@function\n%s_kernel:\n' % (NAME, NAME, NAME)
    out += "\n".join(m.L) + "\n"
    out += """.section .rodata,"a"
.p2align 6
.amdhsa_kernel %s_kernel
  .amdhsa_next_free_vgpr 256
  .amdhsa_next_free_sgpr 102
  .amdhsa_accum_offset 256
  .amdhsa_group_segment_fixed_size 0
  .amdhsa_kernarg_size 112
  .amdhsa_user_sgpr_count 2
  .amdhsa_user_sgpr_kernarg_segment_ptr 1
  .amdhsa_system_sgpr_workgroup_id_x 1
.end_amdhsa_kernel
""" % NAME
    return out


if __name__ == "__main__":
    kw = {}
    outp = sys.argv[1]
    for a in sys.argv[2:]:
        k, v = a.split("=")
        kw[k] = int(v) if v.lstrip("-").isdigit() else v
    open(outp, "w").write(gen(**kw))
```

```python
import sys

NAME = "gated_mix__sliding_block_cached__sliding_block_cached__decode"

WS_EPOCH = 0x0
WS_ML = 0x10000
WS_Q = 0x20000
WS_F = 0x40000
WS_QB = 0x60000
WS_O = 0x80000
WS_STAMP = 0x300000
TB = 10
TM = (1 << TB) - 1

L_QP = 0x0
L_Q = 0x800
L_MX = 0xC00
L_CNT = 0xC40
L_LOC = 0xC44
L_LS = 0xC80
L_OP = 0x1000

DEF = dict(
    stamps=0, window=6, nv_before=11, ldflag="nt", lds=90112, spin=200000,
    nfast=12, wo_win=10, swz=1, wo_early=0, n_b3=2, tlbwarm=0, omask=1, osleep=0, fsleep=0, fwait=7, spt=0, ptflag="sc1", n_late=0, ptrig=-1, fdepth=1, odepth=2, fpre=1, lag=8, b2pos=16, n_qk=0, c_lag=1,
)


class Em:
    def __init__(self):
        self.L = []
        self.q = []

    def e(self, s):
        self.L.append("    " + s)

    def lab(self, s):
        self.L.append(s + ":")

    def c(self, s):
        self.L.append("    ; " + s)

    def vm(self, name, s):
        self.e(s)
        self.q.append(name)

    def wait(self, name):
        if name not in self.q:
            return
        i = self.q.index(name)
        n = len(self.q) - 1 - i
        self.e("s_waitcnt vmcnt(%d)" % n)
        self.q = self.q[i + 1:]

    def window(self, w):
        if w and len(self.q) >= w:
            self.wait(self.q[len(self.q) - w])


def vr(a, n=1):
    return "v%d" % a if n == 1 else "v[%d:%d]" % (a, a + n - 1)


def sp(a):
    return "s[%d:%d]" % (a, a + 1)


DPPALL = "row_mask:0xf bank_mask:0xf"


def gen(**kw):
    P = dict(DEF)
    P.update(kw)
    W = P["window"]
    FL = P["ldflag"]
    ST = P["stamps"]
    m = Em()
    e = m.e

    sX = 4
    sPC = 6
    sK, sV, sWQ, sWO = 8, 10, 12, 14
    sGATE, sOUT, sDBG, sWS = 16, 18, 20, 22
    sKVH, sBR, sJ, sWAVE, sGRP = 24, 25, 26, 27, 28
    sT0, sT1, sT2 = 29, 30, 31
    sTAG, sTM, sMASK, sSPIN = 32, 33, 34, 35
    sSC = 36
    sL2E = 38
    sLOC = 40
    sSAVE = 42
    sHI = 50
    sSTAMP = 70

    incomm = [False]

    def stamp(idx):
        if ST:
            e("s_memrealtime s[%d:%d]" % (sSTAMP + 2 * idx, sSTAMP + 2 * idx + 1))
        if incomm[0] and P.get("padref") == idx:
            e("s_memrealtime s[98:99]")

    def dump_stamps(n):
        if not ST:
            return
        e("s_waitcnt lgkmcnt(0)")
        if P.get("late_dump", 1):
            lab = "L_ld%d" % len(m.L)
            m.lab(lab)
            e("s_sleep 8")
            e("s_memrealtime s[44:45]")
            e("s_waitcnt lgkmcnt(0)")
            e("s_sub_u32 s44, s44, s%d" % sSTAMP)
            e("s_cmp_lt_u32 s44, 2000")
            e("s_cbranch_scc1 " + lab)
        e("s_mov_b64 exec, 1")
        for i in range(n):
            e("v_mov_b32 v%d, s%d" % (8 + i, sSTAMP + 2 * i))
        for i in range(n, 16):
            e("v_mov_b32 v%d, 0" % (8 + i))
        e("s_lshl_b32 s%d, s2, 3" % sT0)
        e("s_add_u32 s%d, s%d, s%d" % (sT0, sT0, sWAVE))
        e("s_lshl_b32 s%d, s%d, 6" % (sT0, sT0))
        e("s_add_u32 s%d, s%d, 0x%x" % (sT0, sT0, WS_STAMP))
        e("v_mov_b32 v1, s%d" % sT0)
        for i in range(4):
            e("global_store_dwordx4 v1, v[%d:%d], %s offset:%d" % (8 + 4 * i, 11 + 4 * i, sp(sWS), 16 * i))

    def make_tags(v):
        e("s_add_u32 s%d, s%d, 0x9E3779B9" % (sTAG, sTAG))
        for k, sh in enumerate((0, 10, 20, 22)):
            e("s_bfe_u32 s%d, s%d, 0x%x" % (sT0, sTAG, (TB << 16) | sh))
            e("v_mov_b32 v%d, s%d" % (v + k, sT0))
        e("s_mov_b32 s%d, 0x%x" % (sTM, 0xffffffff ^ TM))

    def allreduce_groups(v, tmp, op):
        e("v_mov_b32 v%d, v%d" % (tmp, v))
        e("s_nop 1")
        e("v_permlane32_swap_b32 v%d, v%d" % (v, tmp))
        e("%s v%d, v%d, v%d" % (op, v, v, tmp))
        e("v_mov_b32 v%d, v%d" % (tmp, v))
        e("s_nop 1")
        e("v_permlane16_swap_b32 v%d, v%d" % (v, tmp))
        e("%s v%d, v%d, v%d" % (op, v, v, tmp))

    def row_allreduce(v, op):
        for r in (8, 4, 2, 1):
            e("s_nop 1")
            e("%s_dpp v%d, v%d, v%d row_ror:%d %s" % (op, v, v, v, r, DPPALL))

    def sum4_and_tag(t, tg, dst, rnd=False):
        for k in (0, 2):
            e("v_pk_add_f32 %s, %s, %s" % (vr(t + k, 2), vr(t + k, 2), vr(t + 4 + k, 2)))
            e("v_pk_add_f32 %s, %s, %s" % (vr(t + 8 + k, 2), vr(t + 8 + k, 2), vr(t + 12 + k, 2)))
        for k in (0, 2):
            e("v_pk_add_f32 %s, %s, %s" % (vr(t + k, 2), vr(t + k, 2), vr(t + 8 + k, 2)))
        if rnd:
            for k in range(4):
                e("v_add_u32 v%d, 0x%x, v%d" % (t + k, 1 << (TB - 1), t + k))
        if tg:
            for k in range(4):
                e("v_and_or_b32 v%d, v%d, s%d, v%d" % (dst + k, t + k, sTM, tg[k]))

    def check_embedded(u, n, tg, acc):
        for k in range(n):
            e("v_xor_b32 v%d, v%d, v%d" % (u + k, u + k, tg + (k & 3)))
        e("v_or3_b32 v%d, v%d, v%d, v%d" % (acc, u, u + 1, u + 2))
        k = 3
        while k < n:
            if k + 1 < n:
                e("v_or3_b32 v%d, v%d, v%d, v%d" % (acc, acc, u + k, u + k + 1))
                k += 2
            else:
                e("v_or_b32 v%d, v%d, v%d" % (acc, acc, u + k))
                k += 1
        e("v_and_b32 v%d, 0x%x, v%d" % (acc, TM, acc))
        e("v_cmp_ne_u32 vcc, 0, v%d" % acc)

    def store_loc(name, text):
        e("s_cmp_lg_u32 s%d, 0" % sLOC)
        e("s_cbranch_scc1 L_wt_" + name)
        e(text)
        e("s_branch L_sd_" + name)
        m.lab("L_wt_" + name)
        e(text + " sc1")
        m.lab("L_sd_" + name)
        m.q.append(name)

    e("s_and_b32 s%d, s2, 8" % sT0)
    e("s_mul_i32 s%d, s%d, 5" % (sT0, sT0))
    e("s_load_dwordx8 s[8:15], s[0:1], s%d offset:0x8" % sT0)
    e("s_load_dwordx2 %s, s[0:1], 0" % sp(sX))
    stamp(0)
    e("v_readfirstlane_b32 s%d, v0" % sWAVE)
    e("s_cmpk_ge_u32 s2, 0x100")
    e("s_cbranch_scc1 L_end")
    e("v_and_b32 v4, 15, v0")
    e("s_and_b32 s%d, s2, 7" % sKVH)
    e("s_cmpk_lt_u32 s%d, 0x100" % sWAVE)
    e("s_cbranch_scc1 L_comp")
    e("s_getpc_b64 %s" % sp(sPC))
    m.lab("L_pc")
    e("v_lshlrev_b32 v5, 7, v0")
    e("v_min_u32 v5, L_end-L_pc+0x8000, v5")
    e("s_sub_u32 s%d, s%d, 0x8000" % (sPC, sPC))
    e("s_subb_u32 s%d, s%d, 0" % (sPC + 1, sPC + 1))
    e("global_load_dword v6, v5, %s %s" % (sp(sPC), P.get("cpflag", "")))
    e("s_branch L_comm")
    m.lab("L_comp")

    vOK, vOV, vOO, vOX = 6, 7, 8, 9
    vMK = 10
    vMP = 14
    vAD = 16
    vZERO, vONE = 18, 19
    vA_OW, vA_OR, vA_OG, vA_OP = 20, 21, 22, 23
    vX = 24
    vTG = 24
    vQ = 28
    vACC = 32
    vT = 40
    vS = 56
    vWQ = 72
    vAX = 104
    vWO = 104
    vK = 136
    vVregs = [200 + 4 * i for i in range(14)] + [vWQ + 0, vWQ + 4]
    vD = [vWQ + 8 + 4 * i for i in range(4)]
    vA_QP, vA_W, vA_H, vMH = vWQ + 24, vWQ + 25, vWQ + 26, vWQ + 27

    e("s_lshr_b32 s%d, s2, 6" % sT1)
    e("s_lshl2_add_u32 s%d, s%d, s%d" % (sT0, sKVH, sT1))
    e("s_and_b32 s%d, s2, 48" % sT1)
    e("v_lshrrev_b32 v6, 4, v0")
    e("v_lshl_or_b32 v5, s%d, 4, v4" % sT0)
    e("v_add_u32 v6, s%d, v6" % sT1)
    e("s_movk_i32 s%d, 0x2000" % sT1)
    e("v_lshlrev_b32 v%d, 4, v6" % vOX)
    e("v_lshl_or_b32 v5, v6, 12, v5")
    e("v_lshlrev_b32 v%d, 4, v5" % vT)
    for i in range(1, 8):
        e("v_add_u32 v%d, s%d, v%d" % (vT + i, sT1, vT + i - 1))
    e("s_waitcnt lgkmcnt(0)")
    m.vm("x", "global_load_dwordx4 %s, v%d, %s %s" % (vr(vX, 4), vOX, sp(sX), P.get("xflag", "")))
    for i in range(8):
        m.vm("wq%d" % i, "global_load_dwordx4 %s, v%d, %s %s" % (vr(vWQ + 4 * i, 4), vT + i, sp(sWQ), FL))
    m.lab("L_first")
    stamp(1)

    def decode():
        e("s_load_dwordx8 s[16:23], s[0:1], 80")
        if P.get("padto") and not P.get("padref"):
            e("s_memrealtime s[98:99]")
        e("v_lshrrev_b32 v2, 6, v0")
        e("v_and_b32 v1, 63, v0")
        e("v_bfe_u32 v3, v0, 4, 2")
        e("s_lshr_b32 s%d, s%d, 6" % (sWAVE, sWAVE))
        e("s_bfe_u32 s%d, s2, 0x10003" % sBR)
        e("s_lshr_b32 s%d, s2, 4" % sJ)
        e("s_lshl1_add_u32 s%d, s%d, s%d" % (sGRP, sKVH, sBR))

    decode()
    e("s_lshl_b32 s%d, s%d, 8" % (sT0, sT0))
    e("s_lshl_b32 s%d, s%d, 24" % (sT1, sKVH))
    e("s_lshl_b32 s%d, s%d, 12" % (sT2, sJ))
    e("s_add_u32 s%d, s%d, s%d" % (sT1, sT1, sT2))
    e("s_add_u32 s%d, s%d, 0xF00000" % (sT1, sT1))
    e("v_bfe_u32 v%d, v1, 2, 2" % vOK)
    e("v_lshlrev_b32 v%d, 8, v%d" % (vOK, vOK))
    e("v_lshl_add_u32 v%d, v3, 6, v%d" % (vOK, vOK))
    e("v_and_b32 v5, 3, v1")
    e("v_lshl_add_u32 v%d, v5, 4, v%d" % (vOK, vOK))
    e("v_lshl_add_u32 v%d, v2, 10, v%d" % (vOK, vOK))
    e("v_add_u32 v%d, s%d, v%d" % (vOK, sT1, vOK))
    e("v_lshlrev_b32 v%d, 4, v0" % vOV)
    e("v_add_u32 v%d, s%d, v%d" % (vOV, sT1, vOV))
    e("s_lshl_b32 s%d, s%d, 9" % (sT0, sT0))
    e("s_and_b32 s%d, s%d, 3" % (sT1, sJ))
    e("s_lshl_b32 s%d, s%d, 8" % (sT1, sT1))
    e("s_add_u32 s%d, s%d, s%d" % (sT0, sT0, sT1))
    e("v_and_b32 v5, 1, v3")
    e("v_lshlrev_b32 v%d, 11, v5" % vOO)
    e("v_lshrrev_b32 v5, 1, v3")
    e("v_lshl_add_u32 v%d, v5, 10, v%d" % (vOO, vOO))
    e("v_lshl_add_u32 v%d, v2, 15, v%d" % (vOO, vOO))
    e("v_lshl_add_u32 v%d, v4, 4, v%d" % (vOO, vOO))
    e("v_add_u32 v%d, s%d, v%d" % (vOO, sT0, vOO))
    e("s_waitcnt lgkmcnt(0)")
    e("s_load_dword s%d, %s, 0x%x" % (sTAG, sp(sWS), WS_EPOCH))

    def swz(i):
        return (i << 16) | (((i * P["swz"]) & 15) << 12)

    nad = [0]

    def ld_x(name, dst, off, const, base):
        if const:
            a = vAD + (nad[0] & 1)
            nad[0] += 1
            e("v_xor_b32 v%d, 0x%x, v%d" % (a, const, off))
        else:
            a = off
        m.vm(name, "global_load_dwordx4 %s, v%d, %s %s" % (vr(dst, 4), a, sp(base), FL))

    def ld_k(i):
        ld_x("k%d" % i, vK + 4 * i, vOK, swz(i), sK)

    def ld_v(i):
        ld_x("v%d" % i, vVregs[i], vOV, swz(i), sV)

    def ld_wo(i):
        ld_x("wo%d" % i, vWO + 4 * i, vOO, i << 12, sWO)

    lag = P["lag"]
    KS = [("k", i) for i in range(16)]
    VS = [("v", i) for i in range(16)]
    WS_ = [("wo", i) for i in range(8)]
    rest = KS[:lag] + [x for p in zip(KS[lag:], VS[:16 - lag]) for x in p] + WS_[:P["wo_early"]] + VS[16 - lag:] + WS_[P["wo_early"]:]

    if P.get("seq"):
        sq = P["seq"]
        assert sq.count("k") == 16 and sq.count("v") == 16 and sq.count("o") == 8, sq
        its = {"k": iter(KS), "v": iter(VS), "o": iter(WS_)}
        rest = [next(its[ch]) for ch in sq]

    def ld_next():
        kind, i = rest.pop(0)
        {"k": ld_k, "v": ld_v, "wo": ld_wo}[kind](i)

    def paced(n):
        for _ in range(n):
            m.window(W)
            ld_next()

    m.c("masks")
    e("v_and_b32 v5, 1, v1")
    e("v_lshlrev_b32 v5, 4, v5")
    e("s_mov_b32 s%d, 0xffff" % sT0)
    e("v_lshlrev_b32 v5, v5, s%d" % sT0)
    e("v_bfe_u32 v%d, v1, 1, 2" % (vT + 8))
    for d in range(4):
        e("v_cmp_eq_u32 vcc, %d, v%d" % (d, vT + 8))
        e("s_nop 1")
        e("v_cndmask_b32 v%d, 0, v5, vcc" % (vMK + d))
    e("v_or_b32 v%d, v%d, v%d" % (vMP + 0, vMK + 0, vMK + 2))
    e("v_or_b32 v%d, v%d, v%d" % (vMP + 1, vMK + 1, vMK + 3))
    e("s_mov_b32 s%d, 0x3db504f3" % sSC)
    e("s_mov_b32 s%d, 0x3db504f3" % (sSC + 1))
    e("s_mov_b32 s%d, 0x3fb8aa3b" % sL2E)
    e("s_mov_b32 s%d, 0x3fb8aa3b" % (sL2E + 1))
    e("s_mov_b32 s%d, 0xffff0000" % sMASK)
    e("s_mov_b32 s%d, 0x01000100" % sT0)
    e("s_mov_b32 s%d, 0x03020302" % sT1)
    e("v_mov_b32 v%d, 0" % vZERO)
    e("v_mov_b32 v%d, 1" % vONE)

    m.c("q projection")
    m.wait("x")
    for i in range(8):
        e("v_perm_b32 v%d, v%d, v%d, s%d" % (vT + 8 + i, vX + i // 2, vX + i // 2, sT1 if i & 1 else sT0))
    for i in range(8):
        for d in range(4):
            e("v_and_b32 v%d, v%d, v%d" % (vAX + 4 * i + d, vT + 8 + i, vMK + d))
    for i in range(8):
        m.wait("wq%d" % i)
        e("v_mfma_f32_16x16x32_bf16 %s, %s, %s, %s" % (vr(vACC, 4), vr(vAX + 4 * i, 4), vr(vWQ + 4 * i, 4), "0" if i == 0 else vr(vACC, 4)))
        if len(m.q) < W:
            ld_next()
    stamp(2)
    e("v_and_b32 v%d, 1, v3" % vA_QP)
    e("v_lshlrev_b32 v%d, 4, v%d" % (vA_QP, vA_QP))
    e("v_lshl_add_u32 v%d, v4, 5, v%d" % (vA_QP, vA_QP))
    e("v_lshl_add_u32 v%d, v2, 9, v%d" % (vA_QP, vA_QP))
    e("s_mov_b32 exec_hi, 0")
    e("s_nop 2")
    e("ds_write_b128 v%d, %s offset:%d" % (vA_QP, vr(vACC, 4), L_QP))
    e("s_mov_b64 exec, -1")
    e("s_waitcnt lgkmcnt(0)")
    e("s_barrier")
    paced(2)
    make_tags(vTG)
    paced(1)

    m.c("addresses used later")
    e("v_lshlrev_b32 v%d, 11, v2" % vA_OW)
    e("v_lshl_add_u32 v%d, v1, 4, v%d" % (vA_OW, vA_OW))
    e("v_and_b32 v5, 1, v1")
    e("v_lshlrev_b32 v%d, 10, v5" % vA_OR)
    e("v_lshl_add_u32 v%d, v2, 8, v%d" % (vA_OR, vA_OR))
    e("v_bfe_u32 v5, v1, 1, 4")
    e("v_lshl_add_u32 v%d, v5, 4, v%d" % (vA_OR, vA_OR))
    paced(1)
    e("s_lshl_b32 s%d, s%d, 15" % (sT0, sGRP))
    e("s_add_u32 s%d, s%d, 0x%x" % (sT0, sT0, WS_O))
    e("s_lshl_b32 s%d, s%d, 7" % (sT1, sJ))
    e("s_add_u32 s%d, s%d, s%d" % (sT1, sT1, sT0))
    e("v_bfe_u32 v%d, v1, 3, 2" % vA_OG)
    e("v_lshl_add_u32 v%d, v2, 2, v%d" % (vA_OG, vA_OG))
    e("v_lshlrev_b32 v%d, 11, v%d" % (vA_OG, vA_OG))
    e("v_and_b32 v5, 7, v1")
    e("v_lshl_add_u32 v%d, v5, 4, v%d" % (vA_OG, vA_OG))
    e("v_add_u32 v%d, s%d, v%d" % (vA_OG, sT1, vA_OG))
    e("s_and_b32 s%d, s%d, 12" % (sT1, sJ))
    e("s_lshl_b32 s%d, s%d, 11" % (sT1, sT1))
    e("s_add_u32 s%d, s%d, s%d" % (sT1, sT1, sT0))
    e("v_add_u32 v%d, s%d, v%d" % (vA_OP, sT1, vA_OW))
    e("s_mov_b32 s%d, 0" % sHI)
    e("s_mov_b32 s%d, -1" % (sHI + 1))
    e("s_lshl_b32 s%d, s%d, 10" % (sT0, sGRP))
    e("s_add_u32 s%d, s%d, 0x%x" % (sT0, sT0, WS_ML))
    e("s_lshl_b32 s%d, s%d, 4" % (sT1, sJ))
    e("s_add_u32 s%d, s%d, s%d" % (sT1, sT1, sT0))
    e("v_lshlrev_b32 v5, 8, v2")
    e("v_add_u32 v5, s%d, v5" % sT1)
    e("v_cndmask_b32 v%d, v%d, v5, %s" % (vA_OG, vA_OG, sp(sHI)))
    e("s_lshr_b32 s%d, s%d, 2" % (sT1, sJ))
    e("s_lshl_b32 s%d, s%d, 8" % (sT1, sT1))
    e("s_add_u32 s%d, s%d, s%d" % (sT1, sT1, sT0))
    e("v_lshrrev_b32 v%d, 3, v1" % vA_W)
    e("v_and_b32 v5, 1, v1")
    e("v_lshl_add_u32 v%d, v5, 3, v%d" % (vA_W, vA_W))
    e("v_lshlrev_b32 v%d, 4, v%d" % (vA_W, vA_W))
    e("v_add_u32 v%d, s%d, v%d" % (vA_W, sT1, vA_W))
    e("v_lshlrev_b32 v%d, 4, v2" % vA_H)

    n_total = 40
    while n_total - len(rest) - len(m.q) < P["b2pos"]:
        paced(1)
    while len(m.q) < P["nv_before"] and rest:
        ld_next()
    stamp(3)
    e("s_barrier")
    e("v_lshlrev_b32 v5, 4, v1")
    e("ds_read_b128 %s, v5 offset:%d" % (vr(vQ, 4), L_Q))
    e("ds_read_b32 v%d, v%d offset:%d" % (vT, vZERO, L_LOC))
    stamp(4)
    e("s_waitcnt lgkmcnt(0)")
    e("v_readfirstlane_b32 s%d, v%d" % (sLOC, vT))

    late = []
    for _ in range(P["n_late"]):
        late.insert(0, rest.pop())
    WIN = P["wo_win"]

    def more(n=1):
        for _ in range(n):
            if rest:
                ld_next()

    def feed_wait(kind, i):
        name = "%s%d" % (kind, i)
        while (kind, i) in rest:
            m.window(WIN)
            ld_next()
        while rest and name in m.q and m.q.index(name) > 0:
            m.window(WIN)
            if len(m.q) < WIN:
                ld_next()
        m.wait(name)

    def top_up():
        while rest and len(m.q) < WIN:
            ld_next()

    m.c("scores: QK, round to bf16, scale, round to bf16, running max")
    vM, vM2, vA1, vA2 = vT + 8, vT + 10, vT + 12, vT + 13
    e("v_lshrrev_b32 v%d, 2, v4" % vA2)
    e("v_lshlrev_b32 v%d, 4, v%d" % (vA2, vA2))
    e("v_lshl_add_u32 v%d, v2, 2, v%d" % (vA1, vA2))
    qp = ["[0,0,0,0]", "[1,1,1,1]", "[2,2,2,2]", "[3,3,3,3]"]

    def round4(b):
        for i in (4 * b, 4 * b + 2):
            e("v_cvt_pk_bf16_f32 v%d, v%d, v%d" % (vT + (i & 2) // 2, vS + i, vS + i + 1))
        for i in (4 * b, 4 * b + 2):
            e("v_lshlrev_b32 v%d, 16, v%d" % (vS + i, vT + (i & 2) // 2))
            e("v_and_b32 v%d, s%d, v%d" % (vS + i + 1, sMASK, vT + (i & 2) // 2))

    for b in range(4):
        for t in range(4):
            i = 4 * b + t
            feed_wait("k", i)
            e("v_mfma_f32_16x16x32_bf16 %s, %s, %s, 0" % (vr(vD[t], 4), vr(vK + 4 * i, 4), vr(vQ, 4)))
        n0 = len(m.L)
        top_up()
        more(P["n_qk"])
        used = len(m.L) - n0
        if used < 5:
            e("s_nop %d" % (4 - used))
        for u in range(4):
            for t in range(4):
                i = 4 * b + t
                if u == 0:
                    e("v_mov_b32_dpp v%d, v%d quad_perm:%s %s" % (vS + i, vD[t], qp[0], DPPALL))
                else:
                    e("v_add_f32_dpp v%d, v%d, v%d quad_perm:%s %s" % (vS + i, vD[t] + u, vS + i, qp[u], DPPALL))
        round4(b)
        for i in (4 * b, 4 * b + 2):
            e("v_pk_mul_f32 %s, %s, %s" % (vr(vS + i, 2), vr(vS + i, 2), sp(sSC)))
        round4(b)
        if b == 0:
            e("v_max3_f32 v%d, v%d, v%d, v%d" % (vM, vS, vS + 1, vS + 2))
            e("v_max_f32 v%d, v%d, v%d" % (vM, vM, vS + 3))
        else:
            e("v_max3_f32 v%d, v%d, v%d, v%d" % (vM, vM, vS + 4 * b, vS + 4 * b + 1))
            e("v_max3_f32 v%d, v%d, v%d, v%d" % (vM, vM, vS + 4 * b + 2, vS + 4 * b + 3))
    allreduce_groups(vM, vM2, "v_max_f32")
    e("ds_write_b32 v%d, v%d offset:%d" % (vA1, vM, L_MX))
    e("s_waitcnt lgkmcnt(0)")
    e("s_barrier")
    e("ds_read_b128 %s, v%d offset:%d" % (vr(vT, 4), vA2, L_MX))
    e("ds_read_b128 %s, v%d offset:%d" % (vr(vT + 4, 4), vA_H, L_MX))
    more(P["n_b3"])
    e("s_waitcnt lgkmcnt(0)")
    e("v_max3_f32 v%d, v%d, v%d, v%d" % (vM, vT, vT + 1, vT + 2))
    e("v_max3_f32 v%d, v%d, v%d, v%d" % (vMH, vT + 4, vT + 5, vT + 6))
    e("v_max_f32 v%d, v%d, v%d" % (vM, vM, vT + 3))
    e("v_max_f32 v%d, v%d, v%d" % (vMH, vMH, vT + 7))
    e("v_mul_f32 v%d, s%d, v%d" % (vM2, sL2E, vM))
    e("v_mul_f32 v%d, s%d, v%d" % (vM2 + 1, sL2E, vM))
    stamp(5)
    m.c("exp, P operands and PV, software pipelined over pairs of key sets")
    vPA = vK
    vL = vT

    def stA(p):
        i = 2 * p
        e("v_pk_fma_f32 %s, %s, %s, %s neg_lo:[0,0,1] neg_hi:[0,0,1]" % (vr(vS + i, 2), vr(vS + i, 2), sp(sL2E), vr(vM2, 2)))
        e("v_exp_f32 v%d, v%d" % (vS + i, vS + i))
        e("v_exp_f32 v%d, v%d" % (vS + i + 1, vS + i + 1))

    def stB(p):
        for i in (2 * p, 2 * p + 1):
            e("v_cvt_pk_bf16_f32 v%d, v%d, v%d" % (vPA + 2 * i, vS + i, vS + i))
        for i in (2 * p, 2 * p + 1):
            e("v_and_b32 v%d, v%d, v%d" % (vPA + 2 * i + 1, vPA + 2 * i, vMP + 1))
            e("v_and_b32 v%d, v%d, v%d" % (vPA + 2 * i, vPA + 2 * i, vMP + 0))
        if p == 1:
            e("v_pk_add_f32 %s, %s, %s" % (vr(vL, 2), vr(vS, 2), vr(vS + 2, 2)))
        elif p > 1:
            e("v_pk_add_f32 %s, %s, %s" % (vr(vL, 2), vr(vL, 2), vr(vS + 2 * p, 2)))

    def stC(p):
        for i in (2 * p, 2 * p + 1):
            feed_wait("v", i)
            for w in range(2):
                e("v_mfma_f32_16x16x16_bf16 %s, %s, %s, %s" % (vr(vACC + 4 * w, 4), vr(vPA + 2 * i, 2), vr(vVregs[i] + 2 * w, 2), "0" if i == 0 else vr(vACC + 4 * w, 4)))
            top_up()

    cl = P["c_lag"]
    def capture(fn, *a):
        keep = m.L
        m.L = []
        fn(*a)
        got, m.L = m.L, keep
        return got

    def weave(valu, mf):
        chunks, cur = [], []
        for ln in mf:
            cur.append(ln)
            if "v_mfma" in ln:
                chunks.append(cur)
                cur = []
        if cur:
            chunks[-1].extend(cur)
        n = len(chunks)
        per = -(-len(valu) // n)
        for k in range(n):
            m.L.extend(chunks[k])
            m.L.extend(valu[k * per:(k + 1) * per])

    stA(0)
    for p in range(8):
        va = capture(stA, p + 1) if p + 1 < 8 else []
        vb = capture(stB, p)
        if p - cl >= 0:
            if cl == 1:
                m.L.extend(va[:2] if va else ["    s_nop 1"])
                va = va[2:]
            weave(va + vb, capture(stC, p - cl))
        else:
            m.L.extend(va + vb)
    e("v_add_f32 v%d, v%d, v%d" % (vL, vL, vL + 1))
    allreduce_groups(vL, vL + 1, "v_add_f32")
    e("ds_write_b32 v%d, v%d offset:%d" % (vA1, vL, L_LS))
    for p in range(max(0, 8 - cl), 8):
        stC(p)
    while rest:
        ld_next()
    stamp(6)
    e("s_nop 6")
    e("ds_write_b128 v%d, %s offset:%d" % (vA_OW, vr(vACC, 4), L_OP))
    e("ds_write_b128 v%d, %s offset:%d" % (vA_OW, vr(vACC + 4, 4), L_OP + 1024))
    e("s_mov_b64 exec, 1")
    e("ds_add_u32 v%d, v%d offset:%d" % (vZERO, vONE, L_CNT))
    e("s_mov_b32 exec_lo, -1")
    e("s_mov_b32 exec_hi, 1")
    vLS = vS + 12
    m.lab("L_cnt")
    e("ds_read_b32 v5, v%d offset:%d" % (vZERO, L_CNT))
    for w in range(4):
        e("ds_read_b128 %s, v%d offset:%d" % (vr(vT + 4 * w, 4), vA_OR, L_OP + 2048 * w))
    e("ds_read_b128 %s, v%d offset:%d" % (vr(vLS, 4), vA_H, L_LS))
    e("s_waitcnt lgkmcnt(0)")
    e("v_cmp_ne_u32 vcc, 4, v5")
    e("s_cbranch_vccnz L_cnt")
    e("v_pk_add_f32 %s, %s, %s" % (vr(vLS, 2), vr(vLS, 2), vr(vLS + 2, 2)))
    sum4_and_tag(vT, None, vT)
    e("v_add_f32 v%d, v%d, v%d" % (vLS, vLS, vLS + 1))
    e("v_cndmask_b32 v%d, v%d, v%d, %s" % (vT, vT, vMH, sp(sHI)))
    e("v_cndmask_b32 v%d, v%d, v%d, %s" % (vT + 1, vT + 1, vLS, sp(sHI)))
    for k in (2, 3, 0, 1):
        e("v_and_or_b32 v%d, v%d, s%d, v%d" % (vT + k, vT + k, sTM, vTG + k))
    store_loc("o", "global_store_dwordx4 v%d, %s, %s" % (vA_OG, vr(vT, 4), sp(sWS)))
    stamp(7)
    e("s_mov_b64 exec, -1")
    rest.extend(late)
    while rest:
        ld_next()
    if ST and P.get("wostamp"):
        m.wait("wo7")
        stamp(10)
    if P["ptrig"] >= 0:
        m.wait("wo%d" % P["ptrig"])
    vO = vS
    vR = vK + 0
    sM = [44, 46, 48]
    e("s_mov_b32 s%d, 0" % sSPIN)
    for h in range(3):
        e("s_mov_b64 %s, -1" % sp(sM[h]))
    if P["odepth"] > 1:
        e("global_load_dwordx4 %s, v%d, %s sc1" % (vr(vR + 8, 4), vA_W, sp(sWS)))
        e("global_load_dwordx4 %s, v%d, %s sc1" % (vr(vR, 4), vA_OP, sp(sWS)))
        e("global_load_dwordx4 %s, v%d, %s offset:1024 sc1" % (vr(vR + 4, 4), vA_OP, sp(sWS)))
        e("s_waitcnt vmcnt(3)")
    m.lab("L_opoll")
    if P["osleep"]:
        e("s_sleep %d" % P["osleep"])
    e("s_mov_b64 exec, %s" % sp(sM[2]))
    e("global_load_dwordx4 %s, v%d, %s sc1" % (vr(vR + 8, 4), vA_W, sp(sWS)))
    e("s_mov_b64 exec, %s" % sp(sM[0]))
    e("global_load_dwordx4 %s, v%d, %s sc1" % (vr(vR, 4), vA_OP, sp(sWS)))
    e("s_mov_b64 exec, %s" % sp(sM[1]))
    e("global_load_dwordx4 %s, v%d, %s offset:1024 sc1" % (vr(vR + 4, 4), vA_OP, sp(sWS)))
    e("s_mov_b64 exec, -1")
    e("s_add_u32 s%d, s%d, 1" % (sSPIN, sSPIN))
    e("s_waitcnt vmcnt(%d)" % (3 if P["odepth"] > 1 else 0))
    m.q = []
    for k in list(range(8, 12)) + list(range(8)):
        e("v_xor_b32 v%d, v%d, v%d" % (vO + k, vR + k, vTG + (k & 3)))
    vM_, vL_, vE, vX1, vX2 = vO + 8, vO + 9, vT + 12, vT + 13, vT + 14
    e("v_max_f32_dpp v%d, v%d, v%d quad_perm:[1,0,3,2] %s" % (vX1, vM_, vM_, DPPALL))
    for h in range(3):
        e("v_or3_b32 v%d, v%d, v%d, v%d" % (vT + 8 + h, vO + 4 * h, vO + 4 * h + 1, vO + 4 * h + 2))
    e("v_max_f32_dpp v%d, v%d, v%d row_ror:8 %s" % (vX1, vX1, vX1, DPPALL))
    e("v_mov_b32 v%d, v%d" % (vX2, vX1))
    for h in range(3):
        e("v_bitop3_b32 v%d, v%d, v%d, s%d bitop3:0x54" % (vT + 8 + h, vT + 8 + h, vO + 4 * h + 3, sTM))
    e("v_permlane16_swap_b32 v%d, v%d" % (vX1, vX2))
    e("v_max_f32 v%d, v%d, v%d" % (vX1, vX1, vX2))
    e("v_mov_b32 v%d, v%d" % (vX2, vX1))
    for h in range(3):
        e("v_cmp_ne_u32 %s, 0, v%d" % (sp(sM[h]), vT + 8 + h))
    e("v_permlane32_swap_b32 v%d, v%d" % (vX1, vX2))
    e("v_max_f32 v%d, v%d, v%d" % (vX1, vX1, vX2))
    e("s_or_b64 %s, %s, %s" % (sp(sSAVE), sp(sM[0]), sp(sM[1])))
    e("v_sub_f32 v%d, v%d, v%d" % (vE, vM_, vX1))
    e("s_or_b64 %s, %s, %s" % (sp(sSAVE), sp(sSAVE), sp(sM[2])))
    e("v_mul_f32 v%d, s%d, v%d" % (vE, sL2E, vE))
    e("s_cbranch_scc0 L_ogot")
    e("s_cmp_lt_u32 s%d, %d" % (sSPIN, P["spin"]))
    e("s_cbranch_scc1 L_opoll")
    m.lab("L_ogot")
    e("v_exp_f32 v%d, v%d" % (vE, vE))
    stamp(8)
    e("s_nop 0")
    e("v_mul_f32 v%d, v%d, v%d" % (vX1, vE, vL_))
    for k in range(4):
        e("v_mul_f32_dpp v%d, v%d, v%d quad_perm:[0,0,2,2] %s" % (vO + k, vE, vO + k, DPPALL))
        if k == 2:
            e("v_add_f32_dpp v%d, v%d, v%d quad_perm:[1,0,3,2] %s" % (vX1, vX1, vX1, DPPALL))
    for k in range(4):
        e("v_fmac_f32_dpp v%d, v%d, v%d quad_perm:[1,1,3,3] %s" % (vO + k, vE, vO + 4 + k, DPPALL))
        if k == 1:
            e("v_add_f32_dpp v%d, v%d, v%d row_ror:8 %s" % (vX1, vX1, vX1, DPPALL))
    e("v_mov_b32 v%d, v%d" % (vX2, vX1))
    e("v_permlane32_swap_b32 v%d, v%d" % (vO + 0, vO + 1))
    e("v_permlane32_swap_b32 v%d, v%d" % (vO + 2, vO + 3))
    e("v_permlane32_swap_b32 v%d, v%d" % (vX1, vX2))
    e("v_add_f32 v%d, v%d, v%d" % (vO + 0, vO + 0, vO + 1))
    e("v_add_f32 v%d, v%d, v%d" % (vO + 2, vO + 2, vO + 3))
    e("v_add_f32 v%d, v%d, v%d" % (vX1, vX1, vX2))
    e("v_mov_b32 v%d, v%d" % (vX2, vX1))
    e("v_permlane16_swap_b32 v%d, v%d" % (vO + 0, vO + 2))
    e("v_add_f32 v%d, v%d, v%d" % (vO + 0, vO + 0, vO + 2))
    e("v_permlane16_swap_b32 v%d, v%d" % (vX1, vX2))
    e("v_add_f32 v%d, v%d, v%d" % (vX1, vX1, vX2))
    e("v_rcp_f32 v%d, v%d" % (vX1, vX1))
    e("v_add_f32_dpp v%d, v%d, v%d row_ror:8 %s" % (vO + 0, vO + 0, vO + 0, DPPALL))
    e("v_mul_f32 v%d, v%d, v%d" % (vO + 0, vO + 0, vX1))
    e("v_cvt_pk_bf16_f32 v%d, v%d, v%d" % (vO + 0, vO + 0, vO + 0))
    e("s_nop 1")
    vAI = vK + 32

    def build_ai(i):
        for d in range(4):
            e("v_and_b32_dpp v%d, v%d, v%d row_newbcast:%d %s" % (vAI + 4 * i + d, vO, vMK + d, i, DPPALL))

    build_ai(0)
    for i in range(8):
        if i < 7:
            build_ai(i + 1)
        else:
            e("s_nop 0")
        e("v_mfma_f32_16x16x32_bf16 %s, %s, %s, %s" % (vr(vACC, 4), vr(vAI + 4 * i, 4), vr(vWO + 4 * i, 4), "0" if i == 0 else vr(vACC, 4)))
    e("s_mov_b32 exec_hi, 0")
    e("s_nop 6")
    e("ds_write_b128 v%d, %s offset:%d" % (vA_QP, vr(vACC, 4), L_QP))
    e("s_waitcnt lgkmcnt(0)")
    e("s_barrier")
    stamp(9)
    dump_stamps(11)
    e("s_endpgm")

    m.q = []
    incomm[0] = True
    m.lab("L_comm")
    cA, cB, cC, cD = 7, 8, 9, 10
    cGS = 11
    cT = 12
    cQA, cQG, cML, cFP = 28, 29, 30, 31
    cU = 32
    cTG = 64
    cTQ = 68
    cOA, cFG, cOP = 69, 70, 71
    cPT = 72
    cFU = 84

    decode()
    e("v_mov_b32 v%d, 0" % cT)
    e("ds_write_b32 v%d, v%d offset:%d" % (cT, cT, L_CNT))
    e("v_lshlrev_b32 v%d, 4, v1" % cA)
    e("v_and_b32 v%d, 31, v1" % cC)
    e("v_lshlrev_b32 v%d, 4, v%d" % (cC, cC))
    e("s_lshl_b32 s%d, s%d, 13" % (sT0, sGRP))
    e("s_add_u32 s%d, s%d, 0x%x" % (sT0, sT0, WS_Q))
    e("s_lshl_b32 s%d, s%d, 9" % (sT1, sJ))
    e("s_add_u32 s%d, s%d, s%d" % (sT1, sT1, sT0))
    e("v_add_u32 v%d, s%d, v%d" % (cQA, sT1, cC))
    e("s_waitcnt lgkmcnt(0)")
    e("s_load_dword s%d, %s, 0x%x" % (sTAG, sp(sWS), WS_EPOCH))
    e("s_mov_b32 exec_hi, 0")
    e("global_load_dwordx4 %s, v%d, %s %s" % (vr(cPT, 4), cQA, sp(sWS), P.get("ptflag", "sc1")))
    if P["tlbwarm"]:
        e("s_lshl_b32 s%d, s%d, 24" % (sT1, sKVH))
        e("s_add_u32 s%d, s%d, 0xF00000" % (sT1, sT1))
        e("v_lshlrev_b32 v%d, 16, v1" % (cPT + 4))
        e("v_add_u32 v%d, s%d, v%d" % (cPT + 4, sT1, cPT + 4))
        e("s_lshl_b32 s%d, s%d, 2" % (sT1, sKVH))
        e("s_lshr_b32 s%d, s%d, 2" % (sT2, sJ))
        e("s_add_u32 s%d, s%d, s%d" % (sT1, sT1, sT2))
        e("s_lshl_b32 s%d, s%d, 17" % (sT1, sT1))
        e("v_lshlrev_b32 v%d, 16, v1" % (cPT + 5))
        e("v_add_u32 v%d, s%d, v%d" % (cPT + 5, sT1, cPT + 5))
        e("v_mov_b32 v%d, 0" % (cPT + 6))
        e("s_mov_b64 exec, 0x%x" % (0xffff if P["tlbwarm"] == 2 else 1))
        e("global_load_dword v%d, v%d, %s" % (cPT + 7, cPT + 4, sp(sK)))
        e("global_load_dword v%d, v%d, %s" % (cPT + 8, cPT + 4, sp(sV)))
        e("s_mov_b64 exec, 0x%x" % (3 if P["tlbwarm"] == 2 else 1))
        e("global_load_dword v%d, v%d, %s" % (cPT + 9, cPT + 5, sp(sWO)))
        e("s_mov_b64 exec, 1")
        e("global_load_dword v%d, v%d, %s" % (cPT + 10, cPT + 6, sp(sOUT)))
        e("global_load_dword v%d, v%d, %s" % (cPT + 11, cPT + 6, sp(sGATE)))
    e("s_mov_b64 exec, -1")
    e("v_lshrrev_b32 v%d, 2, v4" % cQG)
    e("v_lshlrev_b32 v%d, 11, v%d" % (cQG, cQG))
    e("v_lshl_add_u32 v%d, v3, 7, v%d" % (cQG, cQG))
    e("v_and_b32 v%d, 3, v1" % cT)
    e("v_lshl_add_u32 v%d, v%d, 5, v%d" % (cQG, cT, cQG))
    e("v_add_u32 v%d, s%d, v%d" % (cQG, sT0, cQG))
    e("v_add_u32 v%d, 0x%x, v%d" % (cD, WS_QB - WS_Q, cQA))
    e("s_mov_b32 s%d, 0x3fb8aa3b" % sL2E)
    e("s_mov_b32 s%d, 0xffff0000" % sMASK)
    e("s_getreg_b32 s%d, hwreg(HW_REG_XCC_ID, 0, 4)" % sT2)
    stamp(1)
    e("s_waitcnt lgkmcnt(0)")
    make_tags(cTG)
    e("v_and_b32 v%d, 0x%x, v%d" % (cTQ, TM & ~15, cTG + 3))
    e("v_or_b32 v%d, s%d, v%d" % (cTQ, sT2, cTQ))
    stamp(2)
    e("s_mov_b32 exec_hi, 0")
    e("s_barrier")
    for w in range(4):
        e("ds_read_b128 %s, v%d offset:%d" % (vr(cU + 4 * w, 4), cC, L_QP + 512 * w))
    e("s_waitcnt lgkmcnt(0)")
    sum4_and_tag(cU, [cTG, cTG + 1, cTG + 2, cTQ], cT + 8, rnd=True)
    e("global_store_dwordx4 v%d, %s, %s" % (cQA, vr(cT + 8, 4), sp(sWS)))
    if P.get("eagerb"):
        e("global_store_dwordx4 v%d, %s, %s sc1" % (cD, vr(cT + 8, 4), sp(sWS)))
    e("s_mov_b64 exec, -1")
    stamp(3)
    e("s_lshl_b32 s%d, s%d, 4" % (sT0, sGRP))
    e("s_add_u32 s%d, s%d, s%d" % (sT0, sT0, sJ))
    e("s_lshl_b32 s%d, s%d, 11" % (sT1, sT0))
    e("s_add_u32 s%d, s%d, 0x%x" % (sT1, sT1, WS_O))
    e("v_add_u32 v%d, s%d, v%d" % (cOP, sT1, cA))
    e("s_lshr_b32 s%d, s%d, 2" % (sT1, sT0))
    e("s_lshl_b32 s%d, s%d, 8" % (sT1, sT1))
    e("s_add_u32 s%d, s%d, 0x%x" % (sT1, sT1, WS_ML))
    e("v_lshlrev_b32 v%d, 4, v4" % cML)
    e("v_add_u32 v%d, s%d, v%d" % (cML, sT1, cML))
    e("s_and_b32 s%d, s%d, 3" % (sT0, sJ))
    e("s_lshl_b32 s%d, s%d, 6" % (sT0, sT0))
    e("s_lshl_b32 s%d, s%d, 5" % (sT1, sBR))
    e("s_add_u32 s%d, s%d, s%d" % (sT0, sT0, sT1))
    e("s_lshl_b32 s%d, s%d, 2" % (sT1, sKVH))
    e("s_add_u32 s%d, s%d, s%d" % (sT0, sT0, sT1))
    e("s_lshr_b32 s%d, s%d, 2" % (sT1, sJ))
    e("s_add_u32 s%d, s%d, s%d" % (sT0, sT0, sT1))
    e("s_lshl_b32 s%d, s%d, 9" % (sT0, sT0))
    e("s_add_u32 s%d, s%d, 0x%x" % (sT0, sT0, WS_F))
    e("v_add_u32 v%d, s%d, v%d" % (cFP, sT0, cC))
    e("s_lshl_b32 s%d, s%d, 4" % (sT0, sKVH))
    e("s_bfe_u32 s%d, s2, 0x40003" % sT1)
    e("s_add_u32 s%d, s%d, s%d" % (sT0, sT0, sT1))
    e("s_lshr_b32 s%d, s%d, 5" % (sT1, sT0))
    e("s_lshl_b32 s%d, s%d, 15" % (sT1, sT1))
    e("s_and_b32 s%d, s%d, 31" % (sT2, sT0))
    e("s_lshl_b32 s%d, s%d, 4" % (sT2, sT2))
    e("s_add_u32 s%d, s%d, s%d" % (sT1, sT1, sT2))
    e("s_add_u32 s%d, s%d, 0x%x" % (sT1, sT1, WS_F))
    e("v_lshlrev_b32 v%d, 9, v1" % cFG)
    e("v_add_u32 v%d, s%d, v%d" % (cFG, sT1, cFG))
    e("v_and_b32 v%d, 1, v3" % cOA)
    e("v_bfe_u32 v%d, v1, 3, 1" % cT)
    e("v_lshl_add_u32 v%d, v%d, 1, v%d" % (cOA, cT, cOA))
    e("v_lshlrev_b32 v%d, 1, v%d" % (cOA, cOA))
    e("s_lshl_b32 s%d, s%d, 3" % (sT0, sT0))
    e("v_add_u32 v%d, s%d, v%d" % (cOA, sT0, cOA))
    e("s_mov_b32 s%d, 0" % sSPIN)
    if P.get("d_noq"):
        e("s_branch L_gotq")
    m.lab("L_pollq")
    for rq in range(4):
        for hf in range(2):
            e("global_load_dwordx4 %s, v%d, %s offset:%d sc1" % (vr(cU + 8 * rq + 4 * hf, 4), cQG, sp(sWS), rq * 512 + hf * 16))
    e("s_add_u32 s%d, s%d, 1" % (sSPIN, sSPIN))
    e("s_waitcnt vmcnt(0)")
    for k in range(32):
        e("v_xor_b32 v%d, v%d, v%d" % (cU + k, cU + k, cTQ if (k & 3) == 3 else cTG + (k & 3)))
    e("v_or3_b32 v%d, v%d, v%d, v%d" % (cT + 1, cU + 3, cU + 7, cU + 11))
    e("v_or3_b32 v%d, v%d, v%d, v%d" % (cT + 1, cT + 1, cU + 15, cU + 19))
    e("v_or3_b32 v%d, v%d, v%d, v%d" % (cT + 1, cT + 1, cU + 23, cU + 27))
    e("v_or_b32 v%d, v%d, v%d" % (cT + 1, cT + 1, cU + 31))
    e("v_and_b32 v%d, -16, v%d" % (cT, cT + 1))
    rest3 = [cU + k for k in range(32) if (k & 3) != 3]
    for k in range(0, 24, 2):
        e("v_or3_b32 v%d, v%d, v%d, v%d" % (cT, cT, rest3[k], rest3[k + 1]))
    e("v_and_b32 v%d, 0x%x, v%d" % (cT, TM, cT))
    e("v_cmp_ne_u32 vcc, 0, v%d" % cT)
    e("s_cbranch_vccz L_gotq")
    e("s_cmp_lt_u32 s%d, %d" % (sSPIN, P["nfast"]))
    e("s_cbranch_scc1 L_pollq")
    e("v_xor_b32 v%d, 0x%x, v%d" % (cQG, WS_QB ^ WS_Q, cQG))
    e("s_cmp_lg_u32 s%d, %d" % (sSPIN, P["nfast"]))
    e("s_cbranch_scc1 L_nswq")
    e("s_mov_b32 exec_hi, 0")
    e("global_store_dwordx4 v%d, %s, %s sc1" % (cD, vr(cT + 8, 4), sp(sWS)))
    e("s_mov_b64 exec, -1")
    m.lab("L_nswq")
    e("s_cmp_lt_u32 s%d, %d" % (sSPIN, P["spin"]))
    e("s_cbranch_scc1 L_pollq")
    m.lab("L_gotq")
    e("v_and_b32 v%d, 15, v%d" % (cT + 1, cT + 1))
    e("v_cmp_ne_u32 vcc, 0, v%d" % (cT + 1))
    for k in range(3, 32, 4):
        e("v_and_b32 v%d, -16, v%d" % (cU + k, cU + k))
    e("s_or_b32 s%d, vcc_lo, vcc_hi" % sLOC)
    if P.get("force_wt"):
        e("s_mov_b32 s%d, 1" % sLOC)
    e("s_cmp_eq_u32 s%d, 0" % sLOC)
    e("s_cbranch_scc1 L_qloc")
    e("s_mov_b32 exec_hi, 0")
    e("global_store_dwordx4 v%d, %s, %s sc1" % (cD, vr(cT + 8, 4), sp(sWS)))
    e("s_mov_b64 exec, -1")
    m.lab("L_qloc")
    for k in range(0, 8, 2):
        e("v_pk_add_f32 %s, %s, %s" % (vr(cU + k, 2), vr(cU + k, 2), vr(cU + 8 + k, 2)))
        e("v_pk_add_f32 %s, %s, %s" % (vr(cU + 16 + k, 2), vr(cU + 16 + k, 2), vr(cU + 24 + k, 2)))
    for k in range(0, 8, 2):
        e("v_pk_add_f32 %s, %s, %s" % (vr(cU + k, 2), vr(cU + k, 2), vr(cU + 16 + k, 2)))
    for k in range(4):
        e("v_cvt_pk_bf16_f32 v%d, v%d, v%d" % (cT + k, cU + 2 * k, cU + 2 * k + 1))
    e("v_mov_b32 v%d, s%d" % (cT + 4, sLOC))
    e("v_mov_b32 v%d, 0" % (cT + 5))
    e("ds_write_b128 v%d, %s offset:%d" % (cA, vr(cT, 4), L_Q))
    e("ds_write_b32 v%d, v%d offset:%d" % (cT + 5, cT + 4, L_LOC))
    PF = P.get("ptflag", "sc1")
    early_pt = P.get("early_pt", P["lag"] < 16)
    if not early_pt:
        e("s_waitcnt lgkmcnt(0)")
        stamp(4)
        e("s_barrier")
    e("global_load_dwordx4 %s, v%d, %s %s" % (vr(cU, 4), cA, sp(sX), P.get("xflag", "")))
    e("global_load_dwordx4 %s, v%d, %s %s" % (vr(cU + 4, 4), cA, sp(sGATE), P.get("xflag", "")))
    e("global_load_dwordx4 %s, v%d, %s %s" % (vr(cPT, 4), cOP, sp(sWS), PF))
    e("global_load_dwordx4 %s, v%d, %s offset:1024 %s" % (vr(cPT + 4, 4), cOP, sp(sWS), PF))
    e("global_load_dwordx4 %s, v%d, %s %s" % (vr(cPT + 8, 4), cML, sp(sWS), PF))
    if P["fpre"]:
        e("s_cmp_ge_u32 s2, 128")
        e("s_cbranch_scc1 L_nofp")
        e("global_load_dwordx4 %s, v%d, %s sc1" % (vr(cFU, 4), cFG, sp(sWS)))
        m.lab("L_nofp")
    if early_pt:
        e("s_waitcnt lgkmcnt(0)")
        stamp(4)
        e("s_barrier")
    e("s_barrier")
    e("s_waitcnt vmcnt(0)")
    m.c("gate")
    for i in range(4):
        e("v_lshlrev_b32 v%d, 16, v%d" % (cT + 2 * i, cU + i))
        e("v_and_b32 v%d, s%d, v%d" % (cT + 2 * i + 1, sMASK, cU + i))
        e("v_lshlrev_b32 v%d, 16, v%d" % (cT + 8 + 2 * i, cU + 4 + i))
        e("v_and_b32 v%d, s%d, v%d" % (cT + 8 + 2 * i + 1, sMASK, cU + 4 + i))
    for i in range(8):
        e("v_mul_f32 v%d, v%d, v%d" % (cT + i, cT + i, cT + 8 + i))
    for i in range(4):
        e("v_cvt_pk_bf16_f32 v%d, v%d, v%d" % (cT + 8 + i, cT + 2 * i, cT + 2 * i + 1))
    for i in range(4):
        e("v_lshlrev_b32 v%d, 16, v%d" % (cT + 2 * i, cT + 8 + i))
        e("v_and_b32 v%d, s%d, v%d" % (cT + 2 * i + 1, sMASK, cT + 8 + i))
    for i in range(4):
        e("v_add_f32 v%d, v%d, v%d" % (cT + i, cT + i, cT + 4 + i))
    e("v_add_f32 v%d, v%d, v%d" % (cT + 0, cT + 0, cT + 2))
    e("v_add_f32 v%d, v%d, v%d" % (cT + 1, cT + 1, cT + 3))
    e("v_add_f32 v%d, v%d, v%d" % (cT + 0, cT + 0, cT + 1))
    row_allreduce(cT, "v_add_f32")
    allreduce_groups(cT, cT + 1, "v_add_f32")
    e("v_cvt_pk_bf16_f32 v%d, v%d, v%d" % (cT, cT, cT))
    e("v_and_b32 v%d, s%d, v%d" % (cT, sMASK, cT))
    e("v_mul_f32 v%d, s%d, v%d" % (cT, sL2E, cT))
    e("v_exp_f32 v%d, -v%d" % (cT, cT))
    e("s_nop 0")
    e("v_add_f32 v%d, 1.0, v%d" % (cT, cT))
    e("v_rcp_f32 v%d, v%d" % (cT, cT))
    e("s_nop 0")
    e("v_cvt_pk_bf16_f32 v%d, v%d, v%d" % (cT, cT, cT))
    e("v_and_b32 v%d, s%d, v%d" % (cT + 1, sMASK, cT))
    e("v_sub_f32 v%d, 1.0, v%d" % (cT, cT + 1))
    e("v_cmp_gt_u32 vcc, 32, v1")
    e("v_cvt_pk_bf16_f32 v%d, v%d, v%d" % (cT, cT, cT))
    e("v_and_b32 v%d, s%d, v%d" % (cT, sMASK, cT))
    e("v_cndmask_b32 v%d, v%d, v%d, vcc" % (cGS, cT, cT + 1))
    stamp(5)
    e("s_mov_b32 exec_hi, 0")
    e("s_barrier")
    for w in range(4):
        e("ds_read_b128 %s, v%d offset:%d" % (vr(cU + 4 * w, 4), cC, L_QP + 512 * w))
    stamp(6)
    e("s_waitcnt lgkmcnt(0)")
    sum4_and_tag(cU, [cTG + k for k in range(4)], cT + 8)
    e("global_store_dwordx4 v%d, %s, %s %s" % (cFP, vr(cT + 8, 4), sp(sWS), P.get("fsflag", "sc1")))
    e("s_mov_b64 exec, -1")
    stamp(7)
    e("s_cmp_ge_u32 s2, 128")
    e("s_cbranch_scc1 L_fin")
    if P["fwait"]:
        e("s_sleep %d" % P["fwait"])
    e("s_mov_b32 s%d, 0" % sSPIN)
    e("s_mov_b64 vcc, -1")
    for _ in range(P["fdepth"] - 1):
        e("global_load_dwordx4 %s, v%d, %s %s" % (vr(cFU, 4), cFG, sp(sWS), P.get("fflag", "sc1")))
        e("s_sleep 1")
    m.lab("L_pollf")
    if P["fsleep"]:
        e("s_sleep %d" % P["fsleep"])
    e("s_mov_b64 exec, vcc")
    e("global_load_dwordx4 %s, v%d, %s %s" % (vr(cFU, 4), cFG, sp(sWS), P.get("fflag", "sc1")))
    e("s_mov_b64 exec, -1")
    e("s_add_u32 s%d, s%d, 1" % (sSPIN, sSPIN))
    e("s_waitcnt vmcnt(%d)" % (P["fdepth"] - 1))
    for d in range(4):
        e("v_xor_b32 v%d, v%d, v%d" % (cU + d, cFU + d, cTG + d))
    e("v_or3_b32 v%d, v%d, v%d, v%d" % (cT, cU, cU + 1, cU + 2))
    e("v_bitop3_b32 v%d, v%d, v%d, s%d bitop3:0x54" % (cT, cT, cU + 3, sTM))
    e("v_cmp_ne_u32 vcc, 0, v%d" % cT)
    e("s_cbranch_vccz L_gotf")
    e("s_cmp_lt_u32 s%d, %d" % (sSPIN, P["spin"]))
    e("s_cbranch_scc1 L_pollf")
    m.lab("L_gotf")
    stamp(8)
    e("v_permlane16_swap_b32 v%d, v%d" % (cU + 0, cU + 1))
    e("v_permlane16_swap_b32 v%d, v%d" % (cU + 2, cU + 3))
    e("v_add_f32 v%d, v%d, v%d" % (cU + 0, cU + 0, cU + 1))
    e("v_add_f32 v%d, v%d, v%d" % (cU + 2, cU + 2, cU + 3))
    e("s_nop 0")
    e("v_add_f32_dpp v%d, v%d, v%d row_ror:8 row_mask:0xf bank_mask:0x3" % (cT, cU + 0, cU + 0))
    e("v_add_f32_dpp v%d, v%d, v%d row_ror:8 row_mask:0xf bank_mask:0xc" % (cT, cU + 2, cU + 2))
    for md in ("quad_perm:[1,0,3,2]", "quad_perm:[2,3,0,1]", "row_half_mirror"):
        e("s_nop 1")
        e("v_add_f32_dpp v%d, v%d, v%d %s %s" % (cT, cT, cT, md, DPPALL))
    e("v_cvt_pk_bf16_f32 v%d, v%d, v%d" % (cT, cT, cT))
    e("v_and_b32 v%d, s%d, v%d" % (cT, sMASK, cT))
    e("v_mul_f32 v%d, v%d, v%d" % (cT, cT, cGS))
    e("v_cvt_pk_bf16_f32 v%d, v%d, v%d" % (cT, cT, cT))
    e("v_and_b32 v%d, s%d, v%d" % (cT, sMASK, cT))
    e("v_mov_b32 v%d, v%d" % (cT + 1, cT))
    e("s_nop 1")
    e("v_permlane32_swap_b32 v%d, v%d" % (cT, cT + 1))
    e("v_add_f32 v%d, v%d, v%d" % (cT, cT, cT + 1))
    e("v_cvt_pk_bf16_f32 v%d, v%d, v%d" % (cT, cT, cT))
    e("s_mov_b64 exec, 0x01010101")
    e("global_store_short v%d, v%d, %s %s" % (cOA, cT, sp(sOUT), P.get("outflag", "")))
    e("s_cmp_lg_u32 s2, 0")
    e("s_cbranch_scc1 L_fin")
    e("s_mov_b64 exec, 1")
    e("v_mov_b32 v%d, s%d" % (cT + 2, sTAG))
    e("v_mov_b32 v%d, 0" % (cT + 3))
    e("global_store_dword v%d, v%d, %s offset:%d" % (cT + 3, cT + 2, sp(sWS), WS_EPOCH))
    m.lab("L_fin")
    stamp(9)
    if P.get("padto"):
        m.lab("L_pad")
        e("s_memrealtime s[96:97]")
        e("s_waitcnt lgkmcnt(0)")
        e("s_sub_u32 s96, s96, s98")
        e("s_cmp_lt_u32 s96, %d" % P["padto"])
        e("s_cbranch_scc1 L_pad")
    dump_stamps(10)
    m.lab("L_end")
    e("s_endpgm")

    hdr = open("cdna_kernels/%s.s.ref" % NAME).read().split("; Override launch")[0]
    out = hdr
    out += "; @launch grid=(256,1,1) block=(320,1,1) lds=%d\n" % P["lds"]
    out += '.amdgcn_target "amdgcn-amd-amdhsa--gfx950"\n.text\n.globl %s_kernel\n.p2align 8\n.type %s_kernel,@function\n%s_kernel:\n' % (NAME, NAME, NAME)
    out += "\n".join(m.L) + "\n"
    out += """.section .rodata,"a"
.p2align 6
.amdhsa_kernel %s_kernel
  .amdhsa_next_free_vgpr 256
  .amdhsa_next_free_sgpr 102
  .amdhsa_accum_offset 256
  .amdhsa_group_segment_fixed_size 0
  .amdhsa_kernarg_size 112
  .amdhsa_user_sgpr_count 2
  .amdhsa_user_sgpr_kernarg_segment_ptr 1
  .amdhsa_system_sgpr_workgroup_id_x 1
.end_amdhsa_kernel
""" % NAME
    return out


if __name__ == "__main__":
    kw = {}
    outp = sys.argv[1]
    for a in sys.argv[2:]:
        k, v = a.split("=")
        kw[k] = int(v) if v.lstrip("-").isdigit() else v
    open(outp, "w").write(gen(**kw))
```

```python
import sys

NAME = "gated_mix__sliding_block_cached__sliding_block_cached__decode"

WS_EPOCH = 0x0
WS_ML = 0x10000
WS_Q = 0x20000
WS_F = 0x40000
WS_QB = 0x60000
WS_O = 0x80000
WS_STAMP = 0x300000
TB = 10
TM = (1 << TB) - 1

L_QP = 0x0
L_Q = 0x800
L_MX = 0xC00
L_CNT = 0xC40
L_LOC = 0xC44
L_LS = 0xC80
L_OP = 0x1000

DEF = dict(
    stamps=0, window=6, nv_before=11, ldflag="nt", lds=90112, spin=200000,
    nfast=12, wo_win=10, swz=1, wo_early=0, n_b3=2, tlbwarm=0, omask=1, osleep=0, fsleep=0, fwait=7, spt=0, ptflag="sc1", n_late=0, ptrig=6, odepth=1, fpre=1, lag=8, b2pos=16, n_qk=0, c_lag=1,
)


class Em:
    def __init__(self):
        self.L = []
        self.q = []

    def e(self, s):
        self.L.append("    " + s)

    def lab(self, s):
        self.L.append(s + ":")

    def c(self, s):
        self.L.append("    ; " + s)

    def vm(self, name, s):
        self.e(s)
        self.q.append(name)

    def wait(self, name):
        if name not in self.q:
            return
        i = self.q.index(name)
        n = len(self.q) - 1 - i
        self.e("s_waitcnt vmcnt(%d)" % n)
        self.q = self.q[i + 1:]

    def window(self, w):
        if w and len(self.q) >= w:
            self.wait(self.q[len(self.q) - w])


def vr(a, n=1):
    return "v%d" % a if n == 1 else "v[%d:%d]" % (a, a + n - 1)


def sp(a):
    return "s[%d:%d]" % (a, a + 1)


DPPALL = "row_mask:0xf bank_mask:0xf"


def gen(**kw):
    P = dict(DEF)
    P.update(kw)
    W = P["window"]
    FL = P["ldflag"]
    ST = P["stamps"]
    m = Em()
    e = m.e

    sX = 4
    sPC = 6
    sK, sV, sWQ, sWO = 8, 10, 12, 14
    sGATE, sOUT, sDBG, sWS = 16, 18, 20, 22
    sKVH, sBR, sJ, sWAVE, sGRP = 24, 25, 26, 27, 28
    sT0, sT1, sT2 = 29, 30, 31
    sTAG, sTM, sMASK, sSPIN = 32, 33, 34, 35
    sSC = 36
    sL2E = 38
    sLOC = 40
    sSAVE = 42
    sHI = 50
    sSTAMP = 70

    incomm = [False]

    def stamp(idx):
        if ST:
            e("s_memrealtime s[%d:%d]" % (sSTAMP + 2 * idx, sSTAMP + 2 * idx + 1))
        if incomm[0] and P.get("padref") == idx:
            e("s_memrealtime s[98:99]")

    def dump_stamps(n):
        if not ST:
            return
        e("s_waitcnt lgkmcnt(0)")
        if P.get("late_dump", 1):
            lab = "L_ld%d" % len(m.L)
            m.lab(lab)
            e("s_sleep 8")
            e("s_memrealtime s[44:45]")
            e("s_waitcnt lgkmcnt(0)")
            e("s_sub_u32 s44, s44, s%d" % sSTAMP)
            e("s_cmp_lt_u32 s44, 2000")
            e("s_cbranch_scc1 " + lab)
        e("s_mov_b64 exec, 1")
        for i in range(n):
            e("v_mov_b32 v%d, s%d" % (8 + i, sSTAMP + 2 * i))
        for i in range(n, 16):
            e("v_mov_b32 v%d, 0" % (8 + i))
        e("s_lshl_b32 s%d, s2, 3" % sT0)
        e("s_add_u32 s%d, s%d, s%d" % (sT0, sT0, sWAVE))
        e("s_lshl_b32 s%d, s%d, 6" % (sT0, sT0))
        e("s_add_u32 s%d, s%d, 0x%x" % (sT0, sT0, WS_STAMP))
        e("v_mov_b32 v1, s%d" % sT0)
        for i in range(4):
            e("global_store_dwordx4 v1, v[%d:%d], %s offset:%d" % (8 + 4 * i, 11 + 4 * i, sp(sWS), 16 * i))

    def make_tags(v):
        e("s_add_u32 s%d, s%d, 0x9E3779B9" % (sTAG, sTAG))
        for k, sh in enumerate((0, 10, 20, 22)):
            e("s_bfe_u32 s%d, s%d, 0x%x" % (sT0, sTAG, (TB << 16) | sh))
            e("v_mov_b32 v%d, s%d" % (v + k, sT0))
        e("s_mov_b32 s%d, 0x%x" % (sTM, 0xffffffff ^ TM))

    def allreduce_groups(v, tmp, op):
        e("v_mov_b32 v%d, v%d" % (tmp, v))
        e("s_nop 1")
        e("v_permlane32_swap_b32 v%d, v%d" % (v, tmp))
        e("%s v%d, v%d, v%d" % (op, v, v, tmp))
        e("v_mov_b32 v%d, v%d" % (tmp, v))
        e("s_nop 1")
        e("v_permlane16_swap_b32 v%d, v%d" % (v, tmp))
        e("%s v%d, v%d, v%d" % (op, v, v, tmp))

    def row_allreduce(v, op):
        for r in (8, 4, 2, 1):
            e("s_nop 1")
            e("%s_dpp v%d, v%d, v%d row_ror:%d %s" % (op, v, v, v, r, DPPALL))

    def sum4_and_tag(t, tg, dst, rnd=False):
        for k in (0, 2):
            e("v_pk_add_f32 %s, %s, %s" % (vr(t + k, 2), vr(t + k, 2), vr(t + 4 + k, 2)))
            e("v_pk_add_f32 %s, %s, %s" % (vr(t + 8 + k, 2), vr(t + 8 + k, 2), vr(t + 12 + k, 2)))
        for k in (0, 2):
            e("v_pk_add_f32 %s, %s, %s" % (vr(t + k, 2), vr(t + k, 2), vr(t + 8 + k, 2)))
        if rnd:
            for k in range(4):
                e("v_add_u32 v%d, 0x%x, v%d" % (t + k, 1 << (TB - 1), t + k))
        if tg:
            for k in range(4):
                e("v_and_or_b32 v%d, v%d, s%d, v%d" % (dst + k, t + k, sTM, tg[k]))

    def check_embedded(u, n, tg, acc):
        for k in range(n):
            e("v_xor_b32 v%d, v%d, v%d" % (u + k, u + k, tg + (k & 3)))
        e("v_or3_b32 v%d, v%d, v%d, v%d" % (acc, u, u + 1, u + 2))
        k = 3
        while k < n:
            if k + 1 < n:
                e("v_or3_b32 v%d, v%d, v%d, v%d" % (acc, acc, u + k, u + k + 1))
                k += 2
            else:
                e("v_or_b32 v%d, v%d, v%d" % (acc, acc, u + k))
                k += 1
        e("v_and_b32 v%d, 0x%x, v%d" % (acc, TM, acc))
        e("v_cmp_ne_u32 vcc, 0, v%d" % acc)

    def store_loc(name, text):
        e("s_cmp_lg_u32 s%d, 0" % sLOC)
        e("s_cbranch_scc1 L_wt_" + name)
        e(text)
        e("s_branch L_sd_" + name)
        m.lab("L_wt_" + name)
        e(text + " sc1")
        m.lab("L_sd_" + name)
        m.q.append(name)

    e("s_and_b32 s%d, s2, 8" % sT0)
    e("s_mul_i32 s%d, s%d, 5" % (sT0, sT0))
    e("s_load_dwordx8 s[8:15], s[0:1], s%d offset:0x8" % sT0)
    e("s_load_dwordx2 %s, s[0:1], 0" % sp(sX))
    stamp(0)
    if P.get("amp"):
        e("s_memrealtime s[94:95]")
    e("v_readfirstlane_b32 s%d, v0" % sWAVE)
    e("s_cmpk_ge_u32 s2, 0x100")
    e("s_cbranch_scc1 L_end")
    e("v_and_b32 v4, 15, v0")
    e("s_and_b32 s%d, s2, 7" % sKVH)
    e("s_cmpk_lt_u32 s%d, 0x100" % sWAVE)
    e("s_cbranch_scc1 L_comp")
    e("s_getpc_b64 %s" % sp(sPC))
    m.lab("L_pc")
    e("v_lshlrev_b32 v5, 7, v0")
    e("v_min_u32 v5, L_end-L_pc+0x8000, v5")
    e("s_sub_u32 s%d, s%d, 0x8000" % (sPC, sPC))
    e("s_subb_u32 s%d, s%d, 0" % (sPC + 1, sPC + 1))
    e("global_load_dword v6, v5, %s %s" % (sp(sPC), P.get("cpflag", "")))
    e("s_branch L_comm")
    m.lab("L_comp")

    vOK, vOV, vOO, vOX = 6, 7, 8, 9
    vMK = 10
    vMP = 14
    vAD = 16
    vZERO, vONE = 18, 19
    vA_OW, vA_OR, vA_OG, vA_OP = 20, 21, 22, 23
    vX = 24
    vTG = 24
    vQ = 28
    vACC = 32
    vT = 40
    vS = 56
    vWQ = 72
    vAX = 104
    vWO = 104
    vK = 136
    vVregs = [200 + 4 * i for i in range(14)] + [vWQ + 0, vWQ + 4]
    vD = [vWQ + 8 + 4 * i for i in range(4)]
    vA_QP, vA_W, vA_H, vMH = vWQ + 24, vWQ + 25, vWQ + 26, vWQ + 27

    e("s_lshr_b32 s%d, s2, 6" % sT1)
    e("s_lshl2_add_u32 s%d, s%d, s%d" % (sT0, sKVH, sT1))
    e("s_and_b32 s%d, s2, 48" % sT1)
    e("v_lshrrev_b32 v6, 4, v0")
    e("v_lshl_or_b32 v5, s%d, 4, v4" % sT0)
    e("v_add_u32 v6, s%d, v6" % sT1)
    e("s_movk_i32 s%d, 0x2000" % sT1)
    e("v_lshlrev_b32 v%d, 4, v6" % vOX)
    e("v_lshl_or_b32 v5, v6, 12, v5")
    e("v_lshlrev_b32 v%d, 4, v5" % vT)
    for i in range(1, 8):
        e("v_add_u32 v%d, s%d, v%d" % (vT + i, sT1, vT + i - 1))
    e("s_waitcnt lgkmcnt(0)")
    m.vm("x", "global_load_dwordx4 %s, v%d, %s %s" % (vr(vX, 4), vOX, sp(sX), P.get("xflag", "")))
    for i in range(8):
        m.vm("wq%d" % i, "global_load_dwordx4 %s, v%d, %s %s" % (vr(vWQ + 4 * i, 4), vT + i, sp(sWQ), FL))
    m.lab("L_first")
    stamp(1)

    def decode():
        e("s_load_dwordx8 s[16:23], s[0:1], 80")
        if P.get("padto") and not P.get("padref"):
            e("s_memrealtime s[98:99]")
        e("v_lshrrev_b32 v2, 6, v0")
        e("v_and_b32 v1, 63, v0")
        e("v_bfe_u32 v3, v0, 4, 2")
        e("s_lshr_b32 s%d, s%d, 6" % (sWAVE, sWAVE))
        e("s_bfe_u32 s%d, s2, 0x10003" % sBR)
        e("s_lshr_b32 s%d, s2, 4" % sJ)
        e("s_lshl1_add_u32 s%d, s%d, s%d" % (sGRP, sKVH, sBR))

    decode()
    e("s_lshl_b32 s%d, s%d, 8" % (sT0, sT0))
    e("s_lshl_b32 s%d, s%d, 24" % (sT1, sKVH))
    e("s_lshl_b32 s%d, s%d, 12" % (sT2, sJ))
    e("s_add_u32 s%d, s%d, s%d" % (sT1, sT1, sT2))
    e("s_add_u32 s%d, s%d, 0xF00000" % (sT1, sT1))
    e("v_bfe_u32 v%d, v1, 2, 2" % vOK)
    e("v_lshlrev_b32 v%d, 8, v%d" % (vOK, vOK))
    e("v_lshl_add_u32 v%d, v3, 6, v%d" % (vOK, vOK))
    e("v_and_b32 v5, 3, v1")
    e("v_lshl_add_u32 v%d, v5, 4, v%d" % (vOK, vOK))
    e("v_lshl_add_u32 v%d, v2, 10, v%d" % (vOK, vOK))
    e("v_add_u32 v%d, s%d, v%d" % (vOK, sT1, vOK))
    e("v_lshlrev_b32 v%d, 4, v0" % vOV)
    e("v_add_u32 v%d, s%d, v%d" % (vOV, sT1, vOV))
    e("s_lshl_b32 s%d, s%d, 9" % (sT0, sT0))
    e("s_and_b32 s%d, s%d, 3" % (sT1, sJ))
    e("s_lshl_b32 s%d, s%d, 8" % (sT1, sT1))
    e("s_add_u32 s%d, s%d, s%d" % (sT0, sT0, sT1))
    e("v_and_b32 v5, 1, v3")
    e("v_lshlrev_b32 v%d, 11, v5" % vOO)
    e("v_lshrrev_b32 v5, 1, v3")
    e("v_lshl_add_u32 v%d, v5, 10, v%d" % (vOO, vOO))
    e("v_lshl_add_u32 v%d, v2, 15, v%d" % (vOO, vOO))
    e("v_lshl_add_u32 v%d, v4, 4, v%d" % (vOO, vOO))
    e("v_add_u32 v%d, s%d, v%d" % (vOO, sT0, vOO))
    e("s_waitcnt lgkmcnt(0)")
    e("s_load_dword s%d, %s, 0x%x" % (sTAG, sp(sWS), WS_EPOCH))

    def swz(i):
        return (i << 16) | (((i * P["swz"]) & 15) << 12)

    nad = [0]

    def ld_x(name, dst, off, const, base):
        if const:
            a = vAD + (nad[0] & 1)
            nad[0] += 1
            e("v_xor_b32 v%d, 0x%x, v%d" % (a, const, off))
        else:
            a = off
        m.vm(name, "global_load_dwordx4 %s, v%d, %s %s" % (vr(dst, 4), a, sp(base), FL))

    def ld_k(i):
        ld_x("k%d" % i, vK + 4 * i, vOK, swz(i), sK)

    def ld_v(i):
        ld_x("v%d" % i, vVregs[i], vOV, swz(i), sV)

    def ld_wo(i):
        ld_x("wo%d" % i, vWO + 4 * i, vOO, i << 12, sWO)

    lag = P["lag"]
    KS = [("k", i) for i in range(16)]
    VS = [("v", i) for i in range(16)]
    WS_ = [("wo", i) for i in range(8)]
    rest = KS[:lag] + [x for p in zip(KS[lag:], VS[:16 - lag]) for x in p] + WS_[:P["wo_early"]] + VS[16 - lag:] + WS_[P["wo_early"]:]

    if P.get("seq"):
        sq = P["seq"]
        assert sq.count("k") == 16 and sq.count("v") == 16 and sq.count("o") == 8, sq
        its = {"k": iter(KS), "v": iter(VS), "o": iter(WS_)}
        rest = [next(its[ch]) for ch in sq]

    def ld_next():
        kind, i = rest.pop(0)
        {"k": ld_k, "v": ld_v, "wo": ld_wo}[kind](i)

    def paced(n):
        for _ in range(n):
            m.window(W)
            ld_next()

    m.c("masks")
    e("v_and_b32 v5, 1, v1")
    e("v_lshlrev_b32 v5, 4, v5")
    e("s_mov_b32 s%d, 0xffff" % sT0)
    e("v_lshlrev_b32 v5, v5, s%d" % sT0)
    e("v_bfe_u32 v%d, v1, 1, 2" % (vT + 8))
    for d in range(4):
        e("v_cmp_eq_u32 vcc, %d, v%d" % (d, vT + 8))
        e("s_nop 1")
        e("v_cndmask_b32 v%d, 0, v5, vcc" % (vMK + d))
    e("v_or_b32 v%d, v%d, v%d" % (vMP + 0, vMK + 0, vMK + 2))
    e("v_or_b32 v%d, v%d, v%d" % (vMP + 1, vMK + 1, vMK + 3))
    e("s_mov_b32 s%d, 0x3db504f3" % sSC)
    e("s_mov_b32 s%d, 0x3db504f3" % (sSC + 1))
    e("s_mov_b32 s%d, 0x3fb8aa3b" % sL2E)
    e("s_mov_b32 s%d, 0x3fb8aa3b" % (sL2E + 1))
    e("s_mov_b32 s%d, 0xffff0000" % sMASK)
    e("s_mov_b32 s%d, 0x01000100" % sT0)
    e("s_mov_b32 s%d, 0x03020302" % sT1)
    e("v_mov_b32 v%d, 0" % vZERO)
    e("v_mov_b32 v%d, 1" % vONE)

    m.c("q projection")
    m.wait("x")
    for i in range(8):
        e("v_perm_b32 v%d, v%d, v%d, s%d" % (vT + 8 + i, vX + i // 2, vX + i // 2, sT1 if i & 1 else sT0))
    for i in range(8):
        for d in range(4):
            e("v_and_b32 v%d, v%d, v%d" % (vAX + 4 * i + d, vT + 8 + i, vMK + d))
    for i in range(8):
        m.wait("wq%d" % i)
        e("v_mfma_f32_16x16x32_bf16 %s, %s, %s, %s" % (vr(vACC, 4), vr(vAX + 4 * i, 4), vr(vWQ + 4 * i, 4), "0" if i == 0 else vr(vACC, 4)))
        if len(m.q) < W:
            ld_next()
    stamp(2)
    e("v_and_b32 v%d, 1, v3" % vA_QP)
    e("v_lshlrev_b32 v%d, 4, v%d" % (vA_QP, vA_QP))
    e("v_lshl_add_u32 v%d, v4, 5, v%d" % (vA_QP, vA_QP))
    e("v_lshl_add_u32 v%d, v2, 9, v%d" % (vA_QP, vA_QP))
    e("s_mov_b32 exec_hi, 0")
    e("s_nop 2")
    e("ds_write_b128 v%d, %s offset:%d" % (vA_QP, vr(vACC, 4), L_QP))
    e("s_mov_b64 exec, -1")
    e("s_waitcnt lgkmcnt(0)")
    e("s_barrier")
    paced(2)
    make_tags(vTG)
    paced(1)

    m.c("addresses used later")
    e("v_lshlrev_b32 v%d, 11, v2" % vA_OW)
    e("v_lshl_add_u32 v%d, v1, 4, v%d" % (vA_OW, vA_OW))
    e("v_and_b32 v5, 1, v1")
    e("v_lshlrev_b32 v%d, 10, v5" % vA_OR)
    e("v_lshl_add_u32 v%d, v2, 8, v%d" % (vA_OR, vA_OR))
    e("v_bfe_u32 v5, v1, 1, 4")
    e("v_lshl_add_u32 v%d, v5, 4, v%d" % (vA_OR, vA_OR))
    paced(1)
    e("s_lshl_b32 s%d, s%d, 15" % (sT0, sGRP))
    e("s_add_u32 s%d, s%d, 0x%x" % (sT0, sT0, WS_O))
    e("s_lshl_b32 s%d, s%d, 7" % (sT1, sJ))
    e("s_add_u32 s%d, s%d, s%d" % (sT1, sT1, sT0))
    e("v_bfe_u32 v%d, v1, 3, 2" % vA_OG)
    e("v_lshl_add_u32 v%d, v2, 2, v%d" % (vA_OG, vA_OG))
    e("v_lshlrev_b32 v%d, 11, v%d" % (vA_OG, vA_OG))
    e("v_and_b32 v5, 7, v1")
    e("v_lshl_add_u32 v%d, v5, 4, v%d" % (vA_OG, vA_OG))
    e("v_add_u32 v%d, s%d, v%d" % (vA_OG, sT1, vA_OG))
    e("s_and_b32 s%d, s%d, 12" % (sT1, sJ))
    e("s_lshl_b32 s%d, s%d, 11" % (sT1, sT1))
    e("s_add_u32 s%d, s%d, s%d" % (sT1, sT1, sT0))
    e("v_add_u32 v%d, s%d, v%d" % (vA_OP, sT1, vA_OW))
    e("s_mov_b32 s%d, 0" % sHI)
    e("s_mov_b32 s%d, -1" % (sHI + 1))
    e("s_lshl_b32 s%d, s%d, 10" % (sT0, sGRP))
    e("s_add_u32 s%d, s%d, 0x%x" % (sT0, sT0, WS_ML))
    e("s_lshl_b32 s%d, s%d, 4" % (sT1, sJ))
    e("s_add_u32 s%d, s%d, s%d" % (sT1, sT1, sT0))
    e("v_lshlrev_b32 v5, 8, v2")
    e("v_add_u32 v5, s%d, v5" % sT1)
    e("v_cndmask_b32 v%d, v%d, v5, %s" % (vA_OG, vA_OG, sp(sHI)))
    e("s_lshr_b32 s%d, s%d, 2" % (sT1, sJ))
    e("s_lshl_b32 s%d, s%d, 8" % (sT1, sT1))
    e("s_add_u32 s%d, s%d, s%d" % (sT1, sT1, sT0))
    e("v_lshrrev_b32 v%d, 3, v1" % vA_W)
    e("v_and_b32 v5, 1, v1")
    e("v_lshl_add_u32 v%d, v5, 3, v%d" % (vA_W, vA_W))
    e("v_lshlrev_b32 v%d, 4, v%d" % (vA_W, vA_W))
    e("v_add_u32 v%d, s%d, v%d" % (vA_W, sT1, vA_W))
    e("v_lshlrev_b32 v%d, 4, v2" % vA_H)

    n_total = 40
    while n_total - len(rest) - len(m.q) < P["b2pos"]:
        paced(1)
    while len(m.q) < P["nv_before"] and rest:
        ld_next()
    stamp(3)
    e("s_barrier")
    e("v_lshlrev_b32 v5, 4, v1")
    e("ds_read_b128 %s, v5 offset:%d" % (vr(vQ, 4), L_Q))
    e("ds_read_b32 v%d, v%d offset:%d" % (vT, vZERO, L_LOC))
    stamp(4)
    e("s_waitcnt lgkmcnt(0)")
    e("v_readfirstlane_b32 s%d, v%d" % (sLOC, vT))

    late = []
    for _ in range(P["n_late"]):
        late.insert(0, rest.pop())
    WIN = P["wo_win"]

    def more(n=1):
        for _ in range(n):
            if rest:
                ld_next()

    def feed_wait(kind, i):
        name = "%s%d" % (kind, i)
        while (kind, i) in rest:
            m.window(WIN)
            ld_next()
        while rest and name in m.q and m.q.index(name) > 0:
            m.window(WIN)
            if len(m.q) < WIN:
                ld_next()
        m.wait(name)

    def top_up():
        while rest and len(m.q) < WIN:
            ld_next()

    m.c("scores: QK, round to bf16, scale, round to bf16, running max")
    vM, vM2, vA1, vA2 = vT + 8, vT + 10, vT + 12, vT + 13
    e("v_lshrrev_b32 v%d, 2, v4" % vA2)
    e("v_lshlrev_b32 v%d, 4, v%d" % (vA2, vA2))
    e("v_lshl_add_u32 v%d, v2, 2, v%d" % (vA1, vA2))
    qp = ["[0,0,0,0]", "[1,1,1,1]", "[2,2,2,2]", "[3,3,3,3]"]

    def round4(b):
        for i in (4 * b, 4 * b + 2):
            e("v_cvt_pk_bf16_f32 v%d, v%d, v%d" % (vT + (i & 2) // 2, vS + i, vS + i + 1))
        for i in (4 * b, 4 * b + 2):
            e("v_lshlrev_b32 v%d, 16, v%d" % (vS + i, vT + (i & 2) // 2))
            e("v_and_b32 v%d, s%d, v%d" % (vS + i + 1, sMASK, vT + (i & 2) // 2))

    for b in range(4):
        for t in range(4):
            i = 4 * b + t
            feed_wait("k", i)
            e("v_mfma_f32_16x16x32_bf16 %s, %s, %s, 0" % (vr(vD[t], 4), vr(vK + 4 * i, 4), vr(vQ, 4)))
        n0 = len(m.L)
        top_up()
        more(P["n_qk"])
        used = len(m.L) - n0
        if used < 5:
            e("s_nop %d" % (4 - used))
        for u in range(4):
            for t in range(4):
                i = 4 * b + t
                if u == 0:
                    e("v_mov_b32_dpp v%d, v%d quad_perm:%s %s" % (vS + i, vD[t], qp[0], DPPALL))
                else:
                    e("v_add_f32_dpp v%d, v%d, v%d quad_perm:%s %s" % (vS + i, vD[t] + u, vS + i, qp[u], DPPALL))
        round4(b)
        for i in (4 * b, 4 * b + 2):
            e("v_pk_mul_f32 %s, %s, %s" % (vr(vS + i, 2), vr(vS + i, 2), sp(sSC)))
        round4(b)
        if b == 0:
            e("v_max3_f32 v%d, v%d, v%d, v%d" % (vM, vS, vS + 1, vS + 2))
            e("v_max_f32 v%d, v%d, v%d" % (vM, vM, vS + 3))
        else:
            e("v_max3_f32 v%d, v%d, v%d, v%d" % (vM, vM, vS + 4 * b, vS + 4 * b + 1))
            e("v_max3_f32 v%d, v%d, v%d, v%d" % (vM, vM, vS + 4 * b + 2, vS + 4 * b + 3))
    allreduce_groups(vM, vM2, "v_max_f32")
    e("ds_write_b32 v%d, v%d offset:%d" % (vA1, vM, L_MX))
    e("s_waitcnt lgkmcnt(0)")
    e("s_barrier")
    e("ds_read_b128 %s, v%d offset:%d" % (vr(vT, 4), vA2, L_MX))
    e("ds_read_b128 %s, v%d offset:%d" % (vr(vT + 4, 4), vA_H, L_MX))
    more(P["n_b3"])
    e("s_waitcnt lgkmcnt(0)")
    e("v_max3_f32 v%d, v%d, v%d, v%d" % (vM, vT, vT + 1, vT + 2))
    e("v_max3_f32 v%d, v%d, v%d, v%d" % (vMH, vT + 4, vT + 5, vT + 6))
    e("v_max_f32 v%d, v%d, v%d" % (vM, vM, vT + 3))
    e("v_max_f32 v%d, v%d, v%d" % (vMH, vMH, vT + 7))
    e("v_mul_f32 v%d, s%d, v%d" % (vM2, sL2E, vM))
    e("v_mul_f32 v%d, s%d, v%d" % (vM2 + 1, sL2E, vM))
    stamp(5)
    m.c("exp, P operands and PV, software pipelined over pairs of key sets")
    vPA = vK
    vL = vT

    def stA(p):
        i = 2 * p
        e("v_pk_fma_f32 %s, %s, %s, %s neg_lo:[0,0,1] neg_hi:[0,0,1]" % (vr(vS + i, 2), vr(vS + i, 2), sp(sL2E), vr(vM2, 2)))
        e("v_exp_f32 v%d, v%d" % (vS + i, vS + i))
        e("v_exp_f32 v%d, v%d" % (vS + i + 1, vS + i + 1))

    def stB(p):
        for i in (2 * p, 2 * p + 1):
            e("v_cvt_pk_bf16_f32 v%d, v%d, v%d" % (vPA + 2 * i, vS + i, vS + i))
        for i in (2 * p, 2 * p + 1):
            e("v_and_b32 v%d, v%d, v%d" % (vPA + 2 * i + 1, vPA + 2 * i, vMP + 1))
            e("v_and_b32 v%d, v%d, v%d" % (vPA + 2 * i, vPA + 2 * i, vMP + 0))
        if p == 1:
            e("v_pk_add_f32 %s, %s, %s" % (vr(vL, 2), vr(vS, 2), vr(vS + 2, 2)))
        elif p > 1:
            e("v_pk_add_f32 %s, %s, %s" % (vr(vL, 2), vr(vL, 2), vr(vS + 2 * p, 2)))

    def stC(p):
        for i in (2 * p, 2 * p + 1):
            feed_wait("v", i)
            for w in range(2):
                e("v_mfma_f32_16x16x16_bf16 %s, %s, %s, %s" % (vr(vACC + 4 * w, 4), vr(vPA + 2 * i, 2), vr(vVregs[i] + 2 * w, 2), "0" if i == 0 else vr(vACC + 4 * w, 4)))
            top_up()

    cl = P["c_lag"]
    def capture(fn, *a):
        keep = m.L
        m.L = []
        fn(*a)
        got, m.L = m.L, keep
        return got

    def weave(valu, mf):
        chunks, cur = [], []
        for ln in mf:
            cur.append(ln)
            if "v_mfma" in ln:
                chunks.append(cur)
                cur = []
        if cur:
            chunks[-1].extend(cur)
        n = len(chunks)
        per = -(-len(valu) // n)
        for k in range(n):
            m.L.extend(chunks[k])
            m.L.extend(valu[k * per:(k + 1) * per])

    stA(0)
    for p in range(8):
        va = capture(stA, p + 1) if p + 1 < 8 else []
        vb = capture(stB, p)
        if p - cl >= 0:
            if cl == 1:
                m.L.extend(va[:2] if va else ["    s_nop 1"])
                va = va[2:]
            weave(va + vb, capture(stC, p - cl))
        else:
            m.L.extend(va + vb)
    e("v_add_f32 v%d, v%d, v%d" % (vL, vL, vL + 1))
    allreduce_groups(vL, vL + 1, "v_add_f32")
    e("ds_write_b32 v%d, v%d offset:%d" % (vA1, vL, L_LS))
    for p in range(max(0, 8 - cl), 8):
        stC(p)
    while rest:
        ld_next()
    stamp(6)
    e("s_nop 6")
    e("ds_write_b128 v%d, %s offset:%d" % (vA_OW, vr(vACC, 4), L_OP))
    e("ds_write_b128 v%d, %s offset:%d" % (vA_OW, vr(vACC + 4, 4), L_OP + 1024))
    e("s_mov_b64 exec, 1")
    e("ds_add_u32 v%d, v%d offset:%d" % (vZERO, vONE, L_CNT))
    e("s_mov_b32 exec_lo, -1")
    e("s_mov_b32 exec_hi, 1")
    vLS = vS + 12
    m.lab("L_cnt")
    e("ds_read_b32 v5, v%d offset:%d" % (vZERO, L_CNT))
    for w in range(4):
        e("ds_read_b128 %s, v%d offset:%d" % (vr(vT + 4 * w, 4), vA_OR, L_OP + 2048 * w))
    e("ds_read_b128 %s, v%d offset:%d" % (vr(vLS, 4), vA_H, L_LS))
    e("s_waitcnt lgkmcnt(0)")
    e("v_cmp_ne_u32 vcc, 4, v5")
    e("s_cbranch_vccnz L_cnt")
    e("v_pk_add_f32 %s, %s, %s" % (vr(vLS, 2), vr(vLS, 2), vr(vLS + 2, 2)))
    sum4_and_tag(vT, None, vT)
    e("v_add_f32 v%d, v%d, v%d" % (vLS, vLS, vLS + 1))
    e("v_cndmask_b32 v%d, v%d, v%d, %s" % (vT, vT, vMH, sp(sHI)))
    e("v_cndmask_b32 v%d, v%d, v%d, %s" % (vT + 1, vT + 1, vLS, sp(sHI)))
    for k in (2, 3, 0, 1):
        e("v_and_or_b32 v%d, v%d, s%d, v%d" % (vT + k, vT + k, sTM, vTG + k))
    store_loc("o", "global_store_dwordx4 v%d, %s, %s" % (vA_OG, vr(vT, 4), sp(sWS)))
    stamp(7)
    e("s_mov_b64 exec, -1")
    rest.extend(late)
    while rest:
        ld_next()
    if ST and P.get("wostamp"):
        m.wait("wo7")
        stamp(10)
    if P["ptrig"] >= 0:
        m.wait("wo%d" % P["ptrig"])
    vO = vS
    vR = vK + 0
    sM = [44, 46, 48]
    e("s_mov_b32 s%d, 0" % sSPIN)
    for h in range(3):
        e("s_mov_b64 %s, -1" % sp(sM[h]))
    def o_round(masked):
        for h, (dst, adr, off) in ((2, (vR + 8, vA_W, 0)), (0, (vR, vA_OP, 0)), (1, (vR + 4, vA_OP, 1024))):
            if masked:
                e("s_mov_b64 exec, %s" % sp(sM[h]))
            e("global_load_dwordx4 %s, v%d, %s offset:%d sc1" % (vr(dst, 4), adr, sp(sWS), off))
        if masked:
            e("s_mov_b64 exec, -1")

    if P["odepth"] > 1:
        o_round(False)
    m.lab("L_opoll")
    if P["odepth"] == 1:
        o_round(True)
    e("s_add_u32 s%d, s%d, 1" % (sSPIN, sSPIN))
    e("s_waitcnt vmcnt(0)")
    m.q = []
    for k in list(range(8, 12)) + list(range(8)):
        e("v_xor_b32 v%d, v%d, v%d" % (vO + k, vR + k, vTG + (k & 3)))
    if P["odepth"] > 1:
        o_round(True)
    vM_, vL_, vE, vX1, vX2 = vO + 8, vO + 9, vT + 12, vT + 13, vT + 14
    e("v_max_f32_dpp v%d, v%d, v%d quad_perm:[1,0,3,2] %s" % (vX1, vM_, vM_, DPPALL))
    for h in range(3):
        e("v_or3_b32 v%d, v%d, v%d, v%d" % (vT + 8 + h, vO + 4 * h, vO + 4 * h + 1, vO + 4 * h + 2))
    e("v_max_f32_dpp v%d, v%d, v%d row_ror:8 %s" % (vX1, vX1, vX1, DPPALL))
    e("v_mov_b32 v%d, v%d" % (vX2, vX1))
    for h in range(3):
        e("v_bitop3_b32 v%d, v%d, v%d, s%d bitop3:0x54" % (vT + 8 + h, vT + 8 + h, vO + 4 * h + 3, sTM))
    e("v_permlane16_swap_b32 v%d, v%d" % (vX1, vX2))
    e("v_max_f32 v%d, v%d, v%d" % (vX1, vX1, vX2))
    e("v_mov_b32 v%d, v%d" % (vX2, vX1))
    for h in range(3):
        e("v_cmp_ne_u32 %s, 0, v%d" % (sp(sM[h]), vT + 8 + h))
    e("v_permlane32_swap_b32 v%d, v%d" % (vX1, vX2))
    e("v_max_f32 v%d, v%d, v%d" % (vX1, vX1, vX2))
    e("s_or_b64 %s, %s, %s" % (sp(sSAVE), sp(sM[0]), sp(sM[1])))
    e("v_sub_f32 v%d, v%d, v%d" % (vE, vM_, vX1))
    e("s_or_b64 %s, %s, %s" % (sp(sSAVE), sp(sSAVE), sp(sM[2])))
    e("v_mul_f32 v%d, s%d, v%d" % (vE, sL2E, vE))
    e("s_cbranch_scc0 L_ogot")
    e("s_cmp_lt_u32 s%d, %d" % (sSPIN, P["spin"]))
    e("s_cbranch_scc1 L_opoll")
    m.lab("L_ogot")
    e("v_exp_f32 v%d, v%d" % (vE, vE))
    stamp(8)
    e("s_nop 0")
    e("v_mul_f32 v%d, v%d, v%d" % (vX1, vE, vL_))
    for k in range(4):
        e("v_mul_f32_dpp v%d, v%d, v%d quad_perm:[0,0,2,2] %s" % (vO + k, vE, vO + k, DPPALL))
        if k == 2:
            e("v_add_f32_dpp v%d, v%d, v%d quad_perm:[1,0,3,2] %s" % (vX1, vX1, vX1, DPPALL))
    for k in range(4):
        e("v_fmac_f32_dpp v%d, v%d, v%d quad_perm:[1,1,3,3] %s" % (vO + k, vE, vO + 4 + k, DPPALL))
        if k == 1:
            e("v_add_f32_dpp v%d, v%d, v%d row_ror:8 %s" % (vX1, vX1, vX1, DPPALL))
    e("v_mov_b32 v%d, v%d" % (vX2, vX1))
    e("v_permlane32_swap_b32 v%d, v%d" % (vO + 0, vO + 1))
    e("v_permlane32_swap_b32 v%d, v%d" % (vO + 2, vO + 3))
    e("v_permlane32_swap_b32 v%d, v%d" % (vX1, vX2))
    e("v_add_f32 v%d, v%d, v%d" % (vO + 0, vO + 0, vO + 1))
    e("v_add_f32 v%d, v%d, v%d" % (vO + 2, vO + 2, vO + 3))
    e("v_add_f32 v%d, v%d, v%d" % (vX1, vX1, vX2))
    e("v_mov_b32 v%d, v%d" % (vX2, vX1))
    e("v_permlane16_swap_b32 v%d, v%d" % (vO + 0, vO + 2))
    e("v_add_f32 v%d, v%d, v%d" % (vO + 0, vO + 0, vO + 2))
    e("v_permlane16_swap_b32 v%d, v%d" % (vX1, vX2))
    e("v_add_f32 v%d, v%d, v%d" % (vX1, vX1, vX2))
    e("v_rcp_f32 v%d, v%d" % (vX1, vX1))
    e("v_add_f32_dpp v%d, v%d, v%d row_ror:8 %s" % (vO + 0, vO + 0, vO + 0, DPPALL))
    e("v_mul_f32 v%d, v%d, v%d" % (vO + 0, vO + 0, vX1))
    e("v_cvt_pk_bf16_f32 v%d, v%d, v%d" % (vO + 0, vO + 0, vO + 0))
    e("s_nop 1")
    vAI = vK + 32

    def build_ai(i):
        for d in range(4):
            e("v_and_b32_dpp v%d, v%d, v%d row_newbcast:%d %s" % (vAI + 4 * i + d, vO, vMK + d, i, DPPALL))

    build_ai(0)
    for i in range(8):
        if i < 7:
            build_ai(i + 1)
        else:
            e("s_nop 0")
        e("v_mfma_f32_16x16x32_bf16 %s, %s, %s, %s" % (vr(vACC, 4), vr(vAI + 4 * i, 4), vr(vWO + 4 * i, 4), "0" if i == 0 else vr(vACC, 4)))
    e("s_mov_b32 exec_hi, 0")
    e("s_nop 6")
    e("ds_write_b128 v%d, %s offset:%d" % (vA_QP, vr(vACC, 4), L_QP))
    e("s_waitcnt lgkmcnt(0)")
    e("s_barrier")
    stamp(9)
    dump_stamps(11)
    e("s_endpgm")

    m.q = []
    incomm[0] = True
    m.lab("L_comm")
    cA, cB, cC, cD = 7, 8, 9, 10
    cGS = 11
    cT = 12
    cQA, cQG, cML, cFP = 28, 29, 30, 31
    cU = 32
    cTG = 64
    cTQ = 68
    cOA, cFG, cOP = 69, 70, 71
    cPT = 72
    cFU = 84

    decode()
    e("v_mov_b32 v%d, 0" % cT)
    e("ds_write_b32 v%d, v%d offset:%d" % (cT, cT, L_CNT))
    e("v_lshlrev_b32 v%d, 4, v1" % cA)
    e("v_and_b32 v%d, 31, v1" % cC)
    e("v_lshlrev_b32 v%d, 4, v%d" % (cC, cC))
    e("s_lshl_b32 s%d, s%d, 13" % (sT0, sGRP))
    e("s_add_u32 s%d, s%d, 0x%x" % (sT0, sT0, WS_Q))
    e("s_lshl_b32 s%d, s%d, 9" % (sT1, sJ))
    e("s_add_u32 s%d, s%d, s%d" % (sT1, sT1, sT0))
    e("v_add_u32 v%d, s%d, v%d" % (cQA, sT1, cC))
    e("s_waitcnt lgkmcnt(0)")
    e("s_load_dword s%d, %s, 0x%x" % (sTAG, sp(sWS), WS_EPOCH))
    e("s_mov_b32 exec_hi, 0")
    e("global_load_dwordx4 %s, v%d, %s %s" % (vr(cPT, 4), cQA, sp(sWS), P.get("ptflag", "sc1")))
    if P["tlbwarm"]:
        e("s_lshl_b32 s%d, s%d, 24" % (sT1, sKVH))
        e("s_add_u32 s%d, s%d, 0xF00000" % (sT1, sT1))
        e("v_lshlrev_b32 v%d, 16, v1" % (cPT + 4))
        e("v_add_u32 v%d, s%d, v%d" % (cPT + 4, sT1, cPT + 4))
        e("s_lshl_b32 s%d, s%d, 2" % (sT1, sKVH))
        e("s_lshr_b32 s%d, s%d, 2" % (sT2, sJ))
        e("s_add_u32 s%d, s%d, s%d" % (sT1, sT1, sT2))
        e("s_lshl_b32 s%d, s%d, 17" % (sT1, sT1))
        e("v_lshlrev_b32 v%d, 16, v1" % (cPT + 5))
        e("v_add_u32 v%d, s%d, v%d" % (cPT + 5, sT1, cPT + 5))
        e("v_mov_b32 v%d, 0" % (cPT + 6))
        e("s_mov_b64 exec, 0x%x" % (0xffff if P["tlbwarm"] == 2 else 1))
        e("global_load_dword v%d, v%d, %s" % (cPT + 7, cPT + 4, sp(sK)))
        e("global_load_dword v%d, v%d, %s" % (cPT + 8, cPT + 4, sp(sV)))
        e("s_mov_b64 exec, 0x%x" % (3 if P["tlbwarm"] == 2 else 1))
        e("global_load_dword v%d, v%d, %s" % (cPT + 9, cPT + 5, sp(sWO)))
        e("s_mov_b64 exec, 1")
        e("global_load_dword v%d, v%d, %s" % (cPT + 10, cPT + 6, sp(sOUT)))
        e("global_load_dword v%d, v%d, %s" % (cPT + 11, cPT + 6, sp(sGATE)))
    e("s_mov_b64 exec, -1")
    e("v_lshrrev_b32 v%d, 2, v4" % cQG)
    e("v_lshlrev_b32 v%d, 11, v%d" % (cQG, cQG))
    e("v_lshl_add_u32 v%d, v3, 7, v%d" % (cQG, cQG))
    e("v_and_b32 v%d, 3, v1" % cT)
    e("v_lshl_add_u32 v%d, v%d, 5, v%d" % (cQG, cT, cQG))
    e("v_add_u32 v%d, s%d, v%d" % (cQG, sT0, cQG))
    e("v_add_u32 v%d, 0x%x, v%d" % (cD, WS_QB - WS_Q, cQA))
    e("s_mov_b32 s%d, 0x3fb8aa3b" % sL2E)
    e("s_mov_b32 s%d, 0xffff0000" % sMASK)
    e("s_getreg_b32 s%d, hwreg(HW_REG_XCC_ID, 0, 4)" % sT2)
    stamp(1)
    e("s_waitcnt lgkmcnt(0)")
    make_tags(cTG)
    e("v_and_b32 v%d, 0x%x, v%d" % (cTQ, TM & ~15, cTG + 3))
    e("v_or_b32 v%d, s%d, v%d" % (cTQ, sT2, cTQ))
    stamp(2)
    e("s_mov_b32 exec_hi, 0")
    e("s_barrier")
    for w in range(4):
        e("ds_read_b128 %s, v%d offset:%d" % (vr(cU + 4 * w, 4), cC, L_QP + 512 * w))
    e("s_waitcnt lgkmcnt(0)")
    sum4_and_tag(cU, [cTG, cTG + 1, cTG + 2, cTQ], cT + 8, rnd=True)
    e("global_store_dwordx4 v%d, %s, %s" % (cQA, vr(cT + 8, 4), sp(sWS)))
    if P.get("eagerb"):
        e("global_store_dwordx4 v%d, %s, %s sc1" % (cD, vr(cT + 8, 4), sp(sWS)))
    e("s_mov_b64 exec, -1")
    stamp(3)
    e("s_lshl_b32 s%d, s%d, 4" % (sT0, sGRP))
    e("s_add_u32 s%d, s%d, s%d" % (sT0, sT0, sJ))
    e("s_lshl_b32 s%d, s%d, 11" % (sT1, sT0))
    e("s_add_u32 s%d, s%d, 0x%x" % (sT1, sT1, WS_O))
    e("v_add_u32 v%d, s%d, v%d" % (cOP, sT1, cA))
    e("s_lshr_b32 s%d, s%d, 2" % (sT1, sT0))
    e("s_lshl_b32 s%d, s%d, 8" % (sT1, sT1))
    e("s_add_u32 s%d, s%d, 0x%x" % (sT1, sT1, WS_ML))
    e("v_lshlrev_b32 v%d, 4, v4" % cML)
    e("v_add_u32 v%d, s%d, v%d" % (cML, sT1, cML))
    e("s_and_b32 s%d, s%d, 3" % (sT0, sJ))
    e("s_lshl_b32 s%d, s%d, 6" % (sT0, sT0))
    e("s_lshl_b32 s%d, s%d, 5" % (sT1, sBR))
    e("s_add_u32 s%d, s%d, s%d" % (sT0, sT0, sT1))
    e("s_lshl_b32 s%d, s%d, 2" % (sT1, sKVH))
    e("s_add_u32 s%d, s%d, s%d" % (sT0, sT0, sT1))
    e("s_lshr_b32 s%d, s%d, 2" % (sT1, sJ))
    e("s_add_u32 s%d, s%d, s%d" % (sT0, sT0, sT1))
    e("s_lshl_b32 s%d, s%d, 9" % (sT0, sT0))
    e("s_add_u32 s%d, s%d, 0x%x" % (sT0, sT0, WS_F))
    e("v_add_u32 v%d, s%d, v%d" % (cFP, sT0, cC))
    e("s_lshl_b32 s%d, s%d, 4" % (sT0, sKVH))
    e("s_bfe_u32 s%d, s2, 0x40003" % sT1)
    e("s_add_u32 s%d, s%d, s%d" % (sT0, sT0, sT1))
    e("s_lshr_b32 s%d, s%d, 5" % (sT1, sT0))
    e("s_lshl_b32 s%d, s%d, 15" % (sT1, sT1))
    e("s_and_b32 s%d, s%d, 31" % (sT2, sT0))
    e("s_lshl_b32 s%d, s%d, 4" % (sT2, sT2))
    e("s_add_u32 s%d, s%d, s%d" % (sT1, sT1, sT2))
    e("s_add_u32 s%d, s%d, 0x%x" % (sT1, sT1, WS_F))
    e("v_lshlrev_b32 v%d, 9, v1" % cFG)
    e("v_add_u32 v%d, s%d, v%d" % (cFG, sT1, cFG))
    e("v_and_b32 v%d, 1, v3" % cOA)
    e("v_bfe_u32 v%d, v1, 3, 1" % cT)
    e("v_lshl_add_u32 v%d, v%d, 1, v%d" % (cOA, cT, cOA))
    e("v_lshlrev_b32 v%d, 1, v%d" % (cOA, cOA))
    e("s_lshl_b32 s%d, s%d, 3" % (sT0, sT0))
    e("v_add_u32 v%d, s%d, v%d" % (cOA, sT0, cOA))
    e("s_mov_b32 s%d, 0" % sSPIN)
    if P.get("d_noq"):
        e("s_branch L_gotq")
    m.lab("L_pollq")
    for rq in range(4):
        for hf in range(2):
            e("global_load_dwordx4 %s, v%d, %s offset:%d sc1" % (vr(cU + 8 * rq + 4 * hf, 4), cQG, sp(sWS), rq * 512 + hf * 16))
    e("s_add_u32 s%d, s%d, 1" % (sSPIN, sSPIN))
    e("s_waitcnt vmcnt(0)")
    for k in range(32):
        e("v_xor_b32 v%d, v%d, v%d" % (cU + k, cU + k, cTQ if (k & 3) == 3 else cTG + (k & 3)))
    e("v_or3_b32 v%d, v%d, v%d, v%d" % (cT + 1, cU + 3, cU + 7, cU + 11))
    e("v_or3_b32 v%d, v%d, v%d, v%d" % (cT + 1, cT + 1, cU + 15, cU + 19))
    e("v_or3_b32 v%d, v%d, v%d, v%d" % (cT + 1, cT + 1, cU + 23, cU + 27))
    e("v_or_b32 v%d, v%d, v%d" % (cT + 1, cT + 1, cU + 31))
    e("v_and_b32 v%d, -16, v%d" % (cT, cT + 1))
    rest3 = [cU + k for k in range(32) if (k & 3) != 3]
    for k in range(0, 24, 2):
        e("v_or3_b32 v%d, v%d, v%d, v%d" % (cT, cT, rest3[k], rest3[k + 1]))
    e("v_and_b32 v%d, 0x%x, v%d" % (cT, TM, cT))
    e("v_cmp_ne_u32 vcc, 0, v%d" % cT)
    e("s_cbranch_vccz L_gotq")
    e("s_cmp_lt_u32 s%d, %d" % (sSPIN, P["nfast"]))
    e("s_cbranch_scc1 L_pollq")
    e("v_xor_b32 v%d, 0x%x, v%d" % (cQG, WS_QB ^ WS_Q, cQG))
    e("s_cmp_lg_u32 s%d, %d" % (sSPIN, P["nfast"]))
    e("s_cbranch_scc1 L_nswq")
    e("s_mov_b32 exec_hi, 0")
    e("global_store_dwordx4 v%d, %s, %s sc1" % (cD, vr(cT + 8, 4), sp(sWS)))
    e("s_mov_b64 exec, -1")
    m.lab("L_nswq")
    e("s_cmp_lt_u32 s%d, %d" % (sSPIN, P["spin"]))
    e("s_cbranch_scc1 L_pollq")
    m.lab("L_gotq")
    e("v_and_b32 v%d, 15, v%d" % (cT + 1, cT + 1))
    e("v_cmp_ne_u32 vcc, 0, v%d" % (cT + 1))
    for k in range(3, 32, 4):
        e("v_and_b32 v%d, -16, v%d" % (cU + k, cU + k))
    e("s_or_b32 s%d, vcc_lo, vcc_hi" % sLOC)
    if P.get("force_wt"):
        e("s_mov_b32 s%d, 1" % sLOC)
    e("s_cmp_eq_u32 s%d, 0" % sLOC)
    e("s_cbranch_scc1 L_qloc")
    e("s_mov_b32 exec_hi, 0")
    e("global_store_dwordx4 v%d, %s, %s sc1" % (cD, vr(cT + 8, 4), sp(sWS)))
    e("s_mov_b64 exec, -1")
    m.lab("L_qloc")
    for k in range(0, 8, 2):
        e("v_pk_add_f32 %s, %s, %s" % (vr(cU + k, 2), vr(cU + k, 2), vr(cU + 8 + k, 2)))
        e("v_pk_add_f32 %s, %s, %s" % (vr(cU + 16 + k, 2), vr(cU + 16 + k, 2), vr(cU + 24 + k, 2)))
    for k in range(0, 8, 2):
        e("v_pk_add_f32 %s, %s, %s" % (vr(cU + k, 2), vr(cU + k, 2), vr(cU + 16 + k, 2)))
    for k in range(4):
        e("v_cvt_pk_bf16_f32 v%d, v%d, v%d" % (cT + k, cU + 2 * k, cU + 2 * k + 1))
    e("v_mov_b32 v%d, s%d" % (cT + 4, sLOC))
    e("v_mov_b32 v%d, 0" % (cT + 5))
    e("ds_write_b128 v%d, %s offset:%d" % (cA, vr(cT, 4), L_Q))
    e("ds_write_b32 v%d, v%d offset:%d" % (cT + 5, cT + 4, L_LOC))
    PF = P.get("ptflag", "sc1")
    early_pt = P.get("early_pt", P["lag"] < 16)
    if not early_pt:
        e("s_waitcnt lgkmcnt(0)")
        stamp(4)
        e("s_barrier")
    e("global_load_dwordx4 %s, v%d, %s %s" % (vr(cU, 4), cA, sp(sX), P.get("xflag", "")))
    e("global_load_dwordx4 %s, v%d, %s %s" % (vr(cU + 4, 4), cA, sp(sGATE), P.get("xflag", "")))
    e("global_load_dwordx4 %s, v%d, %s %s" % (vr(cPT, 4), cOP, sp(sWS), PF))
    e("global_load_dwordx4 %s, v%d, %s offset:1024 %s" % (vr(cPT + 4, 4), cOP, sp(sWS), PF))
    e("global_load_dwordx4 %s, v%d, %s %s" % (vr(cPT + 8, 4), cML, sp(sWS), PF))
    if P["fpre"]:
        e("s_cmp_ge_u32 s2, 128")
        e("s_cbranch_scc1 L_nofp")
        e("global_load_dwordx4 %s, v%d, %s sc1" % (vr(cFU, 4), cFG, sp(sWS)))
        m.lab("L_nofp")
    if early_pt:
        e("s_waitcnt lgkmcnt(0)")
        stamp(4)
        e("s_barrier")
    e("s_barrier")
    e("s_waitcnt vmcnt(0)")
    m.c("gate")
    for i in range(4):
        e("v_lshlrev_b32 v%d, 16, v%d" % (cT + 2 * i, cU + i))
        e("v_and_b32 v%d, s%d, v%d" % (cT + 2 * i + 1, sMASK, cU + i))
        e("v_lshlrev_b32 v%d, 16, v%d" % (cT + 8 + 2 * i, cU + 4 + i))
        e("v_and_b32 v%d, s%d, v%d" % (cT + 8 + 2 * i + 1, sMASK, cU + 4 + i))
    for i in range(8):
        e("v_mul_f32 v%d, v%d, v%d" % (cT + i, cT + i, cT + 8 + i))
    for i in range(4):
        e("v_cvt_pk_bf16_f32 v%d, v%d, v%d" % (cT + 8 + i, cT + 2 * i, cT + 2 * i + 1))
    for i in range(4):
        e("v_lshlrev_b32 v%d, 16, v%d" % (cT + 2 * i, cT + 8 + i))
        e("v_and_b32 v%d, s%d, v%d" % (cT + 2 * i + 1, sMASK, cT + 8 + i))
    for i in range(4):
        e("v_add_f32 v%d, v%d, v%d" % (cT + i, cT + i, cT + 4 + i))
    e("v_add_f32 v%d, v%d, v%d" % (cT + 0, cT + 0, cT + 2))
    e("v_add_f32 v%d, v%d, v%d" % (cT + 1, cT + 1, cT + 3))
    e("v_add_f32 v%d, v%d, v%d" % (cT + 0, cT + 0, cT + 1))
    row_allreduce(cT, "v_add_f32")
    allreduce_groups(cT, cT + 1, "v_add_f32")
    e("v_cvt_pk_bf16_f32 v%d, v%d, v%d" % (cT, cT, cT))
    e("v_and_b32 v%d, s%d, v%d" % (cT, sMASK, cT))
    e("v_mul_f32 v%d, s%d, v%d" % (cT, sL2E, cT))
    e("v_exp_f32 v%d, -v%d" % (cT, cT))
    e("s_nop 0")
    e("v_add_f32 v%d, 1.0, v%d" % (cT, cT))
    e("v_rcp_f32 v%d, v%d" % (cT, cT))
    e("s_nop 0")
    e("v_cvt_pk_bf16_f32 v%d, v%d, v%d" % (cT, cT, cT))
    e("v_and_b32 v%d, s%d, v%d" % (cT + 1, sMASK, cT))
    e("v_sub_f32 v%d, 1.0, v%d" % (cT, cT + 1))
    e("v_cmp_gt_u32 vcc, 32, v1")
    e("v_cvt_pk_bf16_f32 v%d, v%d, v%d" % (cT, cT, cT))
    e("v_and_b32 v%d, s%d, v%d" % (cT, sMASK, cT))
    e("v_cndmask_b32 v%d, v%d, v%d, vcc" % (cGS, cT, cT + 1))
    stamp(5)
    e("s_mov_b32 exec_hi, 0")
    e("s_barrier")
    for w in range(4):
        e("ds_read_b128 %s, v%d offset:%d" % (vr(cU + 4 * w, 4), cC, L_QP + 512 * w))
    stamp(6)
    e("s_waitcnt lgkmcnt(0)")
    sum4_and_tag(cU, [cTG + k for k in range(4)], cT + 8)
    e("global_store_dwordx4 v%d, %s, %s %s" % (cFP, vr(cT + 8, 4), sp(sWS), P.get("fsflag", "sc1")))
    e("s_mov_b64 exec, -1")
    stamp(7)
    e("s_cmp_ge_u32 s2, 128")
    e("s_cbranch_scc1 L_fin")
    if P["fwait"]:
        e("s_sleep %d" % P["fwait"])
    e("s_mov_b32 s%d, 0" % sSPIN)
    e("s_mov_b64 vcc, -1")
    m.lab("L_pollf")
    if P["fsleep"]:
        e("s_sleep %d" % P["fsleep"])
    e("s_mov_b64 exec, vcc")
    e("global_load_dwordx4 %s, v%d, %s %s" % (vr(cFU, 4), cFG, sp(sWS), P.get("fflag", "sc1")))
    e("s_mov_b64 exec, -1")
    e("s_add_u32 s%d, s%d, 1" % (sSPIN, sSPIN))
    e("s_waitcnt vmcnt(0)")
    for d in range(4):
        e("v_xor_b32 v%d, v%d, v%d" % (cU + d, cFU + d, cTG + d))
    e("v_or3_b32 v%d, v%d, v%d, v%d" % (cT, cU, cU + 1, cU + 2))
    e("v_bitop3_b32 v%d, v%d, v%d, s%d bitop3:0x54" % (cT, cT, cU + 3, sTM))
    e("v_cmp_ne_u32 vcc, 0, v%d" % cT)
    e("s_cbranch_vccz L_gotf")
    e("s_cmp_lt_u32 s%d, %d" % (sSPIN, P["spin"]))
    e("s_cbranch_scc1 L_pollf")
    m.lab("L_gotf")
    stamp(8)
    e("v_permlane16_swap_b32 v%d, v%d" % (cU + 0, cU + 1))
    e("v_permlane16_swap_b32 v%d, v%d" % (cU + 2, cU + 3))
    e("v_add_f32 v%d, v%d, v%d" % (cU + 0, cU + 0, cU + 1))
    e("v_add_f32 v%d, v%d, v%d" % (cU + 2, cU + 2, cU + 3))
    e("s_nop 0")
    e("v_add_f32_dpp v%d, v%d, v%d row_ror:8 row_mask:0xf bank_mask:0x3" % (cT, cU + 0, cU + 0))
    e("v_add_f32_dpp v%d, v%d, v%d row_ror:8 row_mask:0xf bank_mask:0xc" % (cT, cU + 2, cU + 2))
    for md in ("quad_perm:[1,0,3,2]", "quad_perm:[2,3,0,1]", "row_half_mirror"):
        e("s_nop 1")
        e("v_add_f32_dpp v%d, v%d, v%d %s %s" % (cT, cT, cT, md, DPPALL))
    e("v_cvt_pk_bf16_f32 v%d, v%d, v%d" % (cT, cT, cT))
    e("v_and_b32 v%d, s%d, v%d" % (cT, sMASK, cT))
    e("v_mul_f32 v%d, v%d, v%d" % (cT, cT, cGS))
    e("v_cvt_pk_bf16_f32 v%d, v%d, v%d" % (cT, cT, cT))
    e("v_and_b32 v%d, s%d, v%d" % (cT, sMASK, cT))
    e("v_mov_b32 v%d, v%d" % (cT + 1, cT))
    e("s_nop 1")
    e("v_permlane32_swap_b32 v%d, v%d" % (cT, cT + 1))
    e("v_add_f32 v%d, v%d, v%d" % (cT, cT, cT + 1))
    e("v_cvt_pk_bf16_f32 v%d, v%d, v%d" % (cT, cT, cT))
    e("s_mov_b64 exec, 0x01010101")
    e("global_store_short v%d, v%d, %s %s" % (cOA, cT, sp(sOUT), P.get("outflag", "")))
    e("s_cmp_lg_u32 s2, 0")
    e("s_cbranch_scc1 L_fin")
    e("s_mov_b64 exec, 1")
    e("v_mov_b32 v%d, s%d" % (cT + 2, sTAG))
    e("v_mov_b32 v%d, 0" % (cT + 3))
    e("global_store_dword v%d, v%d, %s offset:%d" % (cT + 3, cT + 2, sp(sWS), WS_EPOCH))
    m.lab("L_fin")
    stamp(9)
    if P.get("amp"):
        e("s_waitcnt lgkmcnt(0)")
        e("s_sub_u32 s93, s98, s94")
        e("s_mul_i32 s93, s93, %d" % P["amp"])
        e("s_add_u32 s98, s94, s93")
    if P.get("padto"):
        m.lab("L_pad")
        e("s_memrealtime s[96:97]")
        e("s_waitcnt lgkmcnt(0)")
        e("s_sub_u32 s96, s96, s98")
        e("s_cmp_lt_i32 s96, %d" % P["padto"])
        e("s_cbranch_scc1 L_pad")
    dump_stamps(10)
    m.lab("L_end")
    e("s_endpgm")

    hdr = open("cdna_kernels/%s.s.ref" % NAME).read().split("; Override launch")[0]
    out = hdr
    out += "; @launch grid=(256,1,1) block=(320,1,1) lds=%d\n" % P["lds"]
    out += '.amdgcn_target "amdgcn-amd-amdhsa--gfx950"\n.text\n.globl %s_kernel\n.p2align 8\n.type %s_kernel,@function\n%s_kernel:\n' % (NAME, NAME, NAME)
    out += "\n".join(m.L) + "\n"
    out += """.section .rodata,"a"
.p2align 6
.amdhsa_kernel %s_kernel
  .amdhsa_next_free_vgpr 256
  .amdhsa_next_free_sgpr 102
  .amdhsa_accum_offset 256
  .amdhsa_group_segment_fixed_size 0
  .amdhsa_kernarg_size 112
  .amdhsa_user_sgpr_count 2
  .amdhsa_user_sgpr_kernarg_segment_ptr 1
  .amdhsa_system_sgpr_workgroup_id_x 1
.end_amdhsa_kernel
""" % NAME
    return out


if __name__ == "__main__":
    kw = {}
    outp = sys.argv[1]
    for a in sys.argv[2:]:
        k, v = a.split("=")
        kw[k] = int(v) if v.lstrip("-").isdigit() else v
    open(outp, "w").write(gen(**kw))
```

```python
import sys

NAME = "gated_mix__sliding_block_cached__sliding_block_cached__decode"

WS_EPOCH = 0x0
WS_ML = 0x10000
WS_Q = 0x20000
WS_F = 0x40000
WS_QB = 0x60000
WS_O = 0x80000
WS_STAMP = 0x300000
TB = 10
TM = (1 << TB) - 1

L_QP = 0x0
L_Q = 0x800
L_MX = 0xC00
L_CNT = 0xC40
L_LOC = 0xC44
L_LS = 0xC80
L_OP = 0x1000

DEF = dict(
    stamps=0, window=6, nv_before=11, ldflag="nt", lds=90112, spin=60000,
    nfast=12, wo_win=10, swz=1, wo_early=0, n_b3=2, tlbwarm=0, omask=1, osleep=0, fsleep=0, fwait=7, spt=0, ptflag="sc1", n_late=0, ptrig=6, odepth=1, fpre=1, lag=8, b2pos=16, n_qk=0, c_lag=1,
)


class Em:
    def __init__(self):
        self.L = []
        self.q = []

    def e(self, s):
        self.L.append("    " + s)

    def lab(self, s):
        self.L.append(s + ":")

    def c(self, s):
        self.L.append("    ; " + s)

    def vm(self, name, s):
        self.e(s)
        self.q.append(name)

    def wait(self, name):
        if name not in self.q:
            return
        i = self.q.index(name)
        n = len(self.q) - 1 - i
        self.e("s_waitcnt vmcnt(%d)" % n)
        self.q = self.q[i + 1:]

    def window(self, w):
        if w and len(self.q) >= w:
            self.wait(self.q[len(self.q) - w])


def vr(a, n=1):
    return "v%d" % a if n == 1 else "v[%d:%d]" % (a, a + n - 1)


def sp(a):
    return "s[%d:%d]" % (a, a + 1)


DPPALL = "row_mask:0xf bank_mask:0xf"


def gen(**kw):
    P = dict(DEF)
    P.update(kw)
    W = P["window"]
    FL = P["ldflag"]
    ST = P["stamps"]
    m = Em()
    e = m.e

    sX = 4
    sPC = 6
    sK, sV, sWQ, sWO = 8, 10, 12, 14
    sGATE, sOUT, sDBG, sWS = 16, 18, 20, 22
    sKVH, sBR, sJ, sWAVE, sGRP = 24, 25, 26, 27, 28
    sT0, sT1, sT2 = 29, 30, 31
    sTAG, sTM, sMASK, sSPIN = 32, 33, 34, 35
    sSC = 36
    sL2E = 38
    sLOC = 40
    sSAVE = 42
    sHI = 50
    sSTAMP = 70

    incomm = [False]

    def stamp(idx):
        if ST:
            e("s_memrealtime s[%d:%d]" % (sSTAMP + 2 * idx, sSTAMP + 2 * idx + 1))
        if incomm[0] and P.get("padref") == idx:
            e("s_memrealtime s[98:99]")

    def dump_stamps(n):
        if not ST:
            return
        e("s_waitcnt lgkmcnt(0)")
        if P.get("late_dump", 1):
            lab = "L_ld%d" % len(m.L)
            m.lab(lab)
            e("s_sleep 8")
            e("s_memrealtime s[44:45]")
            e("s_waitcnt lgkmcnt(0)")
            e("s_sub_u32 s44, s44, s%d" % sSTAMP)
            e("s_cmp_lt_u32 s44, 2000")
            e("s_cbranch_scc1 " + lab)
        e("s_mov_b64 exec, 1")
        for i in range(n):
            e("v_mov_b32 v%d, s%d" % (8 + i, sSTAMP + 2 * i))
        for i in range(n, 16):
            e("v_mov_b32 v%d, 0" % (8 + i))
        e("s_lshl_b32 s%d, s2, 3" % sT0)
        e("s_add_u32 s%d, s%d, s%d" % (sT0, sT0, sWAVE))
        e("s_lshl_b32 s%d, s%d, 6" % (sT0, sT0))
        e("s_add_u32 s%d, s%d, 0x%x" % (sT0, sT0, WS_STAMP))
        e("v_mov_b32 v1, s%d" % sT0)
        for i in range(4):
            e("global_store_dwordx4 v1, v[%d:%d], %s offset:%d" % (8 + 4 * i, 11 + 4 * i, sp(sWS), 16 * i))

    def make_tags(v):
        e("s_add_u32 s%d, s%d, 0x9E3779B9" % (sTAG, sTAG))
        for k, sh in enumerate((0, 10, 20, 22)):
            e("s_bfe_u32 s%d, s%d, 0x%x" % (sT0, sTAG, (TB << 16) | sh))
            e("v_mov_b32 v%d, s%d" % (v + k, sT0))
        e("s_mov_b32 s%d, 0x%x" % (sTM, 0xffffffff ^ TM))

    def allreduce_groups(v, tmp, op):
        e("v_mov_b32 v%d, v%d" % (tmp, v))
        e("s_nop 1")
        e("v_permlane32_swap_b32 v%d, v%d" % (v, tmp))
        e("%s v%d, v%d, v%d" % (op, v, v, tmp))
        e("v_mov_b32 v%d, v%d" % (tmp, v))
        e("s_nop 1")
        e("v_permlane16_swap_b32 v%d, v%d" % (v, tmp))
        e("%s v%d, v%d, v%d" % (op, v, v, tmp))

    def row_allreduce(v, op):
        for r in (8, 4, 2, 1):
            e("s_nop 1")
            e("%s_dpp v%d, v%d, v%d row_ror:%d %s" % (op, v, v, v, r, DPPALL))

    def sum4_and_tag(t, tg, dst, rnd=False):
        for k in (0, 2):
            e("v_pk_add_f32 %s, %s, %s" % (vr(t + k, 2), vr(t + k, 2), vr(t + 4 + k, 2)))
            e("v_pk_add_f32 %s, %s, %s" % (vr(t + 8 + k, 2), vr(t + 8 + k, 2), vr(t + 12 + k, 2)))
        for k in (0, 2):
            e("v_pk_add_f32 %s, %s, %s" % (vr(t + k, 2), vr(t + k, 2), vr(t + 8 + k, 2)))
        if rnd:
            for k in range(4):
                e("v_add_u32 v%d, 0x%x, v%d" % (t + k, 1 << (TB - 1), t + k))
        if tg:
            for k in range(4):
                e("v_and_or_b32 v%d, v%d, s%d, v%d" % (dst + k, t + k, sTM, tg[k]))

    def check_embedded(u, n, tg, acc):
        for k in range(n):
            e("v_xor_b32 v%d, v%d, v%d" % (u + k, u + k, tg + (k & 3)))
        e("v_or3_b32 v%d, v%d, v%d, v%d" % (acc, u, u + 1, u + 2))
        k = 3
        while k < n:
            if k + 1 < n:
                e("v_or3_b32 v%d, v%d, v%d, v%d" % (acc, acc, u + k, u + k + 1))
                k += 2
            else:
                e("v_or_b32 v%d, v%d, v%d" % (acc, acc, u + k))
                k += 1
        e("v_and_b32 v%d, 0x%x, v%d" % (acc, TM, acc))
        e("v_cmp_ne_u32 vcc, 0, v%d" % acc)

    def store_loc(name, text):
        e("s_cmp_lg_u32 s%d, 0" % sLOC)
        e("s_cbranch_scc1 L_wt_" + name)
        e(text)
        e("s_branch L_sd_" + name)
        m.lab("L_wt_" + name)
        e(text + " sc1")
        m.lab("L_sd_" + name)
        m.q.append(name)

    e("s_and_b32 s%d, s2, 8" % sT0)
    e("s_mul_i32 s%d, s%d, 5" % (sT0, sT0))
    e("s_load_dwordx8 s[8:15], s[0:1], s%d offset:0x8" % sT0)
    e("s_load_dwordx2 %s, s[0:1], 0" % sp(sX))
    stamp(0)
    if P.get("amp"):
        e("s_memrealtime s[94:95]")
    e("v_readfirstlane_b32 s%d, v0" % sWAVE)
    e("s_cmpk_ge_u32 s2, 0x100")
    e("s_cbranch_scc1 L_end")
    e("v_and_b32 v4, 15, v0")
    e("s_and_b32 s%d, s2, 7" % sKVH)
    e("s_cmpk_lt_u32 s%d, 0x100" % sWAVE)
    e("s_cbranch_scc1 L_comp")
    e("s_getpc_b64 %s" % sp(sPC))
    m.lab("L_pc")
    e("v_lshlrev_b32 v5, 7, v0")
    e("v_min_u32 v5, L_end-L_pc+0x8000, v5")
    e("s_sub_u32 s%d, s%d, 0x8000" % (sPC, sPC))
    e("s_subb_u32 s%d, s%d, 0" % (sPC + 1, sPC + 1))
    e("global_load_dword v6, v5, %s %s" % (sp(sPC), P.get("cpflag", "")))
    e("s_branch L_comm")
    m.lab("L_comp")

    vOK, vOV, vOO, vOX = 6, 7, 8, 9
    vMK = 10
    vMP = 14
    vAD = 16
    vZERO, vONE = 18, 19
    vA_OW, vA_OR, vA_OG, vA_OP = 20, 21, 22, 23
    vX = 24
    vTG = 24
    vQ = 28
    vACC = 32
    vT = 40
    vS = 56
    vWQ = 72
    vAX = 104
    vWO = 104
    vK = 136
    vVregs = [200 + 4 * i for i in range(14)] + [vWQ + 0, vWQ + 4]
    vD = [vWQ + 8 + 4 * i for i in range(4)]
    vA_QP, vA_W, vA_H, vMH = vWQ + 24, vWQ + 25, vWQ + 26, vWQ + 27

    e("s_lshr_b32 s%d, s2, 6" % sT1)
    e("s_lshl2_add_u32 s%d, s%d, s%d" % (sT0, sKVH, sT1))
    e("s_and_b32 s%d, s2, 48" % sT1)
    e("v_lshrrev_b32 v6, 4, v0")
    e("v_lshl_or_b32 v5, s%d, 4, v4" % sT0)
    e("v_add_u32 v6, s%d, v6" % sT1)
    e("s_movk_i32 s%d, 0x2000" % sT1)
    e("v_lshlrev_b32 v%d, 4, v6" % vOX)
    e("v_lshl_or_b32 v5, v6, 12, v5")
    e("v_lshlrev_b32 v%d, 4, v5" % vT)
    for i in range(1, 8):
        e("v_add_u32 v%d, s%d, v%d" % (vT + i, sT1, vT + i - 1))
    e("s_waitcnt lgkmcnt(0)")
    m.vm("x", "global_load_dwordx4 %s, v%d, %s %s" % (vr(vX, 4), vOX, sp(sX), P.get("xflag", "")))
    for i in range(8):
        m.vm("wq%d" % i, "global_load_dwordx4 %s, v%d, %s %s" % (vr(vWQ + 4 * i, 4), vT + i, sp(sWQ), FL))
    m.lab("L_first")
    stamp(1)

    def decode():
        e("s_load_dwordx8 s[16:23], s[0:1], 80")
        if P.get("padto") and not P.get("padref"):
            e("s_memrealtime s[98:99]")
        e("v_lshrrev_b32 v2, 6, v0")
        e("v_and_b32 v1, 63, v0")
        e("v_bfe_u32 v3, v0, 4, 2")
        e("s_lshr_b32 s%d, s%d, 6" % (sWAVE, sWAVE))
        e("s_bfe_u32 s%d, s2, 0x10003" % sBR)
        e("s_lshr_b32 s%d, s2, 4" % sJ)
        e("s_lshl1_add_u32 s%d, s%d, s%d" % (sGRP, sKVH, sBR))

    decode()
    e("s_lshl_b32 s%d, s%d, 8" % (sT0, sT0))
    e("s_lshl_b32 s%d, s%d, 24" % (sT1, sKVH))
    e("s_lshl_b32 s%d, s%d, 12" % (sT2, sJ))
    e("s_add_u32 s%d, s%d, s%d" % (sT1, sT1, sT2))
    e("s_add_u32 s%d, s%d, 0xF00000" % (sT1, sT1))
    e("v_bfe_u32 v%d, v1, 2, 2" % vOK)
    e("v_lshlrev_b32 v%d, 8, v%d" % (vOK, vOK))
    e("v_lshl_add_u32 v%d, v3, 6, v%d" % (vOK, vOK))
    e("v_and_b32 v5, 3, v1")
    e("v_lshl_add_u32 v%d, v5, 4, v%d" % (vOK, vOK))
    e("v_lshl_add_u32 v%d, v2, 10, v%d" % (vOK, vOK))
    e("v_add_u32 v%d, s%d, v%d" % (vOK, sT1, vOK))
    e("v_lshlrev_b32 v%d, 4, v0" % vOV)
    e("v_add_u32 v%d, s%d, v%d" % (vOV, sT1, vOV))
    e("s_lshl_b32 s%d, s%d, 9" % (sT0, sT0))
    e("s_and_b32 s%d, s%d, 3" % (sT1, sJ))
    e("s_lshl_b32 s%d, s%d, 8" % (sT1, sT1))
    e("s_add_u32 s%d, s%d, s%d" % (sT0, sT0, sT1))
    e("v_and_b32 v5, 1, v3")
    e("v_lshlrev_b32 v%d, 11, v5" % vOO)
    e("v_lshrrev_b32 v5, 1, v3")
    e("v_lshl_add_u32 v%d, v5, 10, v%d" % (vOO, vOO))
    e("v_lshl_add_u32 v%d, v2, 15, v%d" % (vOO, vOO))
    e("v_lshl_add_u32 v%d, v4, 4, v%d" % (vOO, vOO))
    e("v_add_u32 v%d, s%d, v%d" % (vOO, sT0, vOO))
    e("s_waitcnt lgkmcnt(0)")
    e("s_load_dword s%d, %s, 0x%x" % (sTAG, sp(sWS), WS_EPOCH))

    def swz(i):
        return (i << 16) | (((i * P["swz"]) & 15) << 12)

    nad = [0]

    def ld_x(name, dst, off, const, base):
        if const:
            a = vAD + (nad[0] & 1)
            nad[0] += 1
            e("v_xor_b32 v%d, 0x%x, v%d" % (a, const, off))
        else:
            a = off
        m.vm(name, "global_load_dwordx4 %s, v%d, %s %s" % (vr(dst, 4), a, sp(base), FL))

    def ld_k(i):
        ld_x("k%d" % i, vK + 4 * i, vOK, swz(i), sK)

    def ld_v(i):
        ld_x("v%d" % i, vVregs[i], vOV, swz(i), sV)

    def ld_wo(i):
        ld_x("wo%d" % i, vWO + 4 * i, vOO, i << 12, sWO)

    lag = P["lag"]
    KS = [("k", i) for i in range(16)]
    VS = [("v", i) for i in range(16)]
    WS_ = [("wo", i) for i in range(8)]
    rest = KS[:lag] + [x for p in zip(KS[lag:], VS[:16 - lag]) for x in p] + WS_[:P["wo_early"]] + VS[16 - lag:] + WS_[P["wo_early"]:]

    if P.get("seq"):
        sq = P["seq"]
        assert sq.count("k") == 16 and sq.count("v") == 16 and sq.count("o") == 8, sq
        its = {"k": iter(KS), "v": iter(VS), "o": iter(WS_)}
        rest = [next(its[ch]) for ch in sq]

    def ld_next():
        kind, i = rest.pop(0)
        {"k": ld_k, "v": ld_v, "wo": ld_wo}[kind](i)

    def paced(n):
        for _ in range(n):
            m.window(W)
            ld_next()

    m.c("masks")
    e("v_and_b32 v5, 1, v1")
    e("v_lshlrev_b32 v5, 4, v5")
    e("s_mov_b32 s%d, 0xffff" % sT0)
    e("v_lshlrev_b32 v5, v5, s%d" % sT0)
    e("v_bfe_u32 v%d, v1, 1, 2" % (vT + 8))
    for d in range(4):
        e("v_cmp_eq_u32 vcc, %d, v%d" % (d, vT + 8))
        e("s_nop 1")
        e("v_cndmask_b32 v%d, 0, v5, vcc" % (vMK + d))
    e("v_or_b32 v%d, v%d, v%d" % (vMP + 0, vMK + 0, vMK + 2))
    e("v_or_b32 v%d, v%d, v%d" % (vMP + 1, vMK + 1, vMK + 3))
    e("s_mov_b32 s%d, 0x3db504f3" % sSC)
    e("s_mov_b32 s%d, 0x3db504f3" % (sSC + 1))
    e("s_mov_b32 s%d, 0x3fb8aa3b" % sL2E)
    e("s_mov_b32 s%d, 0x3fb8aa3b" % (sL2E + 1))
    e("s_mov_b32 s%d, 0xffff0000" % sMASK)
    e("s_mov_b32 s%d, 0x01000100" % sT0)
    e("s_mov_b32 s%d, 0x03020302" % sT1)
    e("v_mov_b32 v%d, 0" % vZERO)
    e("v_mov_b32 v%d, 1" % vONE)

    m.c("q projection")
    m.wait("x")
    for i in range(8):
        e("v_perm_b32 v%d, v%d, v%d, s%d" % (vT + 8 + i, vX + i // 2, vX + i // 2, sT1 if i & 1 else sT0))
    for i in range(8):
        for d in range(4):
            e("v_and_b32 v%d, v%d, v%d" % (vAX + 4 * i + d, vT + 8 + i, vMK + d))
    for i in range(8):
        m.wait("wq%d" % i)
        e("v_mfma_f32_16x16x32_bf16 %s, %s, %s, %s" % (vr(vACC, 4), vr(vAX + 4 * i, 4), vr(vWQ + 4 * i, 4), "0" if i == 0 else vr(vACC, 4)))
        if len(m.q) < W:
            ld_next()
    stamp(2)
    e("v_and_b32 v%d, 1, v3" % vA_QP)
    e("v_lshlrev_b32 v%d, 4, v%d" % (vA_QP, vA_QP))
    e("v_lshl_add_u32 v%d, v4, 5, v%d" % (vA_QP, vA_QP))
    e("v_lshl_add_u32 v%d, v2, 9, v%d" % (vA_QP, vA_QP))
    e("s_mov_b32 exec_hi, 0")
    e("s_nop 2")
    e("ds_write_b128 v%d, %s offset:%d" % (vA_QP, vr(vACC, 4), L_QP))
    e("s_mov_b64 exec, -1")
    e("s_waitcnt lgkmcnt(0)")
    e("s_barrier")
    paced(2)
    make_tags(vTG)
    paced(1)

    m.c("addresses used later")
    e("v_lshlrev_b32 v%d, 11, v2" % vA_OW)
    e("v_lshl_add_u32 v%d, v1, 4, v%d" % (vA_OW, vA_OW))
    e("v_and_b32 v5, 1, v1")
    e("v_lshlrev_b32 v%d, 10, v5" % vA_OR)
    e("v_lshl_add_u32 v%d, v2, 8, v%d" % (vA_OR, vA_OR))
    e("v_bfe_u32 v5, v1, 1, 4")
    e("v_lshl_add_u32 v%d, v5, 4, v%d" % (vA_OR, vA_OR))
    paced(1)
    e("s_lshl_b32 s%d, s%d, 15" % (sT0, sGRP))
    e("s_add_u32 s%d, s%d, 0x%x" % (sT0, sT0, WS_O))
    e("s_lshl_b32 s%d, s%d, 7" % (sT1, sJ))
    e("s_add_u32 s%d, s%d, s%d" % (sT1, sT1, sT0))
    e("v_bfe_u32 v%d, v1, 3, 2" % vA_OG)
    e("v_lshl_add_u32 v%d, v2, 2, v%d" % (vA_OG, vA_OG))
    e("v_lshlrev_b32 v%d, 11, v%d" % (vA_OG, vA_OG))
    e("v_and_b32 v5, 7, v1")
    e("v_lshl_add_u32 v%d, v5, 4, v%d" % (vA_OG, vA_OG))
    e("v_add_u32 v%d, s%d, v%d" % (vA_OG, sT1, vA_OG))
    e("s_and_b32 s%d, s%d, 12" % (sT1, sJ))
    e("s_lshl_b32 s%d, s%d, 11" % (sT1, sT1))
    e("s_add_u32 s%d, s%d, s%d" % (sT1, sT1, sT0))
    e("v_add_u32 v%d, s%d, v%d" % (vA_OP, sT1, vA_OW))
    e("s_mov_b32 s%d, 0" % sHI)
    e("s_mov_b32 s%d, -1" % (sHI + 1))
    e("s_lshl_b32 s%d, s%d, 10" % (sT0, sGRP))
    e("s_add_u32 s%d, s%d, 0x%x" % (sT0, sT0, WS_ML))
    e("s_lshl_b32 s%d, s%d, 4" % (sT1, sJ))
    e("s_add_u32 s%d, s%d, s%d" % (sT1, sT1, sT0))
    e("v_lshlrev_b32 v5, 8, v2")
    e("v_add_u32 v5, s%d, v5" % sT1)
    e("v_cndmask_b32 v%d, v%d, v5, %s" % (vA_OG, vA_OG, sp(sHI)))
    e("s_lshr_b32 s%d, s%d, 2" % (sT1, sJ))
    e("s_lshl_b32 s%d, s%d, 8" % (sT1, sT1))
    e("s_add_u32 s%d, s%d, s%d" % (sT1, sT1, sT0))
    e("v_lshrrev_b32 v%d, 3, v1" % vA_W)
    e("v_and_b32 v5, 1, v1")
    e("v_lshl_add_u32 v%d, v5, 3, v%d" % (vA_W, vA_W))
    e("v_lshlrev_b32 v%d, 4, v%d" % (vA_W, vA_W))
    e("v_add_u32 v%d, s%d, v%d" % (vA_W, sT1, vA_W))
    e("v_lshlrev_b32 v%d, 4, v2" % vA_H)

    n_total = 40
    while n_total - len(rest) - len(m.q) < P["b2pos"]:
        paced(1)
    while len(m.q) < P["nv_before"] and rest:
        ld_next()
    stamp(3)
    e("s_barrier")
    e("v_lshlrev_b32 v5, 4, v1")
    e("ds_read_b128 %s, v5 offset:%d" % (vr(vQ, 4), L_Q))
    e("ds_read_b32 v%d, v%d offset:%d" % (vT, vZERO, L_LOC))
    stamp(4)
    e("s_waitcnt lgkmcnt(0)")
    e("v_readfirstlane_b32 s%d, v%d" % (sLOC, vT))

    late = []
    for _ in range(P["n_late"]):
        late.insert(0, rest.pop())
    WIN = P["wo_win"]

    def more(n=1):
        for _ in range(n):
            if rest:
                ld_next()

    def feed_wait(kind, i):
        name = "%s%d" % (kind, i)
        while (kind, i) in rest:
            m.window(WIN)
            ld_next()
        while rest and name in m.q and m.q.index(name) > 0:
            m.window(WIN)
            if len(m.q) < WIN:
                ld_next()
        m.wait(name)

    def top_up():
        while rest and len(m.q) < WIN:
            ld_next()

    m.c("scores: QK, round to bf16, scale, round to bf16, running max")
    vM, vM2, vA1, vA2 = vT + 8, vT + 10, vT + 12, vT + 13
    e("v_lshrrev_b32 v%d, 2, v4" % vA2)
    e("v_lshlrev_b32 v%d, 4, v%d" % (vA2, vA2))
    e("v_lshl_add_u32 v%d, v2, 2, v%d" % (vA1, vA2))
    qp = ["[0,0,0,0]", "[1,1,1,1]", "[2,2,2,2]", "[3,3,3,3]"]

    def round4(b):
        for i in (4 * b, 4 * b + 2):
            e("v_cvt_pk_bf16_f32 v%d, v%d, v%d" % (vT + (i & 2) // 2, vS + i, vS + i + 1))
        for i in (4 * b, 4 * b + 2):
            e("v_lshlrev_b32 v%d, 16, v%d" % (vS + i, vT + (i & 2) // 2))
            e("v_and_b32 v%d, s%d, v%d" % (vS + i + 1, sMASK, vT + (i & 2) // 2))

    for b in range(4):
        for t in range(4):
            i = 4 * b + t
            feed_wait("k", i)
            e("v_mfma_f32_16x16x32_bf16 %s, %s, %s, 0" % (vr(vD[t], 4), vr(vK + 4 * i, 4), vr(vQ, 4)))
        n0 = len(m.L)
        top_up()
        more(P["n_qk"])
        used = len(m.L) - n0
        if used < 5:
            e("s_nop %d" % (4 - used))
        for u in range(4):
            for t in range(4):
                i = 4 * b + t
                if u == 0:
                    e("v_mov_b32_dpp v%d, v%d quad_perm:%s %s" % (vS + i, vD[t], qp[0], DPPALL))
                else:
                    e("v_add_f32_dpp v%d, v%d, v%d quad_perm:%s %s" % (vS + i, vD[t] + u, vS + i, qp[u], DPPALL))
        round4(b)
        for i in (4 * b, 4 * b + 2):
            e("v_pk_mul_f32 %s, %s, %s" % (vr(vS + i, 2), vr(vS + i, 2), sp(sSC)))
        round4(b)
        if b == 0:
            e("v_max3_f32 v%d, v%d, v%d, v%d" % (vM, vS, vS + 1, vS + 2))
            e("v_max_f32 v%d, v%d, v%d" % (vM, vM, vS + 3))
        else:
            e("v_max3_f32 v%d, v%d, v%d, v%d" % (vM, vM, vS + 4 * b, vS + 4 * b + 1))
            e("v_max3_f32 v%d, v%d, v%d, v%d" % (vM, vM, vS + 4 * b + 2, vS + 4 * b + 3))
    allreduce_groups(vM, vM2, "v_max_f32")
    e("ds_write_b32 v%d, v%d offset:%d" % (vA1, vM, L_MX))
    e("s_waitcnt lgkmcnt(0)")
    e("s_barrier")
    e("ds_read_b128 %s, v%d offset:%d" % (vr(vT, 4), vA2, L_MX))
    e("ds_read_b128 %s, v%d offset:%d" % (vr(vT + 4, 4), vA_H, L_MX))
    more(P["n_b3"])
    e("s_waitcnt lgkmcnt(0)")
    e("v_max3_f32 v%d, v%d, v%d, v%d" % (vM, vT, vT + 1, vT + 2))
    e("v_max3_f32 v%d, v%d, v%d, v%d" % (vMH, vT + 4, vT + 5, vT + 6))
    e("v_max_f32 v%d, v%d, v%d" % (vM, vM, vT + 3))
    e("v_max_f32 v%d, v%d, v%d" % (vMH, vMH, vT + 7))
    e("v_mul_f32 v%d, s%d, v%d" % (vM2, sL2E, vM))
    e("v_mul_f32 v%d, s%d, v%d" % (vM2 + 1, sL2E, vM))
    stamp(5)
    m.c("exp, P operands and PV, software pipelined over pairs of key sets")
    vPA = vK
    vL = vT

    def stA(p):
        i = 2 * p
        e("v_pk_fma_f32 %s, %s, %s, %s neg_lo:[0,0,1] neg_hi:[0,0,1]" % (vr(vS + i, 2), vr(vS + i, 2), sp(sL2E), vr(vM2, 2)))
        e("v_exp_f32 v%d, v%d" % (vS + i, vS + i))
        e("v_exp_f32 v%d, v%d" % (vS + i + 1, vS + i + 1))

    def stB(p):
        for i in (2 * p, 2 * p + 1):
            e("v_cvt_pk_bf16_f32 v%d, v%d, v%d" % (vPA + 2 * i, vS + i, vS + i))
        for i in (2 * p, 2 * p + 1):
            e("v_and_b32 v%d, v%d, v%d" % (vPA + 2 * i + 1, vPA + 2 * i, vMP + 1))
            e("v_and_b32 v%d, v%d, v%d" % (vPA + 2 * i, vPA + 2 * i, vMP + 0))
        if p == 1:
            e("v_pk_add_f32 %s, %s, %s" % (vr(vL, 2), vr(vS, 2), vr(vS + 2, 2)))
        elif p > 1:
            e("v_pk_add_f32 %s, %s, %s" % (vr(vL, 2), vr(vL, 2), vr(vS + 2 * p, 2)))

    def stC(p):
        for i in (2 * p, 2 * p + 1):
            feed_wait("v", i)
            for w in range(2):
                e("v_mfma_f32_16x16x16_bf16 %s, %s, %s, %s" % (vr(vACC + 4 * w, 4), vr(vPA + 2 * i, 2), vr(vVregs[i] + 2 * w, 2), "0" if i == 0 else vr(vACC + 4 * w, 4)))
            top_up()

    cl = P["c_lag"]
    def capture(fn, *a):
        keep = m.L
        m.L = []
        fn(*a)
        got, m.L = m.L, keep
        return got

    def weave(valu, mf):
        chunks, cur = [], []
        for ln in mf:
            cur.append(ln)
            if "v_mfma" in ln:
                chunks.append(cur)
                cur = []
        if cur:
            chunks[-1].extend(cur)
        n = len(chunks)
        per = -(-len(valu) // n)
        for k in range(n):
            m.L.extend(chunks[k])
            m.L.extend(valu[k * per:(k + 1) * per])

    stA(0)
    for p in range(8):
        va = capture(stA, p + 1) if p + 1 < 8 else []
        vb = capture(stB, p)
        if p - cl >= 0:
            if cl == 1:
                m.L.extend(va[:2] if va else ["    s_nop 1"])
                va = va[2:]
            weave(va + vb, capture(stC, p - cl))
        else:
            m.L.extend(va + vb)
    e("v_add_f32 v%d, v%d, v%d" % (vL, vL, vL + 1))
    allreduce_groups(vL, vL + 1, "v_add_f32")
    e("ds_write_b32 v%d, v%d offset:%d" % (vA1, vL, L_LS))
    for p in range(max(0, 8 - cl), 8):
        stC(p)
    while rest:
        ld_next()
    stamp(6)
    e("s_nop 6")
    e("ds_write_b128 v%d, %s offset:%d" % (vA_OW, vr(vACC, 4), L_OP))
    e("ds_write_b128 v%d, %s offset:%d" % (vA_OW, vr(vACC + 4, 4), L_OP + 1024))
    e("s_mov_b64 exec, 1")
    e("ds_add_u32 v%d, v%d offset:%d" % (vZERO, vONE, L_CNT))
    e("s_mov_b32 exec_lo, -1")
    e("s_mov_b32 exec_hi, 1")
    vLS = vS + 12
    e("s_mov_b32 s%d, %d" % (sSPIN, P["spin"]))
    m.lab("L_cnt")
    e("ds_read_b32 v5, v%d offset:%d" % (vZERO, L_CNT))
    for w in range(4):
        e("ds_read_b128 %s, v%d offset:%d" % (vr(vT + 4 * w, 4), vA_OR, L_OP + 2048 * w))
    e("ds_read_b128 %s, v%d offset:%d" % (vr(vLS, 4), vA_H, L_LS))
    e("s_sub_u32 s%d, s%d, 1" % (sSPIN, sSPIN))
    e("s_cbranch_scc1 L_cntx")
    e("s_waitcnt lgkmcnt(0)")
    e("v_cmp_ne_u32 vcc, 4, v5")
    e("s_cbranch_vccnz L_cnt")
    m.lab("L_cntx")
    e("v_pk_add_f32 %s, %s, %s" % (vr(vLS, 2), vr(vLS, 2), vr(vLS + 2, 2)))
    sum4_and_tag(vT, None, vT)
    e("v_add_f32 v%d, v%d, v%d" % (vLS, vLS, vLS + 1))
    e("v_cndmask_b32 v%d, v%d, v%d, %s" % (vT, vT, vMH, sp(sHI)))
    e("v_cndmask_b32 v%d, v%d, v%d, %s" % (vT + 1, vT + 1, vLS, sp(sHI)))
    for k in (2, 3, 0, 1):
        e("v_and_or_b32 v%d, v%d, s%d, v%d" % (vT + k, vT + k, sTM, vTG + k))
    store_loc("o", "global_store_dwordx4 v%d, %s, %s" % (vA_OG, vr(vT, 4), sp(sWS)))
    stamp(7)
    e("s_mov_b64 exec, -1")
    rest.extend(late)
    while rest:
        ld_next()
    if ST and P.get("wostamp"):
        m.wait("wo7")
        stamp(10)
    if P["ptrig"] >= 0:
        m.wait("wo%d" % P["ptrig"])
    vO = vS
    vR = vK + 0
    sM = [44, 46, 48]
    e("s_mov_b32 s%d, 0" % sSPIN)
    for h in range(3):
        e("s_mov_b64 %s, -1" % sp(sM[h]))
    def o_round(masked):
        for h, (dst, adr, off) in ((2, (vR + 8, vA_W, 0)), (0, (vR, vA_OP, 0)), (1, (vR + 4, vA_OP, 1024))):
            if masked:
                e("s_mov_b64 exec, %s" % sp(sM[h]))
                e("s_cbranch_execz L_osk%d" % h)
            e("global_load_dwordx4 %s, v%d, %s offset:%d sc1" % (vr(dst, 4), adr, sp(sWS), off))
            if masked:
                m.lab("L_osk%d" % h)
        if masked:
            e("s_mov_b64 exec, -1")

    if P["odepth"] > 1:
        o_round(False)
    m.lab("L_opoll")
    if P["odepth"] == 1:
        o_round(True)
    e("s_add_u32 s%d, s%d, 1" % (sSPIN, sSPIN))
    e("s_waitcnt vmcnt(0)")
    m.q = []
    for k in list(range(8, 12)) + list(range(8)):
        e("v_xor_b32 v%d, v%d, v%d" % (vO + k, vR + k, vTG + (k & 3)))
    if P["odepth"] > 1:
        o_round(True)
    vM_, vL_, vE, vX1, vX2 = vO + 8, vO + 9, vT + 12, vT + 13, vT + 14
    e("v_max_f32_dpp v%d, v%d, v%d quad_perm:[1,0,3,2] %s" % (vX1, vM_, vM_, DPPALL))
    for h in range(3):
        e("v_or3_b32 v%d, v%d, v%d, v%d" % (vT + 8 + h, vO + 4 * h, vO + 4 * h + 1, vO + 4 * h + 2))
    e("v_max_f32_dpp v%d, v%d, v%d row_ror:8 %s" % (vX1, vX1, vX1, DPPALL))
    e("v_mov_b32 v%d, v%d" % (vX2, vX1))
    for h in range(3):
        e("v_bitop3_b32 v%d, v%d, v%d, s%d bitop3:0x54" % (vT + 8 + h, vT + 8 + h, vO + 4 * h + 3, sTM))
    e("v_permlane16_swap_b32 v%d, v%d" % (vX1, vX2))
    e("v_max_f32 v%d, v%d, v%d" % (vX1, vX1, vX2))
    e("v_mov_b32 v%d, v%d" % (vX2, vX1))
    for h in range(3):
        e("v_cmp_ne_u32 %s, 0, v%d" % (sp(sM[h]), vT + 8 + h))
    e("v_permlane32_swap_b32 v%d, v%d" % (vX1, vX2))
    e("v_max_f32 v%d, v%d, v%d" % (vX1, vX1, vX2))
    e("s_or_b64 %s, %s, %s" % (sp(sSAVE), sp(sM[0]), sp(sM[1])))
    e("v_sub_f32 v%d, v%d, v%d" % (vE, vM_, vX1))
    e("s_or_b64 %s, %s, %s" % (sp(sSAVE), sp(sSAVE), sp(sM[2])))
    e("v_mul_f32 v%d, s%d, v%d" % (vE, sL2E, vE))
    e("s_cbranch_scc0 L_ogot")
    e("s_cmp_lt_u32 s%d, %d" % (sSPIN, P["spin"]))
    e("s_cbranch_scc1 L_opoll")
    m.lab("L_ogot")
    e("v_exp_f32 v%d, v%d" % (vE, vE))
    stamp(8)
    e("s_nop 0")
    e("v_mul_f32 v%d, v%d, v%d" % (vX1, vE, vL_))
    for k in range(4):
        e("v_mul_f32_dpp v%d, v%d, v%d quad_perm:[0,0,2,2] %s" % (vO + k, vE, vO + k, DPPALL))
        if k == 2:
            e("v_add_f32_dpp v%d, v%d, v%d quad_perm:[1,0,3,2] %s" % (vX1, vX1, vX1, DPPALL))
    for k in range(4):
        e("v_fmac_f32_dpp v%d, v%d, v%d quad_perm:[1,1,3,3] %s" % (vO + k, vE, vO + 4 + k, DPPALL))
        if k == 1:
            e("v_add_f32_dpp v%d, v%d, v%d row_ror:8 %s" % (vX1, vX1, vX1, DPPALL))
    e("v_mov_b32 v%d, v%d" % (vX2, vX1))
    e("v_permlane32_swap_b32 v%d, v%d" % (vO + 0, vO + 1))
    e("v_permlane32_swap_b32 v%d, v%d" % (vO + 2, vO + 3))
    e("v_permlane32_swap_b32 v%d, v%d" % (vX1, vX2))
    e("v_add_f32 v%d, v%d, v%d" % (vO + 0, vO + 0, vO + 1))
    e("v_add_f32 v%d, v%d, v%d" % (vO + 2, vO + 2, vO + 3))
    e("v_add_f32 v%d, v%d, v%d" % (vX1, vX1, vX2))
    e("v_mov_b32 v%d, v%d" % (vX2, vX1))
    e("v_permlane16_swap_b32 v%d, v%d" % (vO + 0, vO + 2))
    e("v_add_f32 v%d, v%d, v%d" % (vO + 0, vO + 0, vO + 2))
    e("v_permlane16_swap_b32 v%d, v%d" % (vX1, vX2))
    e("v_add_f32 v%d, v%d, v%d" % (vX1, vX1, vX2))
    e("v_rcp_f32 v%d, v%d" % (vX1, vX1))
    e("v_add_f32_dpp v%d, v%d, v%d row_ror:8 %s" % (vO + 0, vO + 0, vO + 0, DPPALL))
    e("v_mul_f32 v%d, v%d, v%d" % (vO + 0, vO + 0, vX1))
    e("v_cvt_pk_bf16_f32 v%d, v%d, v%d" % (vO + 0, vO + 0, vO + 0))
    e("s_nop 1")
    vAI = vK + 32

    def build_ai(i):
        for d in range(4):
            e("v_and_b32_dpp v%d, v%d, v%d row_newbcast:%d %s" % (vAI + 4 * i + d, vO, vMK + d, i, DPPALL))

    build_ai(0)
    for i in range(8):
        if i < 7:
            build_ai(i + 1)
        else:
            e("s_nop 0")
        e("v_mfma_f32_16x16x32_bf16 %s, %s, %s, %s" % (vr(vACC, 4), vr(vAI + 4 * i, 4), vr(vWO + 4 * i, 4), "0" if i == 0 else vr(vACC, 4)))
    e("s_mov_b32 exec_hi, 0")
    e("s_nop 6")
    e("ds_write_b128 v%d, %s offset:%d" % (vA_QP, vr(vACC, 4), L_QP))
    e("s_waitcnt lgkmcnt(0)")
    e("s_barrier")
    stamp(9)
    dump_stamps(11)
    e("s_endpgm")

    m.q = []
    incomm[0] = True
    m.lab("L_comm")
    cA, cB, cC, cD = 7, 8, 9, 10
    cGS = 11
    cT = 12
    cQA, cQG, cML, cFP = 28, 29, 30, 31
    cU = 32
    cTG = 64
    cTQ = 68
    cOA, cFG, cOP = 69, 70, 71
    cPT = 72
    cFU = 84

    decode()
    e("v_mov_b32 v%d, 0" % cT)
    e("ds_write_b32 v%d, v%d offset:%d" % (cT, cT, L_CNT))
    e("v_lshlrev_b32 v%d, 4, v1" % cA)
    e("v_and_b32 v%d, 31, v1" % cC)
    e("v_lshlrev_b32 v%d, 4, v%d" % (cC, cC))
    e("s_lshl_b32 s%d, s%d, 13" % (sT0, sGRP))
    e("s_add_u32 s%d, s%d, 0x%x" % (sT0, sT0, WS_Q))
    e("s_lshl_b32 s%d, s%d, 9" % (sT1, sJ))
    e("s_add_u32 s%d, s%d, s%d" % (sT1, sT1, sT0))
    e("v_add_u32 v%d, s%d, v%d" % (cQA, sT1, cC))
    e("s_waitcnt lgkmcnt(0)")
    e("s_load_dword s%d, %s, 0x%x" % (sTAG, sp(sWS), WS_EPOCH))
    e("s_mov_b32 exec_hi, 0")
    e("global_load_dwordx4 %s, v%d, %s %s" % (vr(cPT, 4), cQA, sp(sWS), P.get("ptflag", "sc1")))
    if P["tlbwarm"]:
        e("s_lshl_b32 s%d, s%d, 24" % (sT1, sKVH))
        e("s_add_u32 s%d, s%d, 0xF00000" % (sT1, sT1))
        e("v_lshlrev_b32 v%d, 16, v1" % (cPT + 4))
        e("v_add_u32 v%d, s%d, v%d" % (cPT + 4, sT1, cPT + 4))
        e("s_lshl_b32 s%d, s%d, 2" % (sT1, sKVH))
        e("s_lshr_b32 s%d, s%d, 2" % (sT2, sJ))
        e("s_add_u32 s%d, s%d, s%d" % (sT1, sT1, sT2))
        e("s_lshl_b32 s%d, s%d, 17" % (sT1, sT1))
        e("v_lshlrev_b32 v%d, 16, v1" % (cPT + 5))
        e("v_add_u32 v%d, s%d, v%d" % (cPT + 5, sT1, cPT + 5))
        e("v_mov_b32 v%d, 0" % (cPT + 6))
        e("s_mov_b64 exec, 0x%x" % (0xffff if P["tlbwarm"] == 2 else 1))
        e("global_load_dword v%d, v%d, %s" % (cPT + 7, cPT + 4, sp(sK)))
        e("global_load_dword v%d, v%d, %s" % (cPT + 8, cPT + 4, sp(sV)))
        e("s_mov_b64 exec, 0x%x" % (3 if P["tlbwarm"] == 2 else 1))
        e("global_load_dword v%d, v%d, %s" % (cPT + 9, cPT + 5, sp(sWO)))
        e("s_mov_b64 exec, 1")
        e("global_load_dword v%d, v%d, %s" % (cPT + 10, cPT + 6, sp(sOUT)))
        e("global_load_dword v%d, v%d, %s" % (cPT + 11, cPT + 6, sp(sGATE)))
    e("s_mov_b64 exec, -1")
    e("v_lshrrev_b32 v%d, 2, v4" % cQG)
    e("v_lshlrev_b32 v%d, 11, v%d" % (cQG, cQG))
    e("v_lshl_add_u32 v%d, v3, 7, v%d" % (cQG, cQG))
    e("v_and_b32 v%d, 3, v1" % cT)
    e("v_lshl_add_u32 v%d, v%d, 5, v%d" % (cQG, cT, cQG))
    e("v_add_u32 v%d, s%d, v%d" % (cQG, sT0, cQG))
    e("v_add_u32 v%d, 0x%x, v%d" % (cD, WS_QB - WS_Q, cQA))
    e("s_mov_b32 s%d, 0x3fb8aa3b" % sL2E)
    e("s_mov_b32 s%d, 0xffff0000" % sMASK)
    e("s_getreg_b32 s%d, hwreg(HW_REG_XCC_ID, 0, 4)" % sT2)
    stamp(1)
    e("s_waitcnt lgkmcnt(0)")
    make_tags(cTG)
    e("v_and_b32 v%d, 0x%x, v%d" % (cTQ, TM & ~15, cTG + 3))
    e("v_or_b32 v%d, s%d, v%d" % (cTQ, sT2, cTQ))
    stamp(2)
    e("s_mov_b32 exec_hi, 0")
    e("s_barrier")
    for w in range(4):
        e("ds_read_b128 %s, v%d offset:%d" % (vr(cU + 4 * w, 4), cC, L_QP + 512 * w))
    e("s_waitcnt lgkmcnt(0)")
    sum4_and_tag(cU, [cTG, cTG + 1, cTG + 2, cTQ], cT + 8, rnd=True)
    e("global_store_dwordx4 v%d, %s, %s" % (cQA, vr(cT + 8, 4), sp(sWS)))
    if P.get("eagerb"):
        e("global_store_dwordx4 v%d, %s, %s sc1" % (cD, vr(cT + 8, 4), sp(sWS)))
    e("s_mov_b64 exec, -1")
    stamp(3)
    e("s_lshl_b32 s%d, s%d, 4" % (sT0, sGRP))
    e("s_add_u32 s%d, s%d, s%d" % (sT0, sT0, sJ))
    e("s_lshl_b32 s%d, s%d, 11" % (sT1, sT0))
    e("s_add_u32 s%d, s%d, 0x%x" % (sT1, sT1, WS_O))
    e("v_add_u32 v%d, s%d, v%d" % (cOP, sT1, cA))
    e("s_lshr_b32 s%d, s%d, 2" % (sT1, sT0))
    e("s_lshl_b32 s%d, s%d, 8" % (sT1, sT1))
    e("s_add_u32 s%d, s%d, 0x%x" % (sT1, sT1, WS_ML))
    e("v_lshlrev_b32 v%d, 4, v4" % cML)
    e("v_add_u32 v%d, s%d, v%d" % (cML, sT1, cML))
    e("s_and_b32 s%d, s%d, 3" % (sT0, sJ))
    e("s_lshl_b32 s%d, s%d, 6" % (sT0, sT0))
    e("s_lshl_b32 s%d, s%d, 5" % (sT1, sBR))
    e("s_add_u32 s%d, s%d, s%d" % (sT0, sT0, sT1))
    e("s_lshl_b32 s%d, s%d, 2" % (sT1, sKVH))
    e("s_add_u32 s%d, s%d, s%d" % (sT0, sT0, sT1))
    e("s_lshr_b32 s%d, s%d, 2" % (sT1, sJ))
    e("s_add_u32 s%d, s%d, s%d" % (sT0, sT0, sT1))
    e("s_lshl_b32 s%d, s%d, 9" % (sT0, sT0))
    e("s_add_u32 s%d, s%d, 0x%x" % (sT0, sT0, WS_F))
    e("v_add_u32 v%d, s%d, v%d" % (cFP, sT0, cC))
    e("s_lshl_b32 s%d, s%d, 4" % (sT0, sKVH))
    e("s_bfe_u32 s%d, s2, 0x40003" % sT1)
    e("s_add_u32 s%d, s%d, s%d" % (sT0, sT0, sT1))
    e("s_lshr_b32 s%d, s%d, 5" % (sT1, sT0))
    e("s_lshl_b32 s%d, s%d, 15" % (sT1, sT1))
    e("s_and_b32 s%d, s%d, 31" % (sT2, sT0))
    e("s_lshl_b32 s%d, s%d, 4" % (sT2, sT2))
    e("s_add_u32 s%d, s%d, s%d" % (sT1, sT1, sT2))
    e("s_add_u32 s%d, s%d, 0x%x" % (sT1, sT1, WS_F))
    e("v_lshlrev_b32 v%d, 9, v1" % cFG)
    e("v_add_u32 v%d, s%d, v%d" % (cFG, sT1, cFG))
    e("v_and_b32 v%d, 1, v3" % cOA)
    e("v_bfe_u32 v%d, v1, 3, 1" % cT)
    e("v_lshl_add_u32 v%d, v%d, 1, v%d" % (cOA, cT, cOA))
    e("v_lshlrev_b32 v%d, 1, v%d" % (cOA, cOA))
    e("s_lshl_b32 s%d, s%d, 3" % (sT0, sT0))
    e("v_add_u32 v%d, s%d, v%d" % (cOA, sT0, cOA))
    e("s_mov_b32 s%d, 0" % sSPIN)
    if P.get("d_noq"):
        e("s_branch L_gotq")
    m.lab("L_pollq")
    for rq in range(4):
        for hf in range(2):
            e("global_load_dwordx4 %s, v%d, %s offset:%d sc1" % (vr(cU + 8 * rq + 4 * hf, 4), cQG, sp(sWS), rq * 512 + hf * 16))
    e("s_add_u32 s%d, s%d, 1" % (sSPIN, sSPIN))
    e("s_waitcnt vmcnt(0)")
    for k in range(32):
        e("v_xor_b32 v%d, v%d, v%d" % (cU + k, cU + k, cTQ if (k & 3) == 3 else cTG + (k & 3)))
    e("v_or3_b32 v%d, v%d, v%d, v%d" % (cT + 1, cU + 3, cU + 7, cU + 11))
    e("v_or3_b32 v%d, v%d, v%d, v%d" % (cT + 1, cT + 1, cU + 15, cU + 19))
    e("v_or3_b32 v%d, v%d, v%d, v%d" % (cT + 1, cT + 1, cU + 23, cU + 27))
    e("v_or_b32 v%d, v%d, v%d" % (cT + 1, cT + 1, cU + 31))
    e("v_and_b32 v%d, -16, v%d" % (cT, cT + 1))
    rest3 = [cU + k for k in range(32) if (k & 3) != 3]
    for k in range(0, 24, 2):
        e("v_or3_b32 v%d, v%d, v%d, v%d" % (cT, cT, rest3[k], rest3[k + 1]))
    e("v_and_b32 v%d, 0x%x, v%d" % (cT, TM, cT))
    e("v_cmp_ne_u32 vcc, 0, v%d" % cT)
    e("s_cbranch_vccz L_gotq")
    e("s_cmp_lt_u32 s%d, %d" % (sSPIN, P["nfast"]))
    e("s_cbranch_scc1 L_pollq")
    e("v_xor_b32 v%d, 0x%x, v%d" % (cQG, WS_QB ^ WS_Q, cQG))
    e("s_cmp_lg_u32 s%d, %d" % (sSPIN, P["nfast"]))
    e("s_cbranch_scc1 L_nswq")
    e("s_mov_b32 exec_hi, 0")
    e("global_store_dwordx4 v%d, %s, %s sc1" % (cD, vr(cT + 8, 4), sp(sWS)))
    e("s_mov_b64 exec, -1")
    m.lab("L_nswq")
    e("s_cmp_lt_u32 s%d, %d" % (sSPIN, P["spin"]))
    e("s_cbranch_scc1 L_pollq")
    m.lab("L_gotq")
    e("v_and_b32 v%d, 15, v%d" % (cT + 1, cT + 1))
    e("v_cmp_ne_u32 vcc, 0, v%d" % (cT + 1))
    for k in range(3, 32, 4):
        e("v_and_b32 v%d, -16, v%d" % (cU + k, cU + k))
    e("s_or_b32 s%d, vcc_lo, vcc_hi" % sLOC)
    if P.get("force_wt"):
        e("s_mov_b32 s%d, 1" % sLOC)
    e("s_cmp_eq_u32 s%d, 0" % sLOC)
    e("s_cbranch_scc1 L_qloc")
    e("s_mov_b32 exec_hi, 0")
    e("global_store_dwordx4 v%d, %s, %s sc1" % (cD, vr(cT + 8, 4), sp(sWS)))
    e("s_mov_b64 exec, -1")
    m.lab("L_qloc")
    for k in range(0, 8, 2):
        e("v_pk_add_f32 %s, %s, %s" % (vr(cU + k, 2), vr(cU + k, 2), vr(cU + 8 + k, 2)))
        e("v_pk_add_f32 %s, %s, %s" % (vr(cU + 16 + k, 2), vr(cU + 16 + k, 2), vr(cU + 24 + k, 2)))
    for k in range(0, 8, 2):
        e("v_pk_add_f32 %s, %s, %s" % (vr(cU + k, 2), vr(cU + k, 2), vr(cU + 16 + k, 2)))
    for k in range(4):
        e("v_cvt_pk_bf16_f32 v%d, v%d, v%d" % (cT + k, cU + 2 * k, cU + 2 * k + 1))
    e("v_mov_b32 v%d, s%d" % (cT + 4, sLOC))
    e("v_mov_b32 v%d, 0" % (cT + 5))
    e("ds_write_b128 v%d, %s offset:%d" % (cA, vr(cT, 4), L_Q))
    e("ds_write_b32 v%d, v%d offset:%d" % (cT + 5, cT + 4, L_LOC))
    PF = P.get("ptflag", "sc1")
    early_pt = P.get("early_pt", P["lag"] < 16)
    if not early_pt:
        e("s_waitcnt lgkmcnt(0)")
        stamp(4)
        e("s_barrier")
    e("global_load_dwordx4 %s, v%d, %s %s" % (vr(cU, 4), cA, sp(sX), P.get("xflag", "")))
    e("global_load_dwordx4 %s, v%d, %s %s" % (vr(cU + 4, 4), cA, sp(sGATE), P.get("xflag", "")))
    e("global_load_dwordx4 %s, v%d, %s %s" % (vr(cPT, 4), cOP, sp(sWS), PF))
    e("global_load_dwordx4 %s, v%d, %s offset:1024 %s" % (vr(cPT + 4, 4), cOP, sp(sWS), PF))
    e("global_load_dwordx4 %s, v%d, %s %s" % (vr(cPT + 8, 4), cML, sp(sWS), PF))
    if P["fpre"]:
        e("s_cmp_ge_u32 s2, 128")
        e("s_cbranch_scc1 L_nofp")
        e("global_load_dwordx4 %s, v%d, %s sc1" % (vr(cFU, 4), cFG, sp(sWS)))
        m.lab("L_nofp")
    if early_pt:
        e("s_waitcnt lgkmcnt(0)")
        stamp(4)
        e("s_barrier")
    e("s_barrier")
    e("s_waitcnt vmcnt(0)")
    m.c("gate")
    for i in range(4):
        e("v_lshlrev_b32 v%d, 16, v%d" % (cT + 2 * i, cU + i))
        e("v_and_b32 v%d, s%d, v%d" % (cT + 2 * i + 1, sMASK, cU + i))
        e("v_lshlrev_b32 v%d, 16, v%d" % (cT + 8 + 2 * i, cU + 4 + i))
        e("v_and_b32 v%d, s%d, v%d" % (cT + 8 + 2 * i + 1, sMASK, cU + 4 + i))
    for i in range(8):
        e("v_mul_f32 v%d, v%d, v%d" % (cT + i, cT + i, cT + 8 + i))
    for i in range(4):
        e("v_cvt_pk_bf16_f32 v%d, v%d, v%d" % (cT + 8 + i, cT + 2 * i, cT + 2 * i + 1))
    for i in range(4):
        e("v_lshlrev_b32 v%d, 16, v%d" % (cT + 2 * i, cT + 8 + i))
        e("v_and_b32 v%d, s%d, v%d" % (cT + 2 * i + 1, sMASK, cT + 8 + i))
    for i in range(4):
        e("v_add_f32 v%d, v%d, v%d" % (cT + i, cT + i, cT + 4 + i))
    e("v_add_f32 v%d, v%d, v%d" % (cT + 0, cT + 0, cT + 2))
    e("v_add_f32 v%d, v%d, v%d" % (cT + 1, cT + 1, cT + 3))
    e("v_add_f32 v%d, v%d, v%d" % (cT + 0, cT + 0, cT + 1))
    row_allreduce(cT, "v_add_f32")
    allreduce_groups(cT, cT + 1, "v_add_f32")
    e("v_cvt_pk_bf16_f32 v%d, v%d, v%d" % (cT, cT, cT))
    e("v_and_b32 v%d, s%d, v%d" % (cT, sMASK, cT))
    e("v_mul_f32 v%d, s%d, v%d" % (cT, sL2E, cT))
    e("v_exp_f32 v%d, -v%d" % (cT, cT))
    e("s_nop 0")
    e("v_add_f32 v%d, 1.0, v%d" % (cT, cT))
    e("v_rcp_f32 v%d, v%d" % (cT, cT))
    e("s_nop 0")
    e("v_cvt_pk_bf16_f32 v%d, v%d, v%d" % (cT, cT, cT))
    e("v_and_b32 v%d, s%d, v%d" % (cT + 1, sMASK, cT))
    e("v_sub_f32 v%d, 1.0, v%d" % (cT, cT + 1))
    e("v_cmp_gt_u32 vcc, 32, v1")
    e("v_cvt_pk_bf16_f32 v%d, v%d, v%d" % (cT, cT, cT))
    e("v_and_b32 v%d, s%d, v%d" % (cT, sMASK, cT))
    e("v_cndmask_b32 v%d, v%d, v%d, vcc" % (cGS, cT, cT + 1))
    e("s_mov_b32 s%d, 0xff00ff00" % sHI)
    e("s_mov_b32 s%d, 0xff00ff00" % (sHI + 1))
    stamp(5)
    e("s_mov_b32 exec_hi, 0")
    e("s_barrier")
    for w in range(4):
        e("ds_read_b128 %s, v%d offset:%d" % (vr(cU + 4 * w, 4), cC, L_QP + 512 * w))
    stamp(6)
    e("s_waitcnt lgkmcnt(0)")
    sum4_and_tag(cU, [cTG + k for k in range(4)], cT + 8)
    e("global_store_dwordx4 v%d, %s, %s %s" % (cFP, vr(cT + 8, 4), sp(sWS), P.get("fsflag", "sc1")))
    e("s_mov_b64 exec, -1")
    stamp(7)
    e("s_cmp_ge_u32 s2, 128")
    e("s_cbranch_scc1 L_fin")
    if P["fwait"]:
        e("s_sleep %d" % P["fwait"])
    e("s_mov_b32 s%d, 0" % sSPIN)
    e("s_mov_b64 vcc, -1")
    m.lab("L_pollf")
    if P["fsleep"]:
        e("s_sleep %d" % P["fsleep"])
    e("s_mov_b64 exec, vcc")
    e("global_load_dwordx4 %s, v%d, %s %s" % (vr(cFU, 4), cFG, sp(sWS), P.get("fflag", "sc1")))
    e("s_mov_b64 exec, -1")
    e("s_add_u32 s%d, s%d, 1" % (sSPIN, sSPIN))
    e("s_waitcnt vmcnt(0)")
    for d in range(4):
        e("v_xor_b32 v%d, v%d, v%d" % (cU + d, cFU + d, cTG + d))
    e("v_or3_b32 v%d, v%d, v%d, v%d" % (cT, cU, cU + 1, cU + 2))
    e("v_bitop3_b32 v%d, v%d, v%d, s%d bitop3:0x54" % (cT, cT, cU + 3, sTM))
    e("v_cmp_ne_u32 vcc, 0, v%d" % cT)
    e("s_cbranch_vccz L_gotf")
    e("s_cmp_lt_u32 s%d, %d" % (sSPIN, P["spin"]))
    e("s_cbranch_scc1 L_pollf")
    m.lab("L_gotf")
    stamp(8)
    e("v_permlane16_swap_b32 v%d, v%d" % (cU + 0, cU + 1))
    e("v_permlane16_swap_b32 v%d, v%d" % (cU + 2, cU + 3))
    e("v_add_f32 v%d, v%d, v%d" % (cU + 0, cU + 0, cU + 1))
    e("v_add_f32 v%d, v%d, v%d" % (cU + 2, cU + 2, cU + 3))
    e("s_nop 0")
    e("v_add_f32_dpp v%d, v%d, v%d row_ror:8 %s" % (cU + 1, cU + 0, cU + 0, DPPALL))
    e("v_add_f32_dpp v%d, v%d, v%d row_ror:8 %s" % (cU + 3, cU + 2, cU + 2, DPPALL))
    e("v_cndmask_b32 v%d, v%d, v%d, %s" % (cT, cU + 1, cU + 3, sp(sHI)))
    for md in ("quad_perm:[1,0,3,2]", "quad_perm:[2,3,0,1]", "row_half_mirror"):
        e("s_nop 1")
        e("v_add_f32_dpp v%d, v%d, v%d %s %s" % (cT, cT, cT, md, DPPALL))
    e("v_cvt_pk_bf16_f32 v%d, v%d, v%d" % (cT, cT, cT))
    e("v_and_b32 v%d, s%d, v%d" % (cT, sMASK, cT))
    e("v_mul_f32 v%d, v%d, v%d" % (cT, cT, cGS))
    e("v_cvt_pk_bf16_f32 v%d, v%d, v%d" % (cT, cT, cT))
    e("v_and_b32 v%d, s%d, v%d" % (cT, sMASK, cT))
    e("v_mov_b32 v%d, v%d" % (cT + 1, cT))
    e("s_nop 1")
    e("v_permlane32_swap_b32 v%d, v%d" % (cT, cT + 1))
    e("v_add_f32 v%d, v%d, v%d" % (cT, cT, cT + 1))
    e("v_cvt_pk_bf16_f32 v%d, v%d, v%d" % (cT, cT, cT))
    e("s_mov_b64 exec, 0x01010101")
    e("global_store_short v%d, v%d, %s %s" % (cOA, cT, sp(sOUT), P.get("outflag", "")))
    e("s_cmp_lg_u32 s2, 0")
    e("s_cbranch_scc1 L_fin")
    e("s_mov_b64 exec, 1")
    e("v_mov_b32 v%d, s%d" % (cT + 2, sTAG))
    e("v_mov_b32 v%d, 0" % (cT + 3))
    e("global_store_dword v%d, v%d, %s offset:%d" % (cT + 3, cT + 2, sp(sWS), WS_EPOCH))
    m.lab("L_fin")
    stamp(9)
    if P.get("amp"):
        e("s_waitcnt lgkmcnt(0)")
        e("s_sub_u32 s93, s98, s94")
        e("s_mul_i32 s93, s93, %d" % P["amp"])
        e("s_add_u32 s98, s94, s93")
    if P.get("padto"):
        m.lab("L_pad")
        e("s_memrealtime s[96:97]")
        e("s_waitcnt lgkmcnt(0)")
        e("s_sub_u32 s96, s96, s98")
        e("s_cmp_lt_i32 s96, %d" % P["padto"])
        e("s_cbranch_scc1 L_pad")
    dump_stamps(10)
    m.lab("L_end")
    e("s_endpgm")

    hdr = open("cdna_kernels/%s.s.ref" % NAME).read().split("; Override launch")[0]
    out = hdr
    out += "; @launch grid=(256,1,1) block=(320,1,1) lds=%d\n" % P["lds"]
    out += '.amdgcn_target "amdgcn-amd-amdhsa--gfx950"\n.text\n.globl %s_kernel\n.p2align 8\n.type %s_kernel,@function\n%s_kernel:\n' % (NAME, NAME, NAME)
    out += "\n".join(m.L) + "\n"
    out += """.section .rodata,"a"
.p2align 6
.amdhsa_kernel %s_kernel
  .amdhsa_next_free_vgpr 256
  .amdhsa_next_free_sgpr 102
  .amdhsa_accum_offset 256
  .amdhsa_group_segment_fixed_size 0
  .amdhsa_kernarg_size 112
  .amdhsa_user_sgpr_count 2
  .amdhsa_user_sgpr_kernarg_segment_ptr 1
  .amdhsa_system_sgpr_workgroup_id_x 1
.end_amdhsa_kernel
""" % NAME
    return out


if __name__ == "__main__":
    kw = {}
    outp = sys.argv[1]
    for a in sys.argv[2:]:
        k, v = a.split("=")
        kw[k] = int(v) if v.lstrip("-").isdigit() else v
    open(outp, "w").write(gen(**kw))
```

```python
import sys

NAME = "gated_mix__sliding_block_cached__sliding_block_cached__decode"

WS_EPOCH = 0x0
WS_ML = 0x10000
WS_Q = 0x20000
WS_F = 0x40000
WS_QB = 0x60000
WS_O = 0x80000
WS_STAMP = 0x300000
TB = 10
TM = (1 << TB) - 1

L_QP = 0x0
L_Q = 0x800
L_MX = 0xC00
L_CNT = 0xC40
L_LOC = 0xC44
L_LS = 0xC80
L_OP = 0x1000

DEF = dict(
    stamps=0, window=6, nv_before=11, ldflag="nt", lds=90112, spin=60000,
    nfast=12, wo_win=10, swz=1, wo_early=0, n_b3=2, tlbwarm=0, omask=1, osleep=0, fsleep=0, fwait=-1, spt=0, ptflag="sc1", n_late=0, ptrig=6, odepth=1, fpre=1, lag=8, b2pos=16, n_qk=0, c_lag=1,
)


DOC = """;
;   3. {o partial, max, sum} go round the group; each wave merges 32 o values with the group's true
"""


class Em:
    def __init__(self):
        self.L = []
        self.q = []

    def e(self, s):
        self.L.append("    " + s)

    def lab(self, s):
        self.L.append(s + ":")

    def c(self, s):
        self.L.append("    ; " + s)

    def vm(self, name, s):
        self.e(s)
        self.q.append(name)

    def wait(self, name):
        if name not in self.q:
            return
        i = self.q.index(name)
        n = len(self.q) - 1 - i
        self.e("s_waitcnt vmcnt(%d)" % n)
        self.q = self.q[i + 1:]

    def window(self, w):
        if w and len(self.q) >= w:
            self.wait(self.q[len(self.q) - w])


def vr(a, n=1):
    return "v%d" % a if n == 1 else "v[%d:%d]" % (a, a + n - 1)


def sp(a):
    return "s[%d:%d]" % (a, a + 1)


DPPALL = "row_mask:0xf bank_mask:0xf"


def gen(**kw):
    P = dict(DEF)
    P.update(kw)
    W = P["window"]
    FL = P["ldflag"]
    ST = P["stamps"]
    m = Em()
    e = m.e

    sX = 4
    sPC = 6
    sK, sV, sWQ, sWO = 8, 10, 12, 14
    sGATE, sOUT, sDBG, sWS = 16, 18, 20, 22
    sKVH, sBR, sJ, sWAVE, sGRP = 24, 25, 26, 27, 28
    sT0, sT1, sT2 = 29, 30, 31
    sTAG, sTM, sMASK, sSPIN = 32, 33, 34, 35
    sSC = 36
    sL2E = 38
    sLOC = 40
    sSAVE = 42
    sHI = 50
    sSTAMP = 70

    incomm = [False]

    def stamp(idx):
        if ST:
            e("s_memrealtime s[%d:%d]" % (sSTAMP + 2 * idx, sSTAMP + 2 * idx + 1))
        if incomm[0] and P.get("padref") == idx:
            e("s_memrealtime s[98:99]")

    def dump_stamps(n):
        if not ST:
            return
        e("s_waitcnt lgkmcnt(0)")
        if P.get("late_dump", 1):
            lab = "L_ld%d" % len(m.L)
            m.lab(lab)
            e("s_sleep 8")
            e("s_memrealtime s[44:45]")
            e("s_waitcnt lgkmcnt(0)")
            e("s_sub_u32 s44, s44, s%d" % sSTAMP)
            e("s_cmp_lt_u32 s44, 2000")
            e("s_cbranch_scc1 " + lab)
        e("s_mov_b64 exec, 1")
        for i in range(n):
            e("v_mov_b32 v%d, s%d" % (8 + i, sSTAMP + 2 * i))
        for i in range(n, 16):
            e("v_mov_b32 v%d, 0" % (8 + i))
        e("s_lshl_b32 s%d, s2, 3" % sT0)
        e("s_add_u32 s%d, s%d, s%d" % (sT0, sT0, sWAVE))
        e("s_lshl_b32 s%d, s%d, 6" % (sT0, sT0))
        e("s_add_u32 s%d, s%d, 0x%x" % (sT0, sT0, WS_STAMP))
        e("v_mov_b32 v1, s%d" % sT0)
        for i in range(4):
            e("global_store_dwordx4 v1, v[%d:%d], %s offset:%d" % (8 + 4 * i, 11 + 4 * i, sp(sWS), 16 * i))

    def make_tags(v):
        e("s_add_u32 s%d, s%d, 0x9E3779B9" % (sTAG, sTAG))
        for k, sh in enumerate((0, 10, 20, 22)):
            e("s_bfe_u32 s%d, s%d, 0x%x" % (sT0, sTAG, (TB << 16) | sh))
            e("v_mov_b32 v%d, s%d" % (v + k, sT0))
        e("s_mov_b32 s%d, 0x%x" % (sTM, 0xffffffff ^ TM))

    def allreduce_groups(v, tmp, op):
        e("v_mov_b32 v%d, v%d" % (tmp, v))
        e("s_nop 1")
        e("v_permlane32_swap_b32 v%d, v%d" % (v, tmp))
        e("%s v%d, v%d, v%d" % (op, v, v, tmp))
        e("v_mov_b32 v%d, v%d" % (tmp, v))
        e("s_nop 1")
        e("v_permlane16_swap_b32 v%d, v%d" % (v, tmp))
        e("%s v%d, v%d, v%d" % (op, v, v, tmp))

    def row_allreduce(v, op):
        for r in (8, 4, 2, 1):
            e("s_nop 1")
            e("%s_dpp v%d, v%d, v%d row_ror:%d %s" % (op, v, v, v, r, DPPALL))

    def sum4_and_tag(t, tg, dst, rnd=False):
        for k in (0, 2):
            e("v_pk_add_f32 %s, %s, %s" % (vr(t + k, 2), vr(t + k, 2), vr(t + 4 + k, 2)))
            e("v_pk_add_f32 %s, %s, %s" % (vr(t + 8 + k, 2), vr(t + 8 + k, 2), vr(t + 12 + k, 2)))
        for k in (0, 2):
            e("v_pk_add_f32 %s, %s, %s" % (vr(t + k, 2), vr(t + k, 2), vr(t + 8 + k, 2)))
        if rnd:
            for k in range(4):
                e("v_add_u32 v%d, 0x%x, v%d" % (t + k, 1 << (TB - 1), t + k))
        if tg:
            for k in range(4):
                e("v_and_or_b32 v%d, v%d, s%d, v%d" % (dst + k, t + k, sTM, tg[k]))

    def check_embedded(u, n, tg, acc):
        for k in range(n):
            e("v_xor_b32 v%d, v%d, v%d" % (u + k, u + k, tg + (k & 3)))
        e("v_or3_b32 v%d, v%d, v%d, v%d" % (acc, u, u + 1, u + 2))
        k = 3
        while k < n:
            if k + 1 < n:
                e("v_or3_b32 v%d, v%d, v%d, v%d" % (acc, acc, u + k, u + k + 1))
                k += 2
            else:
                e("v_or_b32 v%d, v%d, v%d" % (acc, acc, u + k))
                k += 1
        e("v_and_b32 v%d, 0x%x, v%d" % (acc, TM, acc))
        e("v_cmp_ne_u32 vcc, 0, v%d" % acc)

    def store_loc(name, text):
        e("s_cmp_lg_u32 s%d, 0" % sLOC)
        e("s_cbranch_scc1 L_wt_" + name)
        e(text)
        e("s_branch L_sd_" + name)
        m.lab("L_wt_" + name)
        e(text + " sc1")
        m.lab("L_sd_" + name)
        m.q.append(name)

    e("s_and_b32 s%d, s2, 8" % sT0)
    e("s_mul_i32 s%d, s%d, 5" % (sT0, sT0))
    e("s_load_dwordx8 s[8:15], s[0:1], s%d offset:0x8" % sT0)
    e("s_load_dwordx2 %s, s[0:1], 0" % sp(sX))
    stamp(0)
    if P.get("amp"):
        e("s_memrealtime s[94:95]")
    e("v_readfirstlane_b32 s%d, v0" % sWAVE)
    e("s_cmpk_ge_u32 s2, 0x100")
    e("s_cbranch_scc1 L_end")
    e("v_and_b32 v4, 15, v0")
    e("s_and_b32 s%d, s2, 7" % sKVH)
    e("s_cmpk_lt_u32 s%d, 0x100" % sWAVE)
    e("s_cbranch_scc1 L_comp")
    e("s_getpc_b64 %s" % sp(sPC))
    m.lab("L_pc")
    e("v_lshlrev_b32 v5, 7, v0")
    e("v_min_u32 v5, L_end-L_pc+0x8000, v5")
    e("s_sub_u32 s%d, s%d, 0x8000" % (sPC, sPC))
    e("s_subb_u32 s%d, s%d, 0" % (sPC + 1, sPC + 1))
    e("global_load_dword v6, v5, %s %s" % (sp(sPC), P.get("cpflag", "")))
    e("s_branch L_comm")
    m.lab("L_comp")

    vOK, vOV, vOO, vOX = 6, 7, 8, 9
    vMK = 10
    vMP = 14
    vAD = 16
    vZERO, vONE = 18, 19
    vA_OW, vA_OR, vA_OG, vA_OP = 20, 21, 22, 23
    vX = 24
    vTG = 24
    vQ = 28
    vACC = 32
    vT = 40
    vS = 56
    vWQ = 72
    vAX = 104
    vWO = 104
    vK = 136
    vVregs = [200 + 4 * i for i in range(14)] + [vWQ + 0, vWQ + 4]
    vD = [vWQ + 8 + 4 * i for i in range(4)]
    vA_QP, vA_W, vA_H, vMH = vWQ + 24, vWQ + 25, vWQ + 26, vWQ + 27

    e("s_lshr_b32 s%d, s2, 6" % sT1)
    e("s_lshl2_add_u32 s%d, s%d, s%d" % (sT0, sKVH, sT1))
    e("s_and_b32 s%d, s2, 48" % sT1)
    e("v_lshrrev_b32 v6, 4, v0")
    e("v_lshl_or_b32 v5, s%d, 4, v4" % sT0)
    e("v_add_u32 v6, s%d, v6" % sT1)
    e("s_movk_i32 s%d, 0x2000" % sT1)
    e("v_lshlrev_b32 v%d, 4, v6" % vOX)
    e("v_lshl_or_b32 v5, v6, 12, v5")
    e("v_lshlrev_b32 v%d, 4, v5" % vT)
    for i in range(1, 8):
        e("v_add_u32 v%d, s%d, v%d" % (vT + i, sT1, vT + i - 1))
    e("s_waitcnt lgkmcnt(0)")
    m.vm("x", "global_load_dwordx4 %s, v%d, %s %s" % (vr(vX, 4), vOX, sp(sX), P.get("xflag", "")))
    for i in range(8):
        m.vm("wq%d" % i, "global_load_dwordx4 %s, v%d, %s %s" % (vr(vWQ + 4 * i, 4), vT + i, sp(sWQ), FL))
    m.lab("L_first")
    stamp(1)

    def decode():
        e("s_load_dwordx8 s[16:23], s[0:1], 80")
        if P.get("padto") and not P.get("padref"):
            e("s_memrealtime s[98:99]")
        e("v_lshrrev_b32 v2, 6, v0")
        e("v_and_b32 v1, 63, v0")
        e("v_bfe_u32 v3, v0, 4, 2")
        e("s_lshr_b32 s%d, s%d, 6" % (sWAVE, sWAVE))
        e("s_bfe_u32 s%d, s2, 0x10003" % sBR)
        e("s_lshr_b32 s%d, s2, 4" % sJ)
        e("s_lshl1_add_u32 s%d, s%d, s%d" % (sGRP, sKVH, sBR))

    decode()
    e("s_lshl_b32 s%d, s%d, 8" % (sT0, sT0))
    e("s_lshl_b32 s%d, s%d, 24" % (sT1, sKVH))
    e("s_lshl_b32 s%d, s%d, 12" % (sT2, sJ))
    e("s_add_u32 s%d, s%d, s%d" % (sT1, sT1, sT2))
    e("s_add_u32 s%d, s%d, 0xF00000" % (sT1, sT1))
    e("v_bfe_u32 v%d, v1, 2, 2" % vOK)
    e("v_lshlrev_b32 v%d, 8, v%d" % (vOK, vOK))
    e("v_lshl_add_u32 v%d, v3, 6, v%d" % (vOK, vOK))
    e("v_and_b32 v5, 3, v1")
    e("v_lshl_add_u32 v%d, v5, 4, v%d" % (vOK, vOK))
    e("v_lshl_add_u32 v%d, v2, 10, v%d" % (vOK, vOK))
    e("v_add_u32 v%d, s%d, v%d" % (vOK, sT1, vOK))
    e("v_lshlrev_b32 v%d, 4, v0" % vOV)
    e("v_add_u32 v%d, s%d, v%d" % (vOV, sT1, vOV))
    e("s_lshl_b32 s%d, s%d, 9" % (sT0, sT0))
    e("s_and_b32 s%d, s%d, 3" % (sT1, sJ))
    e("s_lshl_b32 s%d, s%d, 8" % (sT1, sT1))
    e("s_add_u32 s%d, s%d, s%d" % (sT0, sT0, sT1))
    e("v_and_b32 v5, 1, v3")
    e("v_lshlrev_b32 v%d, 11, v5" % vOO)
    e("v_lshrrev_b32 v5, 1, v3")
    e("v_lshl_add_u32 v%d, v5, 10, v%d" % (vOO, vOO))
    e("v_lshl_add_u32 v%d, v2, 15, v%d" % (vOO, vOO))
    e("v_lshl_add_u32 v%d, v4, 4, v%d" % (vOO, vOO))
    e("v_add_u32 v%d, s%d, v%d" % (vOO, sT0, vOO))
    e("s_waitcnt lgkmcnt(0)")
    e("s_load_dword s%d, %s, 0x%x" % (sTAG, sp(sWS), WS_EPOCH))

    def swz(i):
        return (i << 16) | (((i * P["swz"]) & 15) << 12)

    nad = [0]

    def ld_x(name, dst, off, const, base):
        if const:
            a = vAD + (nad[0] & 1)
            nad[0] += 1
            e("v_xor_b32 v%d, 0x%x, v%d" % (a, const, off))
        else:
            a = off
        m.vm(name, "global_load_dwordx4 %s, v%d, %s %s" % (vr(dst, 4), a, sp(base), FL))

    def ld_k(i):
        ld_x("k%d" % i, vK + 4 * i, vOK, swz(i), sK)

    def ld_v(i):
        ld_x("v%d" % i, vVregs[i], vOV, swz(i), sV)

    def ld_wo(i):
        ld_x("wo%d" % i, vWO + 4 * i, vOO, i << 12, sWO)

    lag = P["lag"]
    KS = [("k", i) for i in range(16)]
    VS = [("v", i) for i in range(16)]
    WS_ = [("wo", i) for i in range(8)]
    rest = KS[:lag] + [x for p in zip(KS[lag:], VS[:16 - lag]) for x in p] + WS_[:P["wo_early"]] + VS[16 - lag:] + WS_[P["wo_early"]:]

    if P.get("seq"):
        sq = P["seq"]
        assert sq.count("k") == 16 and sq.count("v") == 16 and sq.count("o") == 8, sq
        its = {"k": iter(KS), "v": iter(VS), "o": iter(WS_)}
        rest = [next(its[ch]) for ch in sq]

    def ld_next():
        kind, i = rest.pop(0)
        {"k": ld_k, "v": ld_v, "wo": ld_wo}[kind](i)

    def paced(n):
        for _ in range(n):
            m.window(W)
            ld_next()

    m.c("masks")
    e("v_and_b32 v5, 1, v1")
    e("v_lshlrev_b32 v5, 4, v5")
    e("s_mov_b32 s%d, 0xffff" % sT0)
    e("v_lshlrev_b32 v5, v5, s%d" % sT0)
    e("v_bfe_u32 v%d, v1, 1, 2" % (vT + 8))
    for d in range(4):
        e("v_cmp_eq_u32 vcc, %d, v%d" % (d, vT + 8))
        e("s_nop 1")
        e("v_cndmask_b32 v%d, 0, v5, vcc" % (vMK + d))
    e("v_or_b32 v%d, v%d, v%d" % (vMP + 0, vMK + 0, vMK + 2))
    e("v_or_b32 v%d, v%d, v%d" % (vMP + 1, vMK + 1, vMK + 3))
    e("s_mov_b32 s%d, 0x3db504f3" % sSC)
    e("s_mov_b32 s%d, 0x3db504f3" % (sSC + 1))
    e("s_mov_b32 s%d, 0x3fb8aa3b" % sL2E)
    e("s_mov_b32 s%d, 0x3fb8aa3b" % (sL2E + 1))
    e("s_mov_b32 s%d, 0xffff0000" % sMASK)
    e("s_mov_b32 s%d, 0x01000100" % sT0)
    e("s_mov_b32 s%d, 0x03020302" % sT1)
    e("v_mov_b32 v%d, 0" % vZERO)
    e("v_mov_b32 v%d, 1" % vONE)

    m.c("q projection")
    m.wait("x")
    for i in range(8):
        e("v_perm_b32 v%d, v%d, v%d, s%d" % (vT + 8 + i, vX + i // 2, vX + i // 2, sT1 if i & 1 else sT0))
    for i in range(8):
        for d in range(4):
            e("v_and_b32 v%d, v%d, v%d" % (vAX + 4 * i + d, vT + 8 + i, vMK + d))
    for i in range(8):
        m.wait("wq%d" % i)
        e("v_mfma_f32_16x16x32_bf16 %s, %s, %s, %s" % (vr(vACC, 4), vr(vAX + 4 * i, 4), vr(vWQ + 4 * i, 4), "0" if i == 0 else vr(vACC, 4)))
        if len(m.q) < W:
            ld_next()
    stamp(2)
    e("v_and_b32 v%d, 1, v3" % vA_QP)
    e("v_lshlrev_b32 v%d, 4, v%d" % (vA_QP, vA_QP))
    e("v_lshl_add_u32 v%d, v4, 5, v%d" % (vA_QP, vA_QP))
    e("v_lshl_add_u32 v%d, v2, 9, v%d" % (vA_QP, vA_QP))
    e("s_mov_b32 exec_hi, 0")
    e("s_nop 2")
    e("ds_write_b128 v%d, %s offset:%d" % (vA_QP, vr(vACC, 4), L_QP))
    e("s_mov_b64 exec, -1")
    e("s_waitcnt lgkmcnt(0)")
    e("s_barrier")
    paced(2)
    make_tags(vTG)
    paced(1)

    m.c("addresses used later")
    e("v_lshlrev_b32 v%d, 11, v2" % vA_OW)
    e("v_lshl_add_u32 v%d, v1, 4, v%d" % (vA_OW, vA_OW))
    e("v_and_b32 v5, 1, v1")
    e("v_lshlrev_b32 v%d, 10, v5" % vA_OR)
    e("v_lshl_add_u32 v%d, v2, 8, v%d" % (vA_OR, vA_OR))
    e("v_bfe_u32 v5, v1, 1, 4")
    e("v_lshl_add_u32 v%d, v5, 4, v%d" % (vA_OR, vA_OR))
    paced(1)
    e("s_lshl_b32 s%d, s%d, 15" % (sT0, sGRP))
    e("s_add_u32 s%d, s%d, 0x%x" % (sT0, sT0, WS_O))
    e("s_lshl_b32 s%d, s%d, 7" % (sT1, sJ))
    e("s_add_u32 s%d, s%d, s%d" % (sT1, sT1, sT0))
    e("v_bfe_u32 v%d, v1, 3, 2" % vA_OG)
    e("v_lshl_add_u32 v%d, v2, 2, v%d" % (vA_OG, vA_OG))
    e("v_lshlrev_b32 v%d, 11, v%d" % (vA_OG, vA_OG))
    e("v_and_b32 v5, 7, v1")
    e("v_lshl_add_u32 v%d, v5, 4, v%d" % (vA_OG, vA_OG))
    e("v_add_u32 v%d, s%d, v%d" % (vA_OG, sT1, vA_OG))
    e("s_and_b32 s%d, s%d, 12" % (sT1, sJ))
    e("s_lshl_b32 s%d, s%d, 11" % (sT1, sT1))
    e("s_add_u32 s%d, s%d, s%d" % (sT1, sT1, sT0))
    e("v_add_u32 v%d, s%d, v%d" % (vA_OP, sT1, vA_OW))
    e("s_mov_b32 s%d, 0" % sHI)
    e("s_mov_b32 s%d, -1" % (sHI + 1))
    e("s_lshl_b32 s%d, s%d, 10" % (sT0, sGRP))
    e("s_add_u32 s%d, s%d, 0x%x" % (sT0, sT0, WS_ML))
    e("s_lshl_b32 s%d, s%d, 4" % (sT1, sJ))
    e("s_add_u32 s%d, s%d, s%d" % (sT1, sT1, sT0))
    e("v_lshlrev_b32 v5, 8, v2")
    e("v_add_u32 v5, s%d, v5" % sT1)
    e("v_cndmask_b32 v%d, v%d, v5, %s" % (vA_OG, vA_OG, sp(sHI)))
    e("s_lshr_b32 s%d, s%d, 2" % (sT1, sJ))
    e("s_lshl_b32 s%d, s%d, 8" % (sT1, sT1))
    e("s_add_u32 s%d, s%d, s%d" % (sT1, sT1, sT0))
    e("v_lshrrev_b32 v%d, 3, v1" % vA_W)
    e("v_and_b32 v5, 1, v1")
    e("v_lshl_add_u32 v%d, v5, 3, v%d" % (vA_W, vA_W))
    e("v_lshlrev_b32 v%d, 4, v%d" % (vA_W, vA_W))
    e("v_add_u32 v%d, s%d, v%d" % (vA_W, sT1, vA_W))
    e("v_lshlrev_b32 v%d, 4, v2" % vA_H)

    n_total = 40
    while n_total - len(rest) - len(m.q) < P["b2pos"]:
        paced(1)
    while len(m.q) < P["nv_before"] and rest:
        ld_next()
    stamp(3)
    e("s_barrier")
    e("v_lshlrev_b32 v5, 4, v1")
    e("ds_read_b128 %s, v5 offset:%d" % (vr(vQ, 4), L_Q))
    e("ds_read_b32 v%d, v%d offset:%d" % (vT, vZERO, L_LOC))
    stamp(4)
    e("s_waitcnt lgkmcnt(0)")
    e("v_readfirstlane_b32 s%d, v%d" % (sLOC, vT))

    late = []
    for _ in range(P["n_late"]):
        late.insert(0, rest.pop())
    WIN = P["wo_win"]

    def more(n=1):
        for _ in range(n):
            if rest:
                ld_next()

    def feed_wait(kind, i):
        name = "%s%d" % (kind, i)
        while (kind, i) in rest:
            m.window(WIN)
            ld_next()
        while rest and name in m.q and m.q.index(name) > 0:
            m.window(WIN)
            if len(m.q) < WIN:
                ld_next()
        m.wait(name)

    def top_up():
        while rest and len(m.q) < WIN:
            ld_next()

    m.c("scores: QK, round to bf16, scale, round to bf16, running max")
    vM, vM2, vA1, vA2 = vT + 8, vT + 10, vT + 12, vT + 13
    e("v_lshrrev_b32 v%d, 2, v4" % vA2)
    e("v_lshlrev_b32 v%d, 4, v%d" % (vA2, vA2))
    e("v_lshl_add_u32 v%d, v2, 2, v%d" % (vA1, vA2))
    qp = ["[0,0,0,0]", "[1,1,1,1]", "[2,2,2,2]", "[3,3,3,3]"]

    def round4(b):
        for i in (4 * b, 4 * b + 2):
            e("v_cvt_pk_bf16_f32 v%d, v%d, v%d" % (vT + (i & 2) // 2, vS + i, vS + i + 1))
        for i in (4 * b, 4 * b + 2):
            e("v_lshlrev_b32 v%d, 16, v%d" % (vS + i, vT + (i & 2) // 2))
            e("v_and_b32 v%d, s%d, v%d" % (vS + i + 1, sMASK, vT + (i & 2) // 2))

    for b in range(4):
        for t in range(4):
            i = 4 * b + t
            feed_wait("k", i)
            e("v_mfma_f32_16x16x32_bf16 %s, %s, %s, 0" % (vr(vD[t], 4), vr(vK + 4 * i, 4), vr(vQ, 4)))
        n0 = len(m.L)
        top_up()
        more(P["n_qk"])
        used = len(m.L) - n0
        if used < 5:
            e("s_nop %d" % (4 - used))
        for u in range(4):
            for t in range(4):
                i = 4 * b + t
                if u == 0:
                    e("v_mov_b32_dpp v%d, v%d quad_perm:%s %s" % (vS + i, vD[t], qp[0], DPPALL))
                else:
                    e("v_add_f32_dpp v%d, v%d, v%d quad_perm:%s %s" % (vS + i, vD[t] + u, vS + i, qp[u], DPPALL))
        round4(b)
        for i in (4 * b, 4 * b + 2):
            e("v_pk_mul_f32 %s, %s, %s" % (vr(vS + i, 2), vr(vS + i, 2), sp(sSC)))
        round4(b)
        if b == 0:
            e("v_max3_f32 v%d, v%d, v%d, v%d" % (vM, vS, vS + 1, vS + 2))
            e("v_max_f32 v%d, v%d, v%d" % (vM, vM, vS + 3))
        else:
            e("v_max3_f32 v%d, v%d, v%d, v%d" % (vM, vM, vS + 4 * b, vS + 4 * b + 1))
            e("v_max3_f32 v%d, v%d, v%d, v%d" % (vM, vM, vS + 4 * b + 2, vS + 4 * b + 3))
    allreduce_groups(vM, vM2, "v_max_f32")
    e("ds_write_b32 v%d, v%d offset:%d" % (vA1, vM, L_MX))
    e("s_waitcnt lgkmcnt(0)")
    e("s_barrier")
    e("ds_read_b128 %s, v%d offset:%d" % (vr(vT, 4), vA2, L_MX))
    e("ds_read_b128 %s, v%d offset:%d" % (vr(vT + 4, 4), vA_H, L_MX))
    more(P["n_b3"])
    e("s_waitcnt lgkmcnt(0)")
    e("v_max3_f32 v%d, v%d, v%d, v%d" % (vM, vT, vT + 1, vT + 2))
    e("v_max3_f32 v%d, v%d, v%d, v%d" % (vMH, vT + 4, vT + 5, vT + 6))
    e("v_max_f32 v%d, v%d, v%d" % (vM, vM, vT + 3))
    e("v_max_f32 v%d, v%d, v%d" % (vMH, vMH, vT + 7))
    e("v_mul_f32 v%d, s%d, v%d" % (vM2, sL2E, vM))
    e("v_mul_f32 v%d, s%d, v%d" % (vM2 + 1, sL2E, vM))
    stamp(5)
    m.c("exp, P operands and PV, software pipelined over pairs of key sets")
    vPA = vK
    vL = vT

    def stA(p):
        i = 2 * p
        e("v_pk_fma_f32 %s, %s, %s, %s neg_lo:[0,0,1] neg_hi:[0,0,1]" % (vr(vS + i, 2), vr(vS + i, 2), sp(sL2E), vr(vM2, 2)))
        e("v_exp_f32 v%d, v%d" % (vS + i, vS + i))
        e("v_exp_f32 v%d, v%d" % (vS + i + 1, vS + i + 1))

    def stB(p):
        for i in (2 * p, 2 * p + 1):
            e("v_cvt_pk_bf16_f32 v%d, v%d, v%d" % (vPA + 2 * i, vS + i, vS + i))
        for i in (2 * p, 2 * p + 1):
            e("v_and_b32 v%d, v%d, v%d" % (vPA + 2 * i + 1, vPA + 2 * i, vMP + 1))
            e("v_and_b32 v%d, v%d, v%d" % (vPA + 2 * i, vPA + 2 * i, vMP + 0))
        if p == 1:
            e("v_pk_add_f32 %s, %s, %s" % (vr(vL, 2), vr(vS, 2), vr(vS + 2, 2)))
        elif p > 1:
            e("v_pk_add_f32 %s, %s, %s" % (vr(vL, 2), vr(vL, 2), vr(vS + 2 * p, 2)))

    def stC(p):
        for i in (2 * p, 2 * p + 1):
            feed_wait("v", i)
            for w in range(2):
                e("v_mfma_f32_16x16x16_bf16 %s, %s, %s, %s" % (vr(vACC + 4 * w, 4), vr(vPA + 2 * i, 2), vr(vVregs[i] + 2 * w, 2), "0" if i == 0 else vr(vACC + 4 * w, 4)))
            top_up()

    cl = P["c_lag"]
    def capture(fn, *a):
        keep = m.L
        m.L = []
        fn(*a)
        got, m.L = m.L, keep
        return got

    def weave(valu, mf):
        chunks, cur = [], []
        for ln in mf:
            cur.append(ln)
            if "v_mfma" in ln:
                chunks.append(cur)
                cur = []
        if cur:
            chunks[-1].extend(cur)
        n = len(chunks)
        per = -(-len(valu) // n)
        for k in range(n):
            m.L.extend(chunks[k])
            m.L.extend(valu[k * per:(k + 1) * per])

    stA(0)
    for p in range(8):
        va = capture(stA, p + 1) if p + 1 < 8 else []
        vb = capture(stB, p)
        if p - cl >= 0:
            if cl == 1:
                m.L.extend(va[:2] if va else ["    s_nop 1"])
                va = va[2:]
            weave(va + vb, capture(stC, p - cl))
        else:
            m.L.extend(va + vb)
    e("v_add_f32 v%d, v%d, v%d" % (vL, vL, vL + 1))
    allreduce_groups(vL, vL + 1, "v_add_f32")
    e("ds_write_b32 v%d, v%d offset:%d" % (vA1, vL, L_LS))
    for p in range(max(0, 8 - cl), 8):
        stC(p)
    while rest:
        ld_next()
    stamp(6)
    e("s_nop 6")
    e("ds_write_b128 v%d, %s offset:%d" % (vA_OW, vr(vACC, 4), L_OP))
    e("ds_write_b128 v%d, %s offset:%d" % (vA_OW, vr(vACC + 4, 4), L_OP + 1024))
    e("s_mov_b64 exec, 1")
    e("ds_add_u32 v%d, v%d offset:%d" % (vZERO, vONE, L_CNT))
    e("s_mov_b32 exec_lo, -1")
    e("s_mov_b32 exec_hi, 1")
    vLS = vS + 12
    e("s_mov_b32 s%d, %d" % (sSPIN, P["spin"]))
    m.lab("L_cnt")
    e("ds_read_b32 v5, v%d offset:%d" % (vZERO, L_CNT))
    for w in range(4):
        e("ds_read_b128 %s, v%d offset:%d" % (vr(vT + 4 * w, 4), vA_OR, L_OP + 2048 * w))
    e("ds_read_b128 %s, v%d offset:%d" % (vr(vLS, 4), vA_H, L_LS))
    e("s_sub_u32 s%d, s%d, 1" % (sSPIN, sSPIN))
    e("s_cbranch_scc1 L_cntx")
    e("s_waitcnt lgkmcnt(0)")
    e("v_cmp_ne_u32 vcc, 4, v5")
    e("s_cbranch_vccnz L_cnt")
    m.lab("L_cntx")
    e("v_pk_add_f32 %s, %s, %s" % (vr(vLS, 2), vr(vLS, 2), vr(vLS + 2, 2)))
    sum4_and_tag(vT, None, vT)
    e("v_add_f32 v%d, v%d, v%d" % (vLS, vLS, vLS + 1))
    e("v_cndmask_b32 v%d, v%d, v%d, %s" % (vT, vT, vMH, sp(sHI)))
    e("v_cndmask_b32 v%d, v%d, v%d, %s" % (vT + 1, vT + 1, vLS, sp(sHI)))
    for k in (2, 3, 0, 1):
        e("v_and_or_b32 v%d, v%d, s%d, v%d" % (vT + k, vT + k, sTM, vTG + k))
    store_loc("o", "global_store_dwordx4 v%d, %s, %s" % (vA_OG, vr(vT, 4), sp(sWS)))
    stamp(7)
    e("s_mov_b64 exec, -1")
    rest.extend(late)
    while rest:
        ld_next()
    if ST and P.get("wostamp"):
        m.wait("wo7")
        stamp(10)
    if P["ptrig"] >= 0:
        m.wait("wo%d" % P["ptrig"])
    vO = vS
    vR = vK + 0
    sM = [44, 46, 48]
    e("s_mov_b32 s%d, 0" % sSPIN)
    for h in range(3):
        e("s_mov_b64 %s, -1" % sp(sM[h]))
    def o_round(masked):
        for h, (dst, adr, off) in ((2, (vR + 8, vA_W, 0)), (0, (vR, vA_OP, 0)), (1, (vR + 4, vA_OP, 1024))):
            if masked:
                e("s_mov_b64 exec, %s" % sp(sM[h]))
                e("s_cbranch_execz L_osk%d" % h)
            e("global_load_dwordx4 %s, v%d, %s offset:%d sc1" % (vr(dst, 4), adr, sp(sWS), off))
            if masked:
                m.lab("L_osk%d" % h)
        if masked:
            e("s_mov_b64 exec, -1")

    if P["odepth"] > 1:
        o_round(False)
    m.lab("L_opoll")
    if P["odepth"] == 1:
        o_round(True)
    e("s_add_u32 s%d, s%d, 1" % (sSPIN, sSPIN))
    e("s_waitcnt vmcnt(0)")
    m.q = []
    for k in list(range(8, 12)) + list(range(8)):
        e("v_xor_b32 v%d, v%d, v%d" % (vO + k, vR + k, vTG + (k & 3)))
    if P["odepth"] > 1:
        o_round(True)
    vM_, vL_, vE, vX1, vX2 = vO + 8, vO + 9, vT + 12, vT + 13, vT + 14
    e("v_max_f32_dpp v%d, v%d, v%d quad_perm:[1,0,3,2] %s" % (vX1, vM_, vM_, DPPALL))
    for h in range(3):
        e("v_or3_b32 v%d, v%d, v%d, v%d" % (vT + 8 + h, vO + 4 * h, vO + 4 * h + 1, vO + 4 * h + 2))
    e("v_max_f32_dpp v%d, v%d, v%d row_ror:8 %s" % (vX1, vX1, vX1, DPPALL))
    e("v_mov_b32 v%d, v%d" % (vX2, vX1))
    for h in range(3):
        e("v_bitop3_b32 v%d, v%d, v%d, s%d bitop3:0x54" % (vT + 8 + h, vT + 8 + h, vO + 4 * h + 3, sTM))
    e("v_permlane16_swap_b32 v%d, v%d" % (vX1, vX2))
    e("v_max_f32 v%d, v%d, v%d" % (vX1, vX1, vX2))
    e("v_mov_b32 v%d, v%d" % (vX2, vX1))
    for h in range(3):
        e("v_cmp_ne_u32 %s, 0, v%d" % (sp(sM[h]), vT + 8 + h))
    e("v_permlane32_swap_b32 v%d, v%d" % (vX1, vX2))
    e("v_max_f32 v%d, v%d, v%d" % (vX1, vX1, vX2))
    e("s_or_b64 %s, %s, %s" % (sp(sSAVE), sp(sM[0]), sp(sM[1])))
    e("v_sub_f32 v%d, v%d, v%d" % (vE, vM_, vX1))
    e("s_or_b64 %s, %s, %s" % (sp(sSAVE), sp(sSAVE), sp(sM[2])))
    e("v_mul_f32 v%d, s%d, v%d" % (vE, sL2E, vE))
    e("s_cbranch_scc0 L_ogot")
    e("s_cmp_lt_u32 s%d, %d" % (sSPIN, P["spin"]))
    e("s_cbranch_scc1 L_opoll")
    m.lab("L_ogot")
    e("v_exp_f32 v%d, v%d" % (vE, vE))
    stamp(8)
    e("s_nop 0")
    e("v_mul_f32 v%d, v%d, v%d" % (vX1, vE, vL_))
    for k in range(4):
        e("v_mul_f32_dpp v%d, v%d, v%d quad_perm:[0,0,2,2] %s" % (vO + k, vE, vO + k, DPPALL))
        if k == 2:
            e("v_add_f32_dpp v%d, v%d, v%d quad_perm:[1,0,3,2] %s" % (vX1, vX1, vX1, DPPALL))
    for k in range(4):
        e("v_fmac_f32_dpp v%d, v%d, v%d quad_perm:[1,1,3,3] %s" % (vO + k, vE, vO + 4 + k, DPPALL))
        if k == 1:
            e("v_add_f32_dpp v%d, v%d, v%d row_ror:8 %s" % (vX1, vX1, vX1, DPPALL))
    e("v_mov_b32 v%d, v%d" % (vX2, vX1))
    e("v_permlane32_swap_b32 v%d, v%d" % (vO + 0, vO + 1))
    e("v_permlane32_swap_b32 v%d, v%d" % (vO + 2, vO + 3))
    e("v_permlane32_swap_b32 v%d, v%d" % (vX1, vX2))
    e("v_add_f32 v%d, v%d, v%d" % (vO + 0, vO + 0, vO + 1))
    e("v_add_f32 v%d, v%d, v%d" % (vO + 2, vO + 2, vO + 3))
    e("v_add_f32 v%d, v%d, v%d" % (vX1, vX1, vX2))
    e("v_mov_b32 v%d, v%d" % (vX2, vX1))
    e("v_permlane16_swap_b32 v%d, v%d" % (vO + 0, vO + 2))
    e("v_add_f32 v%d, v%d, v%d" % (vO + 0, vO + 0, vO + 2))
    e("v_permlane16_swap_b32 v%d, v%d" % (vX1, vX2))
    e("v_add_f32 v%d, v%d, v%d" % (vX1, vX1, vX2))
    e("v_rcp_f32 v%d, v%d" % (vX1, vX1))
    e("v_add_f32_dpp v%d, v%d, v%d row_ror:8 %s" % (vO + 0, vO + 0, vO + 0, DPPALL))
    e("v_mul_f32 v%d, v%d, v%d" % (vO + 0, vO + 0, vX1))
    e("v_cvt_pk_bf16_f32 v%d, v%d, v%d" % (vO + 0, vO + 0, vO + 0))
    e("s_nop 1")
    vAI = vK + 32

    def build_ai(i):
        for d in range(4):
            e("v_and_b32_dpp v%d, v%d, v%d row_newbcast:%d %s" % (vAI + 4 * i + d, vO, vMK + d, i, DPPALL))

    build_ai(0)
    for i in range(8):
        if i < 7:
            build_ai(i + 1)
        else:
            e("s_nop 0")
        e("v_mfma_f32_16x16x32_bf16 %s, %s, %s, %s" % (vr(vACC, 4), vr(vAI + 4 * i, 4), vr(vWO + 4 * i, 4), "0" if i == 0 else vr(vACC, 4)))
    e("s_mov_b32 exec_hi, 0")
    e("s_nop 6")
    e("ds_write_b128 v%d, %s offset:%d" % (vA_QP, vr(vACC, 4), L_QP))
    e("s_waitcnt lgkmcnt(0)")
    e("s_barrier")
    stamp(9)
    dump_stamps(11)
    e("s_endpgm")

    m.q = []
    incomm[0] = True
    m.lab("L_comm")
    cA, cB, cC, cD = 7, 8, 9, 10
    cGS = 11
    cT = 12
    cQA, cQG, cML, cFP = 28, 29, 30, 31
    cU = 32
    cTG = 64
    cTQ = 68
    cOA, cFG, cOP = 69, 70, 71
    cPT = 72
    cFU = 84

    decode()
    e("v_mov_b32 v%d, 0" % cT)
    e("ds_write_b32 v%d, v%d offset:%d" % (cT, cT, L_CNT))
    e("v_lshlrev_b32 v%d, 4, v1" % cA)
    e("v_and_b32 v%d, 31, v1" % cC)
    e("v_lshlrev_b32 v%d, 4, v%d" % (cC, cC))
    e("s_lshl_b32 s%d, s%d, 13" % (sT0, sGRP))
    e("s_add_u32 s%d, s%d, 0x%x" % (sT0, sT0, WS_Q))
    e("s_lshl_b32 s%d, s%d, 9" % (sT1, sJ))
    e("s_add_u32 s%d, s%d, s%d" % (sT1, sT1, sT0))
    e("v_add_u32 v%d, s%d, v%d" % (cQA, sT1, cC))
    e("s_waitcnt lgkmcnt(0)")
    e("s_load_dword s%d, %s, 0x%x" % (sTAG, sp(sWS), WS_EPOCH))
    e("s_mov_b32 exec_hi, 0")
    e("global_load_dwordx4 %s, v%d, %s %s" % (vr(cPT, 4), cQA, sp(sWS), P.get("ptflag", "sc1")))
    if P["tlbwarm"]:
        e("s_lshl_b32 s%d, s%d, 24" % (sT1, sKVH))
        e("s_add_u32 s%d, s%d, 0xF00000" % (sT1, sT1))
        e("v_lshlrev_b32 v%d, 16, v1" % (cPT + 4))
        e("v_add_u32 v%d, s%d, v%d" % (cPT + 4, sT1, cPT + 4))
        e("s_lshl_b32 s%d, s%d, 2" % (sT1, sKVH))
        e("s_lshr_b32 s%d, s%d, 2" % (sT2, sJ))
        e("s_add_u32 s%d, s%d, s%d" % (sT1, sT1, sT2))
        e("s_lshl_b32 s%d, s%d, 17" % (sT1, sT1))
        e("v_lshlrev_b32 v%d, 16, v1" % (cPT + 5))
        e("v_add_u32 v%d, s%d, v%d" % (cPT + 5, sT1, cPT + 5))
        e("v_mov_b32 v%d, 0" % (cPT + 6))
        e("s_mov_b64 exec, 0x%x" % (0xffff if P["tlbwarm"] == 2 else 1))
        e("global_load_dword v%d, v%d, %s" % (cPT + 7, cPT + 4, sp(sK)))
        e("global_load_dword v%d, v%d, %s" % (cPT + 8, cPT + 4, sp(sV)))
        e("s_mov_b64 exec, 0x%x" % (3 if P["tlbwarm"] == 2 else 1))
        e("global_load_dword v%d, v%d, %s" % (cPT + 9, cPT + 5, sp(sWO)))
        e("s_mov_b64 exec, 1")
        e("global_load_dword v%d, v%d, %s" % (cPT + 10, cPT + 6, sp(sOUT)))
        e("global_load_dword v%d, v%d, %s" % (cPT + 11, cPT + 6, sp(sGATE)))
    e("s_mov_b64 exec, -1")
    e("v_lshrrev_b32 v%d, 2, v4" % cQG)
    e("v_lshlrev_b32 v%d, 11, v%d" % (cQG, cQG))
    e("v_lshl_add_u32 v%d, v3, 7, v%d" % (cQG, cQG))
    e("v_and_b32 v%d, 3, v1" % cT)
    e("v_lshl_add_u32 v%d, v%d, 5, v%d" % (cQG, cT, cQG))
    e("v_add_u32 v%d, s%d, v%d" % (cQG, sT0, cQG))
    e("v_add_u32 v%d, 0x%x, v%d" % (cD, WS_QB - WS_Q, cQA))
    e("s_mov_b32 s%d, 0x3fb8aa3b" % sL2E)
    e("s_mov_b32 s%d, 0xffff0000" % sMASK)
    e("s_getreg_b32 s%d, hwreg(HW_REG_XCC_ID, 0, 4)" % sT2)
    stamp(1)
    e("s_waitcnt lgkmcnt(0)")
    make_tags(cTG)
    e("v_and_b32 v%d, 0x%x, v%d" % (cTQ, TM & ~15, cTG + 3))
    e("v_or_b32 v%d, s%d, v%d" % (cTQ, sT2, cTQ))
    stamp(2)
    e("s_mov_b32 exec_hi, 0")
    e("s_barrier")
    for w in range(4):
        e("ds_read_b128 %s, v%d offset:%d" % (vr(cU + 4 * w, 4), cC, L_QP + 512 * w))
    e("s_waitcnt lgkmcnt(0)")
    sum4_and_tag(cU, [cTG, cTG + 1, cTG + 2, cTQ], cT + 8, rnd=True)
    e("global_store_dwordx4 v%d, %s, %s" % (cQA, vr(cT + 8, 4), sp(sWS)))
    if P.get("eagerb"):
        e("global_store_dwordx4 v%d, %s, %s sc1" % (cD, vr(cT + 8, 4), sp(sWS)))
    e("s_mov_b64 exec, -1")
    stamp(3)
    e("s_lshl_b32 s%d, s%d, 4" % (sT0, sGRP))
    e("s_add_u32 s%d, s%d, s%d" % (sT0, sT0, sJ))
    e("s_lshl_b32 s%d, s%d, 11" % (sT1, sT0))
    e("s_add_u32 s%d, s%d, 0x%x" % (sT1, sT1, WS_O))
    e("v_add_u32 v%d, s%d, v%d" % (cOP, sT1, cA))
    e("s_lshr_b32 s%d, s%d, 2" % (sT1, sT0))
    e("s_lshl_b32 s%d, s%d, 8" % (sT1, sT1))
    e("s_add_u32 s%d, s%d, 0x%x" % (sT1, sT1, WS_ML))
    e("v_lshlrev_b32 v%d, 4, v4" % cML)
    e("v_add_u32 v%d, s%d, v%d" % (cML, sT1, cML))
    e("s_and_b32 s%d, s%d, 3" % (sT0, sJ))
    e("s_lshl_b32 s%d, s%d, 6" % (sT0, sT0))
    e("s_lshl_b32 s%d, s%d, 5" % (sT1, sBR))
    e("s_add_u32 s%d, s%d, s%d" % (sT0, sT0, sT1))
    e("s_lshl_b32 s%d, s%d, 2" % (sT1, sKVH))
    e("s_add_u32 s%d, s%d, s%d" % (sT0, sT0, sT1))
    e("s_lshr_b32 s%d, s%d, 2" % (sT1, sJ))
    e("s_add_u32 s%d, s%d, s%d" % (sT0, sT0, sT1))
    e("s_lshl_b32 s%d, s%d, 9" % (sT0, sT0))
    e("s_add_u32 s%d, s%d, 0x%x" % (sT0, sT0, WS_F))
    e("v_add_u32 v%d, s%d, v%d" % (cFP, sT0, cC))
    e("s_lshl_b32 s%d, s%d, 4" % (sT0, sKVH))
    e("s_bfe_u32 s%d, s2, 0x40003" % sT1)
    e("s_add_u32 s%d, s%d, s%d" % (sT0, sT0, sT1))
    e("s_lshr_b32 s%d, s%d, 5" % (sT1, sT0))
    e("s_lshl_b32 s%d, s%d, 15" % (sT1, sT1))
    e("s_and_b32 s%d, s%d, 31" % (sT2, sT0))
    e("s_lshl_b32 s%d, s%d, 4" % (sT2, sT2))
    e("s_add_u32 s%d, s%d, s%d" % (sT1, sT1, sT2))
    e("s_add_u32 s%d, s%d, 0x%x" % (sT1, sT1, WS_F))
    e("v_lshlrev_b32 v%d, 9, v1" % cFG)
    e("v_add_u32 v%d, s%d, v%d" % (cFG, sT1, cFG))
    e("v_and_b32 v%d, 1, v3" % cOA)
    e("v_bfe_u32 v%d, v1, 3, 1" % cT)
    e("v_lshl_add_u32 v%d, v%d, 1, v%d" % (cOA, cT, cOA))
    e("v_lshlrev_b32 v%d, 1, v%d" % (cOA, cOA))
    e("s_lshl_b32 s%d, s%d, 3" % (sT0, sT0))
    e("v_add_u32 v%d, s%d, v%d" % (cOA, sT0, cOA))
    e("s_mov_b32 s%d, 0" % sSPIN)
    if P.get("d_noq"):
        e("s_branch L_gotq")
    m.lab("L_pollq")
    for rq in range(4):
        for hf in range(2):
            e("global_load_dwordx4 %s, v%d, %s offset:%d sc1" % (vr(cU + 8 * rq + 4 * hf, 4), cQG, sp(sWS), rq * 512 + hf * 16))
    e("s_add_u32 s%d, s%d, 1" % (sSPIN, sSPIN))
    e("s_waitcnt vmcnt(0)")
    for k in range(32):
        e("v_xor_b32 v%d, v%d, v%d" % (cU + k, cU + k, cTQ if (k & 3) == 3 else cTG + (k & 3)))
    e("v_or3_b32 v%d, v%d, v%d, v%d" % (cT + 1, cU + 3, cU + 7, cU + 11))
    e("v_or3_b32 v%d, v%d, v%d, v%d" % (cT + 1, cT + 1, cU + 15, cU + 19))
    e("v_or3_b32 v%d, v%d, v%d, v%d" % (cT + 1, cT + 1, cU + 23, cU + 27))
    e("v_or_b32 v%d, v%d, v%d" % (cT + 1, cT + 1, cU + 31))
    e("v_and_b32 v%d, -16, v%d" % (cT, cT + 1))
    rest3 = [cU + k for k in range(32) if (k & 3) != 3]
    for k in range(0, 24, 2):
        e("v_or3_b32 v%d, v%d, v%d, v%d" % (cT, cT, rest3[k], rest3[k + 1]))
    e("v_and_b32 v%d, 0x%x, v%d" % (cT, TM, cT))
    e("v_cmp_ne_u32 vcc, 0, v%d" % cT)
    e("s_cbranch_vccz L_gotq")
    e("s_cmp_lt_u32 s%d, %d" % (sSPIN, P["nfast"]))
    e("s_cbranch_scc1 L_pollq")
    e("v_xor_b32 v%d, 0x%x, v%d" % (cQG, WS_QB ^ WS_Q, cQG))
    e("s_cmp_lg_u32 s%d, %d" % (sSPIN, P["nfast"]))
    e("s_cbranch_scc1 L_nswq")
    e("s_mov_b32 exec_hi, 0")
    e("global_store_dwordx4 v%d, %s, %s sc1" % (cD, vr(cT + 8, 4), sp(sWS)))
    e("s_mov_b64 exec, -1")
    m.lab("L_nswq")
    e("s_cmp_lt_u32 s%d, %d" % (sSPIN, P["spin"]))
    e("s_cbranch_scc1 L_pollq")
    m.lab("L_gotq")
    e("v_and_b32 v%d, 15, v%d" % (cT + 1, cT + 1))
    e("v_cmp_ne_u32 vcc, 0, v%d" % (cT + 1))
    for k in range(3, 32, 4):
        e("v_and_b32 v%d, -16, v%d" % (cU + k, cU + k))
    e("s_or_b32 s%d, vcc_lo, vcc_hi" % sLOC)
    if P.get("force_wt"):
        e("s_mov_b32 s%d, 1" % sLOC)
    e("s_cmp_eq_u32 s%d, 0" % sLOC)
    e("s_cbranch_scc1 L_qloc")
    e("s_mov_b32 exec_hi, 0")
    e("global_store_dwordx4 v%d, %s, %s sc1" % (cD, vr(cT + 8, 4), sp(sWS)))
    e("s_mov_b64 exec, -1")
    m.lab("L_qloc")
    for k in range(0, 8, 2):
        e("v_pk_add_f32 %s, %s, %s" % (vr(cU + k, 2), vr(cU + k, 2), vr(cU + 8 + k, 2)))
        e("v_pk_add_f32 %s, %s, %s" % (vr(cU + 16 + k, 2), vr(cU + 16 + k, 2), vr(cU + 24 + k, 2)))
    for k in range(0, 8, 2):
        e("v_pk_add_f32 %s, %s, %s" % (vr(cU + k, 2), vr(cU + k, 2), vr(cU + 16 + k, 2)))
    for k in range(4):
        e("v_cvt_pk_bf16_f32 v%d, v%d, v%d" % (cT + k, cU + 2 * k, cU + 2 * k + 1))
    e("v_mov_b32 v%d, s%d" % (cT + 4, sLOC))
    e("v_mov_b32 v%d, 0" % (cT + 5))
    e("ds_write_b128 v%d, %s offset:%d" % (cA, vr(cT, 4), L_Q))
    e("ds_write_b32 v%d, v%d offset:%d" % (cT + 5, cT + 4, L_LOC))
    PF = P.get("ptflag", "sc1")
    early_pt = P.get("early_pt", P["lag"] < 16)
    if not early_pt:
        e("s_waitcnt lgkmcnt(0)")
        stamp(4)
        e("s_barrier")
    e("global_load_dwordx4 %s, v%d, %s %s" % (vr(cU, 4), cA, sp(sX), P.get("xflag", "")))
    e("global_load_dwordx4 %s, v%d, %s %s" % (vr(cU + 4, 4), cA, sp(sGATE), P.get("xflag", "")))
    e("global_load_dwordx4 %s, v%d, %s %s" % (vr(cPT, 4), cOP, sp(sWS), PF))
    e("global_load_dwordx4 %s, v%d, %s offset:1024 %s" % (vr(cPT + 4, 4), cOP, sp(sWS), PF))
    e("global_load_dwordx4 %s, v%d, %s %s" % (vr(cPT + 8, 4), cML, sp(sWS), PF))
    if P["fpre"]:
        e("s_cmp_ge_u32 s2, 128")
        e("s_cbranch_scc1 L_nofp")
        e("global_load_dwordx4 %s, v%d, %s sc1" % (vr(cFU, 4), cFG, sp(sWS)))
        m.lab("L_nofp")
    if early_pt:
        e("s_waitcnt lgkmcnt(0)")
        stamp(4)
        e("s_barrier")
    e("s_barrier")
    e("s_waitcnt vmcnt(0)")
    m.c("gate")
    for i in range(4):
        e("v_lshlrev_b32 v%d, 16, v%d" % (cT + 2 * i, cU + i))
        e("v_and_b32 v%d, s%d, v%d" % (cT + 2 * i + 1, sMASK, cU + i))
        e("v_lshlrev_b32 v%d, 16, v%d" % (cT + 8 + 2 * i, cU + 4 + i))
        e("v_and_b32 v%d, s%d, v%d" % (cT + 8 + 2 * i + 1, sMASK, cU + 4 + i))
    for i in range(8):
        e("v_mul_f32 v%d, v%d, v%d" % (cT + i, cT + i, cT + 8 + i))
    for i in range(4):
        e("v_cvt_pk_bf16_f32 v%d, v%d, v%d" % (cT + 8 + i, cT + 2 * i, cT + 2 * i + 1))
    for i in range(4):
        e("v_lshlrev_b32 v%d, 16, v%d" % (cT + 2 * i, cT + 8 + i))
        e("v_and_b32 v%d, s%d, v%d" % (cT + 2 * i + 1, sMASK, cT + 8 + i))
    for i in range(4):
        e("v_add_f32 v%d, v%d, v%d" % (cT + i, cT + i, cT + 4 + i))
    e("v_add_f32 v%d, v%d, v%d" % (cT + 0, cT + 0, cT + 2))
    e("v_add_f32 v%d, v%d, v%d" % (cT + 1, cT + 1, cT + 3))
    e("v_add_f32 v%d, v%d, v%d" % (cT + 0, cT + 0, cT + 1))
    row_allreduce(cT, "v_add_f32")
    allreduce_groups(cT, cT + 1, "v_add_f32")
    e("v_cvt_pk_bf16_f32 v%d, v%d, v%d" % (cT, cT, cT))
    e("v_and_b32 v%d, s%d, v%d" % (cT, sMASK, cT))
    e("v_mul_f32 v%d, s%d, v%d" % (cT, sL2E, cT))
    e("v_exp_f32 v%d, -v%d" % (cT, cT))
    e("s_nop 0")
    e("v_add_f32 v%d, 1.0, v%d" % (cT, cT))
    e("v_rcp_f32 v%d, v%d" % (cT, cT))
    e("s_nop 0")
    e("v_cvt_pk_bf16_f32 v%d, v%d, v%d" % (cT, cT, cT))
    e("v_and_b32 v%d, s%d, v%d" % (cT + 1, sMASK, cT))
    e("v_sub_f32 v%d, 1.0, v%d" % (cT, cT + 1))
    e("v_cmp_gt_u32 vcc, 32, v1")
    e("v_cvt_pk_bf16_f32 v%d, v%d, v%d" % (cT, cT, cT))
    e("v_and_b32 v%d, s%d, v%d" % (cT, sMASK, cT))
    e("v_cndmask_b32 v%d, v%d, v%d, vcc" % (cGS, cT, cT + 1))
    e("s_mov_b32 s%d, 0xff00ff00" % sHI)
    e("s_mov_b32 s%d, 0xff00ff00" % (sHI + 1))
    stamp(5)
    e("s_mov_b32 exec_hi, 0")
    e("s_barrier")
    for w in range(4):
        e("ds_read_b128 %s, v%d offset:%d" % (vr(cU + 4 * w, 4), cC, L_QP + 512 * w))
    stamp(6)
    e("s_waitcnt lgkmcnt(0)")
    sum4_and_tag(cU, [cTG + k for k in range(4)], cT + 8)
    e("global_store_dwordx4 v%d, %s, %s %s" % (cFP, vr(cT + 8, 4), sp(sWS), P.get("fsflag", "sc1")))
    e("s_mov_b64 exec, -1")
    stamp(7)
    e("s_cmp_ge_u32 s2, 128")
    e("s_cbranch_scc1 L_fin")
    if P["fwait"] < 0:
        e("s_waitcnt vmcnt(0)")
    elif P["fwait"]:
        e("s_sleep %d" % P["fwait"])
    e("s_mov_b32 s%d, 0" % sSPIN)
    e("s_mov_b64 vcc, -1")
    m.lab("L_pollf")
    if P["fsleep"]:
        e("s_sleep %d" % P["fsleep"])
    e("s_mov_b64 exec, vcc")
    e("global_load_dwordx4 %s, v%d, %s %s" % (vr(cFU, 4), cFG, sp(sWS), P.get("fflag", "sc1")))
    e("s_mov_b64 exec, -1")
    e("s_add_u32 s%d, s%d, 1" % (sSPIN, sSPIN))
    e("s_waitcnt vmcnt(0)")
    for d in range(4):
        e("v_xor_b32 v%d, v%d, v%d" % (cU + d, cFU + d, cTG + d))
    e("v_or3_b32 v%d, v%d, v%d, v%d" % (cT, cU, cU + 1, cU + 2))
    e("v_bitop3_b32 v%d, v%d, v%d, s%d bitop3:0x54" % (cT, cT, cU + 3, sTM))
    e("v_cmp_ne_u32 vcc, 0, v%d" % cT)
    e("s_cbranch_vccz L_gotf")
    e("s_cmp_lt_u32 s%d, %d" % (sSPIN, P["spin"]))
    e("s_cbranch_scc1 L_pollf")
    m.lab("L_gotf")
    stamp(8)
    e("v_permlane16_swap_b32 v%d, v%d" % (cU + 0, cU + 1))
    e("v_permlane16_swap_b32 v%d, v%d" % (cU + 2, cU + 3))
    e("v_add_f32 v%d, v%d, v%d" % (cU + 0, cU + 0, cU + 1))
    e("v_add_f32 v%d, v%d, v%d" % (cU + 2, cU + 2, cU + 3))
    e("s_nop 0")
    e("v_add_f32_dpp v%d, v%d, v%d row_ror:8 %s" % (cU + 1, cU + 0, cU + 0, DPPALL))
    e("v_add_f32_dpp v%d, v%d, v%d row_ror:8 %s" % (cU + 3, cU + 2, cU + 2, DPPALL))
    e("v_cndmask_b32 v%d, v%d, v%d, %s" % (cT, cU + 1, cU + 3, sp(sHI)))
    for md in ("quad_perm:[1,0,3,2]", "quad_perm:[2,3,0,1]", "row_half_mirror"):
        e("s_nop 1")
        e("v_add_f32_dpp v%d, v%d, v%d %s %s" % (cT, cT, cT, md, DPPALL))
    e("v_cvt_pk_bf16_f32 v%d, v%d, v%d" % (cT, cT, cT))
    e("v_and_b32 v%d, s%d, v%d" % (cT, sMASK, cT))
    e("v_mul_f32 v%d, v%d, v%d" % (cT, cT, cGS))
    e("v_cvt_pk_bf16_f32 v%d, v%d, v%d" % (cT, cT, cT))
    e("v_and_b32 v%d, s%d, v%d" % (cT, sMASK, cT))
    e("v_mov_b32 v%d, v%d" % (cT + 1, cT))
    e("s_nop 1")
    e("v_permlane32_swap_b32 v%d, v%d" % (cT, cT + 1))
    e("v_add_f32 v%d, v%d, v%d" % (cT, cT, cT + 1))
    e("v_cvt_pk_bf16_f32 v%d, v%d, v%d" % (cT, cT, cT))
    e("s_mov_b64 exec, 0x01010101")
    e("global_store_short v%d, v%d, %s %s" % (cOA, cT, sp(sOUT), P.get("outflag", "")))
    e("s_cmp_lg_u32 s2, 0")
    e("s_cbranch_scc1 L_fin")
    e("s_mov_b64 exec, 1")
    e("v_mov_b32 v%d, s%d" % (cT + 2, sTAG))
    e("v_mov_b32 v%d, 0" % (cT + 3))
    e("global_store_dword v%d, v%d, %s offset:%d" % (cT + 3, cT + 2, sp(sWS), WS_EPOCH))
    m.lab("L_fin")
    stamp(9)
    if P.get("amp"):
        e("s_waitcnt lgkmcnt(0)")
        e("s_sub_u32 s93, s98, s94")
        e("s_mul_i32 s93, s93, %d" % P["amp"])
        e("s_add_u32 s98, s94, s93")
    if P.get("padto"):
        m.lab("L_pad")
        e("s_memrealtime s[96:97]")
        e("s_waitcnt lgkmcnt(0)")
        e("s_sub_u32 s96, s96, s98")
        e("s_cmp_lt_i32 s96, %d" % P["padto"])
        e("s_cbranch_scc1 L_pad")
    dump_stamps(10)
    m.lab("L_end")
    e("s_endpgm")

    hdr = open("cdna_kernels/%s.s.ref" % NAME).read().split("; Override launch")[0]
    out = hdr
    out += "; @launch grid=(256,1,1) block=(320,1,1) lds=%d\n" % P["lds"]
    out += DOC
    out += '.amdgcn_target "amdgcn-amd-amdhsa--gfx950"\n.text\n.globl %s_kernel\n.p2align 8\n.type %s_kernel,@function\n%s_kernel:\n' % (NAME, NAME, NAME)
    out += "\n".join(m.L) + "\n"
    out += """.section .rodata,"a"
.p2align 6
.amdhsa_kernel %s_kernel
  .amdhsa_next_free_vgpr 256
  .amdhsa_next_free_sgpr 102
  .amdhsa_accum_offset 256
  .amdhsa_group_segment_fixed_size 0
  .amdhsa_kernarg_size 112
  .amdhsa_user_sgpr_count 2
  .amdhsa_user_sgpr_kernarg_segment_ptr 1
  .amdhsa_system_sgpr_workgroup_id_x 1
.end_amdhsa_kernel
""" % NAME
    return out


if __name__ == "__main__":
    kw = {}
    outp = sys.argv[1]
    for a in sys.argv[2:]:
        k, v = a.split("=")
        kw[k] = int(v) if v.lstrip("-").isdigit() else v
    open(outp, "w").write(gen(**kw))
```

```python
import sys

NAME = "gated_mix__sliding_block_cached__sliding_block_cached__decode"

WS_EPOCH = 0x0
WS_ML = 0x10000
WS_Q = 0x20000
WS_F = 0x40000
WS_QB = 0x60000
WS_O = 0x80000
WS_STAMP = 0x300000
TB = 10
TM = (1 << TB) - 1

L_QP = 0x0
L_Q = 0x800
L_MX = 0xC00
L_CNT = 0xC40
L_LOC = 0xC48
L_LS = 0xC80
L_OP = 0x1000

DEF = dict(
    stamps=0, window=6, nv_before=11, ldflag="nt", lds=90112, spin=60000,
    nfast=12, wo_win=10, swz=1, wo_early=0, n_b3=2, tlbwarm=0, omask=1, osleep=0, fsleep=0, fwait=-1, spt=0, ptflag="sc1", n_late=0, ptrig=6, odepth=1, fpre=1, lag=8, b2pos=16, n_qk=0, c_lag=1, owarm=0,
)


DOC = """;
;   3. {o partial, max, sum} go round the group; each wave merges 32 o values with the group's true
"""


class Em:
    def __init__(self):
        self.L = []
        self.q = []

    def e(self, s):
        self.L.append("    " + s)

    def lab(self, s):
        self.L.append(s + ":")

    def c(self, s):
        self.L.append("    ; " + s)

    def vm(self, name, s):
        self.e(s)
        self.q.append(name)

    def wait(self, name):
        if name not in self.q:
            return
        i = self.q.index(name)
        n = len(self.q) - 1 - i
        self.e("s_waitcnt vmcnt(%d)" % n)
        self.q = self.q[i + 1:]

    def window(self, w):
        if w and len(self.q) >= w:
            self.wait(self.q[len(self.q) - w])


def vr(a, n=1):
    return "v%d" % a if n == 1 else "v[%d:%d]" % (a, a + n - 1)


def sp(a):
    return "s[%d:%d]" % (a, a + 1)


DPPALL = "row_mask:0xf bank_mask:0xf"


def gen(**kw):
    P = dict(DEF)
    P.update(kw)
    W = P["window"]
    FL = P["ldflag"]
    ST = P["stamps"]
    m = Em()
    e = m.e

    sX = 4
    sPC = 6
    sK, sV, sWQ, sWO = 8, 10, 12, 14
    sGATE, sOUT, sDBG, sWS = 16, 18, 20, 22
    sKVH, sBR, sJ, sWAVE, sGRP = 24, 25, 26, 27, 28
    sT0, sT1, sT2 = 29, 30, 31
    sTAG, sTM, sMASK, sSPIN = 32, 33, 34, 35
    sSC = 36
    sL2E = 38
    sLOC = 40
    sSAVE = 42
    sHI = 50
    sSTAMP = 70

    incomm = [False]

    def stamp(idx):
        if ST:
            e("s_memrealtime s[%d:%d]" % (sSTAMP + 2 * idx, sSTAMP + 2 * idx + 1))
        if incomm[0] and P.get("padref") == idx:
            e("s_memrealtime s[98:99]")

    def dump_stamps(n):
        if not ST:
            return
        e("s_waitcnt lgkmcnt(0)")
        if P.get("late_dump", 1):
            lab = "L_ld%d" % len(m.L)
            m.lab(lab)
            e("s_sleep 8")
            e("s_memrealtime s[44:45]")
            e("s_waitcnt lgkmcnt(0)")
            e("s_sub_u32 s44, s44, s%d" % sSTAMP)
            e("s_cmp_lt_u32 s44, 2000")
            e("s_cbranch_scc1 " + lab)
        e("s_mov_b64 exec, 1")
        for i in range(n):
            e("v_mov_b32 v%d, s%d" % (8 + i, sSTAMP + 2 * i))
        for i in range(n, 16):
            e("v_mov_b32 v%d, 0" % (8 + i))
        e("s_lshl_b32 s%d, s2, 3" % sT0)
        e("s_add_u32 s%d, s%d, s%d" % (sT0, sT0, sWAVE))
        e("s_lshl_b32 s%d, s%d, 6" % (sT0, sT0))
        e("s_add_u32 s%d, s%d, 0x%x" % (sT0, sT0, WS_STAMP))
        e("v_mov_b32 v1, s%d" % sT0)
        for i in range(4):
            e("global_store_dwordx4 v1, v[%d:%d], %s offset:%d" % (8 + 4 * i, 11 + 4 * i, sp(sWS), 16 * i))

    def make_tags(v, bump=True):
        if bump:
            e("s_add_u32 s%d, s%d, 0x9E3779B9" % (sTAG, sTAG))
        for k, sh in enumerate((0, 10, 20, 22)):
            e("s_bfe_u32 s%d, s%d, 0x%x" % (sT0, sTAG, (TB << 16) | sh))
            e("v_mov_b32 v%d, s%d" % (v + k, sT0))
        e("s_mov_b32 s%d, 0x%x" % (sTM, 0xffffffff ^ TM))

    def allreduce_groups(v, tmp, op):
        e("v_mov_b32 v%d, v%d" % (tmp, v))
        e("s_nop 1")
        e("v_permlane32_swap_b32 v%d, v%d" % (v, tmp))
        e("%s v%d, v%d, v%d" % (op, v, v, tmp))
        e("v_mov_b32 v%d, v%d" % (tmp, v))
        e("s_nop 1")
        e("v_permlane16_swap_b32 v%d, v%d" % (v, tmp))
        e("%s v%d, v%d, v%d" % (op, v, v, tmp))

    def row_allreduce(v, op):
        for r in (8, 4, 2, 1):
            e("s_nop 1")
            e("%s_dpp v%d, v%d, v%d row_ror:%d %s" % (op, v, v, v, r, DPPALL))

    def sum4_and_tag(t, tg, dst, rnd=False):
        for k in (0, 2):
            e("v_pk_add_f32 %s, %s, %s" % (vr(t + k, 2), vr(t + k, 2), vr(t + 4 + k, 2)))
            e("v_pk_add_f32 %s, %s, %s" % (vr(t + 8 + k, 2), vr(t + 8 + k, 2), vr(t + 12 + k, 2)))
        for k in (0, 2):
            e("v_pk_add_f32 %s, %s, %s" % (vr(t + k, 2), vr(t + k, 2), vr(t + 8 + k, 2)))
        if rnd:
            for k in range(4):
                e("v_add_u32 v%d, 0x%x, v%d" % (t + k, 1 << (TB - 1), t + k))
        if tg:
            for k in range(4):
                e("v_and_or_b32 v%d, v%d, s%d, v%d" % (dst + k, t + k, sTM, tg[k]))

    def check_embedded(u, n, tg, acc):
        for k in range(n):
            e("v_xor_b32 v%d, v%d, v%d" % (u + k, u + k, tg + (k & 3)))
        e("v_or3_b32 v%d, v%d, v%d, v%d" % (acc, u, u + 1, u + 2))
        k = 3
        while k < n:
            if k + 1 < n:
                e("v_or3_b32 v%d, v%d, v%d, v%d" % (acc, acc, u + k, u + k + 1))
                k += 2
            else:
                e("v_or_b32 v%d, v%d, v%d" % (acc, acc, u + k))
                k += 1
        e("v_and_b32 v%d, 0x%x, v%d" % (acc, TM, acc))
        e("v_cmp_ne_u32 vcc, 0, v%d" % acc)

    def store_loc(name, text):
        e("s_cmp_lg_u32 s%d, 0" % sLOC)
        e("s_cbranch_scc1 L_wt_" + name)
        e(text)
        e("s_branch L_sd_" + name)
        m.lab("L_wt_" + name)
        e(text + " sc1")
        m.lab("L_sd_" + name)
        m.q.append(name)

    e("s_and_b32 s%d, s2, 8" % sT0)
    e("s_mul_i32 s%d, s%d, 5" % (sT0, sT0))
    e("s_load_dwordx8 s[8:15], s[0:1], s%d offset:0x8" % sT0)
    e("s_load_dwordx2 %s, s[0:1], 0" % sp(sX))
    stamp(0)
    if P.get("amp"):
        e("s_memrealtime s[94:95]")
    e("v_readfirstlane_b32 s%d, v0" % sWAVE)
    e("s_cmpk_ge_u32 s2, 0x100")
    e("s_cbranch_scc1 L_end")
    e("v_and_b32 v4, 15, v0")
    e("s_and_b32 s%d, s2, 7" % sKVH)
    e("s_cmpk_lt_u32 s%d, 0x100" % sWAVE)
    e("s_cbranch_scc1 L_comp")
    e("s_getpc_b64 %s" % sp(sPC))
    m.lab("L_pc")
    e("v_lshlrev_b32 v5, 7, v0")
    e("v_min_u32 v5, L_end-L_pc+0x8000, v5")
    e("s_sub_u32 s%d, s%d, 0x8000" % (sPC, sPC))
    e("s_subb_u32 s%d, s%d, 0" % (sPC + 1, sPC + 1))
    e("global_load_dword v6, v5, %s %s" % (sp(sPC), P.get("cpflag", "")))
    e("s_branch L_comm")
    m.lab("L_comp")

    vOK, vOV, vOO, vOX = 6, 7, 8, 9
    vMK = 10
    vMP = 14
    vAD = 16
    vZERO, vONE = 18, 19
    vA_OW, vA_OR, vA_OG, vA_OP = 20, 21, 22, 23
    vX = 24
    vTG = 24
    vQ = 28
    vACC = 32
    vT = 40
    vS = 56
    vWQ = 72
    vAX = 104
    vWO = 104
    vK = 136
    vVregs = [200 + 4 * i for i in range(14)] + [vWQ + 0, vWQ + 4]
    vD = [vWQ + 8 + 4 * i for i in range(4)]
    vA_QP, vA_W, vA_H, vMH = vWQ + 24, vWQ + 25, vWQ + 26, vWQ + 27

    e("s_lshr_b32 s%d, s2, 6" % sT1)
    e("s_lshl2_add_u32 s%d, s%d, s%d" % (sT0, sKVH, sT1))
    e("s_and_b32 s%d, s2, 48" % sT1)
    e("v_lshrrev_b32 v6, 4, v0")
    e("v_lshl_or_b32 v5, s%d, 4, v4" % sT0)
    e("v_add_u32 v6, s%d, v6" % sT1)
    e("s_movk_i32 s%d, 0x2000" % sT1)
    e("v_lshlrev_b32 v%d, 4, v6" % vOX)
    e("v_lshl_or_b32 v5, v6, 12, v5")
    e("v_lshlrev_b32 v%d, 4, v5" % vT)
    for i in range(1, 8):
        e("v_add_u32 v%d, s%d, v%d" % (vT + i, sT1, vT + i - 1))
    e("s_waitcnt lgkmcnt(0)")
    m.vm("x", "global_load_dwordx4 %s, v%d, %s %s" % (vr(vX, 4), vOX, sp(sX), P.get("xflag", "")))
    for i in range(8):
        m.vm("wq%d" % i, "global_load_dwordx4 %s, v%d, %s %s" % (vr(vWQ + 4 * i, 4), vT + i, sp(sWQ), FL))
    m.lab("L_first")
    stamp(1)

    def decode():
        e("s_load_dwordx8 s[16:23], s[0:1], 80")
        if P.get("padto") and not P.get("padref"):
            e("s_memrealtime s[98:99]")
        e("v_lshrrev_b32 v2, 6, v0")
        e("v_and_b32 v1, 63, v0")
        e("v_bfe_u32 v3, v0, 4, 2")
        e("s_lshr_b32 s%d, s%d, 6" % (sWAVE, sWAVE))
        e("s_bfe_u32 s%d, s2, 0x10003" % sBR)
        e("s_lshr_b32 s%d, s2, 4" % sJ)
        e("s_lshl1_add_u32 s%d, s%d, s%d" % (sGRP, sKVH, sBR))

    decode()
    e("s_lshl_b32 s%d, s%d, 8" % (sT0, sT0))
    e("s_lshl_b32 s%d, s%d, 24" % (sT1, sKVH))
    e("s_lshl_b32 s%d, s%d, 12" % (sT2, sJ))
    e("s_add_u32 s%d, s%d, s%d" % (sT1, sT1, sT2))
    e("s_add_u32 s%d, s%d, 0xF00000" % (sT1, sT1))
    e("v_bfe_u32 v%d, v1, 2, 2" % vOK)
    e("v_lshlrev_b32 v%d, 8, v%d" % (vOK, vOK))
    e("v_lshl_add_u32 v%d, v3, 6, v%d" % (vOK, vOK))
    e("v_and_b32 v5, 3, v1")
    e("v_lshl_add_u32 v%d, v5, 4, v%d" % (vOK, vOK))
    e("v_lshl_add_u32 v%d, v2, 10, v%d" % (vOK, vOK))
    e("v_add_u32 v%d, s%d, v%d" % (vOK, sT1, vOK))
    e("v_lshlrev_b32 v%d, 4, v0" % vOV)
    e("v_add_u32 v%d, s%d, v%d" % (vOV, sT1, vOV))
    e("s_lshl_b32 s%d, s%d, 9" % (sT0, sT0))
    e("s_and_b32 s%d, s%d, 3" % (sT1, sJ))
    e("s_lshl_b32 s%d, s%d, 8" % (sT1, sT1))
    e("s_add_u32 s%d, s%d, s%d" % (sT0, sT0, sT1))
    e("v_and_b32 v5, 1, v3")
    e("v_lshlrev_b32 v%d, 11, v5" % vOO)
    e("v_lshrrev_b32 v5, 1, v3")
    e("v_lshl_add_u32 v%d, v5, 10, v%d" % (vOO, vOO))
    e("v_lshl_add_u32 v%d, v2, 15, v%d" % (vOO, vOO))
    e("v_lshl_add_u32 v%d, v4, 4, v%d" % (vOO, vOO))
    e("v_add_u32 v%d, s%d, v%d" % (vOO, sT0, vOO))

    def swz(i):
        return (i << 16) | (((i * P["swz"]) & 15) << 12)

    nad = [0]

    def ld_x(name, dst, off, const, base):
        if const:
            a = vAD + (nad[0] & 1)
            nad[0] += 1
            e("v_xor_b32 v%d, 0x%x, v%d" % (a, const, off))
        else:
            a = off
        m.vm(name, "global_load_dwordx4 %s, v%d, %s %s" % (vr(dst, 4), a, sp(base), FL))

    def ld_k(i):
        ld_x("k%d" % i, vK + 4 * i, vOK, swz(i), sK)

    def ld_v(i):
        ld_x("v%d" % i, vVregs[i], vOV, swz(i), sV)

    def ld_wo(i):
        ld_x("wo%d" % i, vWO + 4 * i, vOO, i << 12, sWO)

    lag = P["lag"]
    KS = [("k", i) for i in range(16)]
    VS = [("v", i) for i in range(16)]
    WS_ = [("wo", i) for i in range(8)]
    rest = KS[:lag] + [x for p in zip(KS[lag:], VS[:16 - lag]) for x in p] + WS_[:P["wo_early"]] + VS[16 - lag:] + WS_[P["wo_early"]:]

    if P.get("seq"):
        sq = P["seq"]
        assert sq.count("k") == 16 and sq.count("v") == 16 and sq.count("o") == 8, sq
        its = {"k": iter(KS), "v": iter(VS), "o": iter(WS_)}
        rest = [next(its[ch]) for ch in sq]

    def ld_next():
        kind, i = rest.pop(0)
        {"k": ld_k, "v": ld_v, "wo": ld_wo}[kind](i)

    def paced(n):
        for _ in range(n):
            m.window(W)
            ld_next()

    m.c("masks")
    e("v_and_b32 v5, 1, v1")
    e("v_lshlrev_b32 v5, 4, v5")
    e("s_mov_b32 s%d, 0xffff" % sT0)
    e("v_lshlrev_b32 v5, v5, s%d" % sT0)
    e("v_bfe_u32 v%d, v1, 1, 2" % (vT + 8))
    for d in range(4):
        e("v_cmp_eq_u32 vcc, %d, v%d" % (d, vT + 8))
        e("s_nop 1")
        e("v_cndmask_b32 v%d, 0, v5, vcc" % (vMK + d))
    e("v_or_b32 v%d, v%d, v%d" % (vMP + 0, vMK + 0, vMK + 2))
    e("v_or_b32 v%d, v%d, v%d" % (vMP + 1, vMK + 1, vMK + 3))
    e("s_mov_b32 s%d, 0x3db504f3" % sSC)
    e("s_mov_b32 s%d, 0x3db504f3" % (sSC + 1))
    e("s_mov_b32 s%d, 0x3fb8aa3b" % sL2E)
    e("s_mov_b32 s%d, 0x3fb8aa3b" % (sL2E + 1))
    e("s_mov_b32 s%d, 0xffff0000" % sMASK)
    e("s_mov_b32 s%d, 0x01000100" % sT0)
    e("s_mov_b32 s%d, 0x03020302" % sT1)
    e("v_mov_b32 v%d, 0" % vZERO)
    e("v_mov_b32 v%d, 1" % vONE)

    m.c("q projection")
    m.wait("x")
    for i in range(8):
        e("v_perm_b32 v%d, v%d, v%d, s%d" % (vT + 8 + i, vX + i // 2, vX + i // 2, sT1 if i & 1 else sT0))
    for i in range(8):
        for d in range(4):
            e("v_and_b32 v%d, v%d, v%d" % (vAX + 4 * i + d, vT + 8 + i, vMK + d))
    for i in range(8):
        m.wait("wq%d" % i)
        e("v_mfma_f32_16x16x32_bf16 %s, %s, %s, %s" % (vr(vACC, 4), vr(vAX + 4 * i, 4), vr(vWQ + 4 * i, 4), "0" if i == 0 else vr(vACC, 4)))
        if len(m.q) < W:
            ld_next()
    stamp(2)
    e("v_and_b32 v%d, 1, v3" % vA_QP)
    e("v_lshlrev_b32 v%d, 4, v%d" % (vA_QP, vA_QP))
    e("v_lshl_add_u32 v%d, v4, 5, v%d" % (vA_QP, vA_QP))
    e("v_lshl_add_u32 v%d, v2, 9, v%d" % (vA_QP, vA_QP))
    e("s_mov_b32 exec_hi, 0")
    e("s_nop 2")
    e("ds_write_b128 v%d, %s offset:%d" % (vA_QP, vr(vACC, 4), L_QP))
    e("s_mov_b64 exec, -1")
    e("s_waitcnt lgkmcnt(0)")
    e("s_barrier")
    paced(3)

    m.c("addresses used later")
    e("v_lshlrev_b32 v%d, 11, v2" % vA_OW)
    e("v_lshl_add_u32 v%d, v1, 4, v%d" % (vA_OW, vA_OW))
    e("v_and_b32 v5, 1, v1")
    e("v_lshlrev_b32 v%d, 10, v5" % vA_OR)
    e("v_lshl_add_u32 v%d, v2, 8, v%d" % (vA_OR, vA_OR))
    e("v_bfe_u32 v5, v1, 1, 4")
    e("v_lshl_add_u32 v%d, v5, 4, v%d" % (vA_OR, vA_OR))
    paced(1)
    e("s_lshl_b32 s%d, s%d, 15" % (sT0, sGRP))
    e("s_add_u32 s%d, s%d, 0x%x" % (sT0, sT0, WS_O))
    e("s_lshl_b32 s%d, s%d, 7" % (sT1, sJ))
    e("s_add_u32 s%d, s%d, s%d" % (sT1, sT1, sT0))
    e("v_bfe_u32 v%d, v1, 3, 2" % vA_OG)
    e("v_lshl_add_u32 v%d, v2, 2, v%d" % (vA_OG, vA_OG))
    e("v_lshlrev_b32 v%d, 11, v%d" % (vA_OG, vA_OG))
    e("v_and_b32 v5, 7, v1")
    e("v_lshl_add_u32 v%d, v5, 4, v%d" % (vA_OG, vA_OG))
    e("v_add_u32 v%d, s%d, v%d" % (vA_OG, sT1, vA_OG))
    e("s_and_b32 s%d, s%d, 12" % (sT1, sJ))
    e("s_lshl_b32 s%d, s%d, 11" % (sT1, sT1))
    e("s_add_u32 s%d, s%d, s%d" % (sT1, sT1, sT0))
    e("v_add_u32 v%d, s%d, v%d" % (vA_OP, sT1, vA_OW))
    e("s_mov_b32 s%d, 0" % sHI)
    e("s_mov_b32 s%d, -1" % (sHI + 1))
    e("s_lshl_b32 s%d, s%d, 10" % (sT0, sGRP))
    e("s_add_u32 s%d, s%d, 0x%x" % (sT0, sT0, WS_ML))
    e("s_lshl_b32 s%d, s%d, 4" % (sT1, sJ))
    e("s_add_u32 s%d, s%d, s%d" % (sT1, sT1, sT0))
    e("v_lshlrev_b32 v5, 8, v2")
    e("v_add_u32 v5, s%d, v5" % sT1)
    e("v_cndmask_b32 v%d, v%d, v5, %s" % (vA_OG, vA_OG, sp(sHI)))
    e("s_lshr_b32 s%d, s%d, 2" % (sT1, sJ))
    e("s_lshl_b32 s%d, s%d, 8" % (sT1, sT1))
    e("s_add_u32 s%d, s%d, s%d" % (sT1, sT1, sT0))
    e("v_lshrrev_b32 v%d, 3, v1" % vA_W)
    e("v_and_b32 v5, 1, v1")
    e("v_lshl_add_u32 v%d, v5, 3, v%d" % (vA_W, vA_W))
    e("v_lshlrev_b32 v%d, 4, v%d" % (vA_W, vA_W))
    e("v_add_u32 v%d, s%d, v%d" % (vA_W, sT1, vA_W))
    e("v_lshlrev_b32 v%d, 4, v2" % vA_H)

    n_total = 40
    while n_total - len(rest) - len(m.q) < P["b2pos"]:
        paced(1)
    while len(m.q) < P["nv_before"] and rest:
        ld_next()
    stamp(3)
    e("s_barrier")
    e("v_lshlrev_b32 v5, 4, v1")
    e("ds_read_b128 %s, v5 offset:%d" % (vr(vQ, 4), L_Q))
    e("ds_read_b64 %s, v%d offset:%d" % (vr(vT, 2), vZERO, L_LOC))
    stamp(4)
    e("s_waitcnt lgkmcnt(0)")
    e("v_readfirstlane_b32 s%d, v%d" % (sLOC, vT))
    e("v_readfirstlane_b32 s%d, v%d" % (sTAG, vT + 1))

    late = []
    for _ in range(P["n_late"]):
        late.insert(0, rest.pop())
    WIN = P["wo_win"]

    def more(n=1):
        for _ in range(n):
            if rest:
                ld_next()

    def feed_wait(kind, i):
        name = "%s%d" % (kind, i)
        while (kind, i) in rest:
            m.window(WIN)
            ld_next()
        while rest and name in m.q and m.q.index(name) > 0:
            m.window(WIN)
            if len(m.q) < WIN:
                ld_next()
        m.wait(name)

    def top_up():
        while rest and len(m.q) < WIN:
            ld_next()

    m.c("scores: QK, round to bf16, scale, round to bf16, running max")
    vM, vM2, vA1, vA2 = vT + 8, vT + 10, vT + 12, vT + 13
    e("v_lshrrev_b32 v%d, 2, v4" % vA2)
    e("v_lshlrev_b32 v%d, 4, v%d" % (vA2, vA2))
    e("v_lshl_add_u32 v%d, v2, 2, v%d" % (vA1, vA2))
    qp = ["[0,0,0,0]", "[1,1,1,1]", "[2,2,2,2]", "[3,3,3,3]"]

    def round4(b):
        for i in (4 * b, 4 * b + 2):
            e("v_cvt_pk_bf16_f32 v%d, v%d, v%d" % (vT + (i & 2) // 2, vS + i, vS + i + 1))
        for i in (4 * b, 4 * b + 2):
            e("v_lshlrev_b32 v%d, 16, v%d" % (vS + i, vT + (i & 2) // 2))
            e("v_and_b32 v%d, s%d, v%d" % (vS + i + 1, sMASK, vT + (i & 2) // 2))

    for b in range(4):
        for t in range(4):
            i = 4 * b + t
            feed_wait("k", i)
            e("v_mfma_f32_16x16x32_bf16 %s, %s, %s, 0" % (vr(vD[t], 4), vr(vK + 4 * i, 4), vr(vQ, 4)))
        n0 = len(m.L)
        top_up()
        more(P["n_qk"])
        used = len(m.L) - n0
        if used < 5:
            e("s_nop %d" % (4 - used))
        for u in range(4):
            for t in range(4):
                i = 4 * b + t
                if u == 0:
                    e("v_mov_b32_dpp v%d, v%d quad_perm:%s %s" % (vS + i, vD[t], qp[0], DPPALL))
                else:
                    e("v_add_f32_dpp v%d, v%d, v%d quad_perm:%s %s" % (vS + i, vD[t] + u, vS + i, qp[u], DPPALL))
        round4(b)
        for i in (4 * b, 4 * b + 2):
            e("v_pk_mul_f32 %s, %s, %s" % (vr(vS + i, 2), vr(vS + i, 2), sp(sSC)))
        round4(b)
        if b == 1:
            make_tags(vTG, bump=False)
        if b == 0:
            e("v_max3_f32 v%d, v%d, v%d, v%d" % (vM, vS, vS + 1, vS + 2))
            e("v_max_f32 v%d, v%d, v%d" % (vM, vM, vS + 3))
        else:
            e("v_max3_f32 v%d, v%d, v%d, v%d" % (vM, vM, vS + 4 * b, vS + 4 * b + 1))
            e("v_max3_f32 v%d, v%d, v%d, v%d" % (vM, vM, vS + 4 * b + 2, vS + 4 * b + 3))
    allreduce_groups(vM, vM2, "v_max_f32")
    e("ds_write_b32 v%d, v%d offset:%d" % (vA1, vM, L_MX))
    e("s_waitcnt lgkmcnt(0)")
    e("s_barrier")
    e("ds_read_b128 %s, v%d offset:%d" % (vr(vT, 4), vA2, L_MX))
    e("ds_read_b128 %s, v%d offset:%d" % (vr(vT + 4, 4), vA_H, L_MX))
    more(P["n_b3"])
    e("s_waitcnt lgkmcnt(0)")
    e("v_max3_f32 v%d, v%d, v%d, v%d" % (vM, vT, vT + 1, vT + 2))
    e("v_max3_f32 v%d, v%d, v%d, v%d" % (vMH, vT + 4, vT + 5, vT + 6))
    e("v_max_f32 v%d, v%d, v%d" % (vM, vM, vT + 3))
    e("v_max_f32 v%d, v%d, v%d" % (vMH, vMH, vT + 7))
    e("v_mul_f32 v%d, s%d, v%d" % (vM2, sL2E, vM))
    e("v_mul_f32 v%d, s%d, v%d" % (vM2 + 1, sL2E, vM))
    stamp(5)
    m.c("exp, P operands and PV, software pipelined over pairs of key sets")
    vPA = vK
    vL = vT

    def stA(p):
        i = 2 * p
        e("v_pk_fma_f32 %s, %s, %s, %s neg_lo:[0,0,1] neg_hi:[0,0,1]" % (vr(vS + i, 2), vr(vS + i, 2), sp(sL2E), vr(vM2, 2)))
        e("v_exp_f32 v%d, v%d" % (vS + i, vS + i))
        e("v_exp_f32 v%d, v%d" % (vS + i + 1, vS + i + 1))

    def stB(p):
        for i in (2 * p, 2 * p + 1):
            e("v_cvt_pk_bf16_f32 v%d, v%d, v%d" % (vPA + 2 * i, vS + i, vS + i))
        for i in (2 * p, 2 * p + 1):
            e("v_and_b32 v%d, v%d, v%d" % (vPA + 2 * i + 1, vPA + 2 * i, vMP + 1))
            e("v_and_b32 v%d, v%d, v%d" % (vPA + 2 * i, vPA + 2 * i, vMP + 0))
        if p == 1:
            e("v_pk_add_f32 %s, %s, %s" % (vr(vL, 2), vr(vS, 2), vr(vS + 2, 2)))
        elif p > 1:
            e("v_pk_add_f32 %s, %s, %s" % (vr(vL, 2), vr(vL, 2), vr(vS + 2 * p, 2)))

    def stC(p):
        for i in (2 * p, 2 * p + 1):
            feed_wait("v", i)
            for w in range(2):
                e("v_mfma_f32_16x16x16_bf16 %s, %s, %s, %s" % (vr(vACC + 4 * w, 4), vr(vPA + 2 * i, 2), vr(vVregs[i] + 2 * w, 2), "0" if i == 0 else vr(vACC + 4 * w, 4)))
            top_up()

    cl = P["c_lag"]
    def capture(fn, *a):
        keep = m.L
        m.L = []
        fn(*a)
        got, m.L = m.L, keep
        return got

    def weave(valu, mf):
        chunks, cur = [], []
        for ln in mf:
            cur.append(ln)
            if "v_mfma" in ln:
                chunks.append(cur)
                cur = []
        if cur:
            chunks[-1].extend(cur)
        n = len(chunks)
        per = -(-len(valu) // n)
        for k in range(n):
            m.L.extend(chunks[k])
            m.L.extend(valu[k * per:(k + 1) * per])

    stA(0)
    for p in range(8):
        va = capture(stA, p + 1) if p + 1 < 8 else []
        vb = capture(stB, p)
        if p - cl >= 0:
            if cl == 1:
                m.L.extend(va[:2] if va else ["    s_nop 1"])
                va = va[2:]
            weave(va + vb, capture(stC, p - cl))
        else:
            m.L.extend(va + vb)
    e("v_add_f32 v%d, v%d, v%d" % (vL, vL, vL + 1))
    allreduce_groups(vL, vL + 1, "v_add_f32")
    e("ds_write_b32 v%d, v%d offset:%d" % (vA1, vL, L_LS))
    for p in range(max(0, 8 - cl), 8):
        stC(p)
    while rest:
        ld_next()
    stamp(6)
    e("s_nop 6")
    e("ds_write_b128 v%d, %s offset:%d" % (vA_OW, vr(vACC, 4), L_OP))
    e("ds_write_b128 v%d, %s offset:%d" % (vA_OW, vr(vACC + 4, 4), L_OP + 1024))
    e("s_mov_b64 exec, 1")
    e("ds_add_u32 v%d, v%d offset:%d" % (vZERO, vONE, L_CNT))
    e("s_mov_b32 exec_lo, -1")
    e("s_mov_b32 exec_hi, 1")
    vLS = vS + 12
    e("s_mov_b32 s%d, %d" % (sSPIN, P["spin"]))
    m.lab("L_cnt")
    e("ds_read_b32 v5, v%d offset:%d" % (vZERO, L_CNT))
    for w in range(4):
        e("ds_read_b128 %s, v%d offset:%d" % (vr(vT + 4 * w, 4), vA_OR, L_OP + 2048 * w))
    e("ds_read_b128 %s, v%d offset:%d" % (vr(vLS, 4), vA_H, L_LS))
    e("s_sub_u32 s%d, s%d, 1" % (sSPIN, sSPIN))
    e("s_cbranch_scc1 L_cntx")
    e("s_waitcnt lgkmcnt(0)")
    e("v_cmp_ne_u32 vcc, 4, v5")
    e("s_cbranch_vccnz L_cnt")
    m.lab("L_cntx")
    e("v_pk_add_f32 %s, %s, %s" % (vr(vLS, 2), vr(vLS, 2), vr(vLS + 2, 2)))
    sum4_and_tag(vT, None, vT)
    e("v_add_f32 v%d, v%d, v%d" % (vLS, vLS, vLS + 1))
    e("v_cndmask_b32 v%d, v%d, v%d, %s" % (vT, vT, vMH, sp(sHI)))
    e("v_cndmask_b32 v%d, v%d, v%d, %s" % (vT + 1, vT + 1, vLS, sp(sHI)))
    for k in (2, 3, 0, 1):
        e("v_and_or_b32 v%d, v%d, s%d, v%d" % (vT + k, vT + k, sTM, vTG + k))
    store_loc("o", "global_store_dwordx4 v%d, %s, %s" % (vA_OG, vr(vT, 4), sp(sWS)))
    stamp(7)
    e("s_mov_b64 exec, -1")
    rest.extend(late)
    while rest:
        ld_next()
    if ST and P.get("wostamp"):
        m.wait("wo7")
        stamp(10)
    if P["ptrig"] >= 0:
        m.wait("wo%d" % P["ptrig"])
    vO = vS
    vR = vK + 0
    sM = [44, 46, 48]
    e("s_mov_b32 s%d, 0" % sSPIN)
    for h in range(3):
        e("s_mov_b64 %s, -1" % sp(sM[h]))
    def o_round(masked):
        for h, (dst, adr, off) in ((2, (vR + 8, vA_W, 0)), (0, (vR, vA_OP, 0)), (1, (vR + 4, vA_OP, 1024))):
            if masked:
                e("s_mov_b64 exec, %s" % sp(sM[h]))
                e("s_cbranch_execz L_osk%d" % h)
            e("global_load_dwordx4 %s, v%d, %s offset:%d sc1" % (vr(dst, 4), adr, sp(sWS), off))
            if masked:
                m.lab("L_osk%d" % h)
        if masked:
            e("s_mov_b64 exec, -1")

    if P["odepth"] > 1:
        o_round(False)
    m.lab("L_opoll")
    if P["odepth"] == 1:
        o_round(True)
    e("s_add_u32 s%d, s%d, 1" % (sSPIN, sSPIN))
    e("s_waitcnt vmcnt(0)")
    m.q = []
    for k in list(range(8, 12)) + list(range(8)):
        e("v_xor_b32 v%d, v%d, v%d" % (vO + k, vR + k, vTG + (k & 3)))
    if P["odepth"] > 1:
        o_round(True)
    vM_, vL_, vE, vX1, vX2 = vO + 8, vO + 9, vT + 12, vT + 13, vT + 14
    e("v_max_f32_dpp v%d, v%d, v%d quad_perm:[1,0,3,2] %s" % (vX1, vM_, vM_, DPPALL))
    for h in range(3):
        e("v_or3_b32 v%d, v%d, v%d, v%d" % (vT + 8 + h, vO + 4 * h, vO + 4 * h + 1, vO + 4 * h + 2))
    e("v_max_f32_dpp v%d, v%d, v%d row_ror:8 %s" % (vX1, vX1, vX1, DPPALL))
    e("v_mov_b32 v%d, v%d" % (vX2, vX1))
    for h in range(3):
        e("v_bitop3_b32 v%d, v%d, v%d, s%d bitop3:0x54" % (vT + 8 + h, vT + 8 + h, vO + 4 * h + 3, sTM))
    e("v_permlane16_swap_b32 v%d, v%d" % (vX1, vX2))
    e("v_max_f32 v%d, v%d, v%d" % (vX1, vX1, vX2))
    e("v_mov_b32 v%d, v%d" % (vX2, vX1))
    for h in range(3):
        e("v_cmp_ne_u32 %s, 0, v%d" % (sp(sM[h]), vT + 8 + h))
    e("v_permlane32_swap_b32 v%d, v%d" % (vX1, vX2))
    e("v_max_f32 v%d, v%d, v%d" % (vX1, vX1, vX2))
    e("s_or_b64 %s, %s, %s" % (sp(sSAVE), sp(sM[0]), sp(sM[1])))
    e("v_sub_f32 v%d, v%d, v%d" % (vE, vM_, vX1))
    e("s_or_b64 %s, %s, %s" % (sp(sSAVE), sp(sSAVE), sp(sM[2])))
    e("v_mul_f32 v%d, s%d, v%d" % (vE, sL2E, vE))
    e("s_cbranch_scc0 L_ogot")
    e("s_cmp_lt_u32 s%d, %d" % (sSPIN, P["spin"]))
    e("s_cbranch_scc1 L_opoll")
    m.lab("L_ogot")
    e("v_exp_f32 v%d, v%d" % (vE, vE))
    stamp(8)
    e("s_nop 0")
    e("v_mul_f32 v%d, v%d, v%d" % (vX1, vE, vL_))
    for k in range(4):
        e("v_mul_f32_dpp v%d, v%d, v%d quad_perm:[0,0,2,2] %s" % (vO + k, vE, vO + k, DPPALL))
        if k == 2:
            e("v_add_f32_dpp v%d, v%d, v%d quad_perm:[1,0,3,2] %s" % (vX1, vX1, vX1, DPPALL))
    for k in range(4):
        e("v_fmac_f32_dpp v%d, v%d, v%d quad_perm:[1,1,3,3] %s" % (vO + k, vE, vO + 4 + k, DPPALL))
        if k == 1:
            e("v_add_f32_dpp v%d, v%d, v%d row_ror:8 %s" % (vX1, vX1, vX1, DPPALL))
    e("v_mov_b32 v%d, v%d" % (vX2, vX1))
    e("v_permlane32_swap_b32 v%d, v%d" % (vO + 0, vO + 1))
    e("v_permlane32_swap_b32 v%d, v%d" % (vO + 2, vO + 3))
    e("v_permlane32_swap_b32 v%d, v%d" % (vX1, vX2))
    e("v_add_f32 v%d, v%d, v%d" % (vO + 0, vO + 0, vO + 1))
    e("v_add_f32 v%d, v%d, v%d" % (vO + 2, vO + 2, vO + 3))
    e("v_add_f32 v%d, v%d, v%d" % (vX1, vX1, vX2))
    e("v_mov_b32 v%d, v%d" % (vX2, vX1))
    e("v_permlane16_swap_b32 v%d, v%d" % (vO + 0, vO + 2))
    e("v_add_f32 v%d, v%d, v%d" % (vO + 0, vO + 0, vO + 2))
    e("v_permlane16_swap_b32 v%d, v%d" % (vX1, vX2))
    e("v_add_f32 v%d, v%d, v%d" % (vX1, vX1, vX2))
    e("v_rcp_f32 v%d, v%d" % (vX1, vX1))
    e("v_add_f32_dpp v%d, v%d, v%d row_ror:8 %s" % (vO + 0, vO + 0, vO + 0, DPPALL))
    e("v_mul_f32 v%d, v%d, v%d" % (vO + 0, vO + 0, vX1))
    e("v_cvt_pk_bf16_f32 v%d, v%d, v%d" % (vO + 0, vO + 0, vO + 0))
    e("s_nop 1")
    vAI = vK + 32

    def build_ai(i):
        for d in range(4):
            e("v_and_b32_dpp v%d, v%d, v%d row_newbcast:%d %s" % (vAI + 4 * i + d, vO, vMK + d, i, DPPALL))

    build_ai(0)
    for i in range(8):
        if i < 7:
            build_ai(i + 1)
        else:
            e("s_nop 0")
        e("v_mfma_f32_16x16x32_bf16 %s, %s, %s, %s" % (vr(vACC, 4), vr(vAI + 4 * i, 4), vr(vWO + 4 * i, 4), "0" if i == 0 else vr(vACC, 4)))
    e("s_mov_b32 exec_hi, 0")
    e("s_nop 6")
    e("ds_write_b128 v%d, %s offset:%d" % (vA_QP, vr(vACC, 4), L_QP))
    e("s_waitcnt lgkmcnt(0)")
    e("s_barrier")
    stamp(9)
    dump_stamps(11)
    e("s_endpgm")

    m.q = []
    incomm[0] = True
    m.lab("L_comm")
    cA, cB, cC, cD = 7, 8, 9, 10
    cGS = 11
    cT = 12
    cQA, cQG, cML, cFP = 28, 29, 30, 31
    cU = 32
    cTG = 64
    cTQ = 68
    cOA, cFG, cOP = 69, 70, 71
    cPT = 72
    cFU = 84

    decode()
    e("v_mov_b32 v%d, 0" % cT)
    e("ds_write_b32 v%d, v%d offset:%d" % (cT, cT, L_CNT))
    e("v_lshlrev_b32 v%d, 4, v1" % cA)
    e("v_and_b32 v%d, 31, v1" % cC)
    e("v_lshlrev_b32 v%d, 4, v%d" % (cC, cC))
    e("s_lshl_b32 s%d, s%d, 13" % (sT0, sGRP))
    e("s_add_u32 s%d, s%d, 0x%x" % (sT0, sT0, WS_Q))
    e("s_lshl_b32 s%d, s%d, 9" % (sT1, sJ))
    e("s_add_u32 s%d, s%d, s%d" % (sT1, sT1, sT0))
    e("v_add_u32 v%d, s%d, v%d" % (cQA, sT1, cC))
    e("s_waitcnt lgkmcnt(0)")
    e("s_load_dword s%d, %s, 0x%x" % (sTAG, sp(sWS), WS_EPOCH))
    e("s_mov_b32 exec_hi, 0")
    e("global_load_dwordx4 %s, v%d, %s %s" % (vr(cPT, 4), cQA, sp(sWS), P.get("ptflag", "sc1")))
    if P["tlbwarm"]:
        e("s_lshl_b32 s%d, s%d, 24" % (sT1, sKVH))
        e("s_add_u32 s%d, s%d, 0xF00000" % (sT1, sT1))
        e("v_lshlrev_b32 v%d, 16, v1" % (cPT + 4))
        e("v_add_u32 v%d, s%d, v%d" % (cPT + 4, sT1, cPT + 4))
        e("s_lshl_b32 s%d, s%d, 2" % (sT1, sKVH))
        e("s_lshr_b32 s%d, s%d, 2" % (sT2, sJ))
        e("s_add_u32 s%d, s%d, s%d" % (sT1, sT1, sT2))
        e("s_lshl_b32 s%d, s%d, 17" % (sT1, sT1))
        e("v_lshlrev_b32 v%d, 16, v1" % (cPT + 5))
        e("v_add_u32 v%d, s%d, v%d" % (cPT + 5, sT1, cPT + 5))
        e("v_mov_b32 v%d, 0" % (cPT + 6))
        e("s_mov_b64 exec, 0x%x" % (0xffff if P["tlbwarm"] == 2 else 1))
        e("global_load_dword v%d, v%d, %s" % (cPT + 7, cPT + 4, sp(sK)))
        e("global_load_dword v%d, v%d, %s" % (cPT + 8, cPT + 4, sp(sV)))
        e("s_mov_b64 exec, 0x%x" % (3 if P["tlbwarm"] == 2 else 1))
        e("global_load_dword v%d, v%d, %s" % (cPT + 9, cPT + 5, sp(sWO)))
        e("s_mov_b64 exec, 1")
        e("global_load_dword v%d, v%d, %s" % (cPT + 10, cPT + 6, sp(sOUT)))
        e("global_load_dword v%d, v%d, %s" % (cPT + 11, cPT + 6, sp(sGATE)))
    e("s_mov_b64 exec, -1")
    e("v_lshrrev_b32 v%d, 2, v4" % cQG)
    e("v_lshlrev_b32 v%d, 11, v%d" % (cQG, cQG))
    e("v_lshl_add_u32 v%d, v3, 7, v%d" % (cQG, cQG))
    e("v_and_b32 v%d, 3, v1" % cT)
    e("v_lshl_add_u32 v%d, v%d, 5, v%d" % (cQG, cT, cQG))
    e("v_add_u32 v%d, s%d, v%d" % (cQG, sT0, cQG))
    e("v_add_u32 v%d, 0x%x, v%d" % (cD, WS_QB - WS_Q, cQA))
    e("s_mov_b32 s%d, 0x3fb8aa3b" % sL2E)
    e("s_mov_b32 s%d, 0xffff0000" % sMASK)
    e("s_getreg_b32 s%d, hwreg(HW_REG_XCC_ID, 0, 4)" % sT2)
    stamp(1)
    e("s_waitcnt lgkmcnt(0)")
    make_tags(cTG)
    e("v_and_b32 v%d, 0x%x, v%d" % (cTQ, TM & ~15, cTG + 3))
    e("v_or_b32 v%d, s%d, v%d" % (cTQ, sT2, cTQ))
    stamp(2)
    e("s_mov_b32 exec_hi, 0")
    e("s_barrier")
    for w in range(4):
        e("ds_read_b128 %s, v%d offset:%d" % (vr(cU + 4 * w, 4), cC, L_QP + 512 * w))
    e("s_waitcnt lgkmcnt(0)")
    sum4_and_tag(cU, [cTG, cTG + 1, cTG + 2, cTQ], cT + 8, rnd=True)
    e("global_store_dwordx4 v%d, %s, %s" % (cQA, vr(cT + 8, 4), sp(sWS)))
    if P.get("eagerb"):
        e("global_store_dwordx4 v%d, %s, %s sc1" % (cD, vr(cT + 8, 4), sp(sWS)))
    e("s_mov_b64 exec, -1")
    stamp(3)
    e("s_lshl_b32 s%d, s%d, 4" % (sT0, sGRP))
    e("s_add_u32 s%d, s%d, s%d" % (sT0, sT0, sJ))
    e("s_lshl_b32 s%d, s%d, 11" % (sT1, sT0))
    e("s_add_u32 s%d, s%d, 0x%x" % (sT1, sT1, WS_O))
    e("v_add_u32 v%d, s%d, v%d" % (cOP, sT1, cA))
    e("s_lshr_b32 s%d, s%d, 2" % (sT1, sT0))
    e("s_lshl_b32 s%d, s%d, 8" % (sT1, sT1))
    e("s_add_u32 s%d, s%d, 0x%x" % (sT1, sT1, WS_ML))
    e("v_lshlrev_b32 v%d, 4, v4" % cML)
    e("v_add_u32 v%d, s%d, v%d" % (cML, sT1, cML))
    e("s_and_b32 s%d, s%d, 3" % (sT0, sJ))
    e("s_lshl_b32 s%d, s%d, 6" % (sT0, sT0))
    e("s_lshl_b32 s%d, s%d, 5" % (sT1, sBR))
    e("s_add_u32 s%d, s%d, s%d" % (sT0, sT0, sT1))
    e("s_lshl_b32 s%d, s%d, 2" % (sT1, sKVH))
    e("s_add_u32 s%d, s%d, s%d" % (sT0, sT0, sT1))
    e("s_lshr_b32 s%d, s%d, 2" % (sT1, sJ))
    e("s_add_u32 s%d, s%d, s%d" % (sT0, sT0, sT1))
    e("s_lshl_b32 s%d, s%d, 9" % (sT0, sT0))
    e("s_add_u32 s%d, s%d, 0x%x" % (sT0, sT0, WS_F))
    e("v_add_u32 v%d, s%d, v%d" % (cFP, sT0, cC))
    e("s_lshl_b32 s%d, s%d, 4" % (sT0, sKVH))
    e("s_bfe_u32 s%d, s2, 0x40003" % sT1)
    e("s_add_u32 s%d, s%d, s%d" % (sT0, sT0, sT1))
    e("s_lshr_b32 s%d, s%d, 5" % (sT1, sT0))
    e("s_lshl_b32 s%d, s%d, 15" % (sT1, sT1))
    e("s_and_b32 s%d, s%d, 31" % (sT2, sT0))
    e("s_lshl_b32 s%d, s%d, 4" % (sT2, sT2))
    e("s_add_u32 s%d, s%d, s%d" % (sT1, sT1, sT2))
    e("s_add_u32 s%d, s%d, 0x%x" % (sT1, sT1, WS_F))
    e("v_lshlrev_b32 v%d, 9, v1" % cFG)
    e("v_add_u32 v%d, s%d, v%d" % (cFG, sT1, cFG))
    e("v_and_b32 v%d, 1, v3" % cOA)
    e("v_bfe_u32 v%d, v1, 3, 1" % cT)
    e("v_lshl_add_u32 v%d, v%d, 1, v%d" % (cOA, cT, cOA))
    e("v_lshlrev_b32 v%d, 1, v%d" % (cOA, cOA))
    e("s_lshl_b32 s%d, s%d, 3" % (sT0, sT0))
    e("v_add_u32 v%d, s%d, v%d" % (cOA, sT0, cOA))
    e("s_mov_b32 s%d, 0" % sSPIN)
    if P.get("d_noq"):
        e("s_branch L_gotq")
    m.lab("L_pollq")
    for rq in range(4):
        for hf in range(2):
            e("global_load_dwordx4 %s, v%d, %s offset:%d sc1" % (vr(cU + 8 * rq + 4 * hf, 4), cQG, sp(sWS), rq * 512 + hf * 16))
    e("s_add_u32 s%d, s%d, 1" % (sSPIN, sSPIN))
    e("s_waitcnt vmcnt(0)")
    for k in range(32):
        e("v_xor_b32 v%d, v%d, v%d" % (cU + k, cU + k, cTQ if (k & 3) == 3 else cTG + (k & 3)))
    e("v_or3_b32 v%d, v%d, v%d, v%d" % (cT + 1, cU + 3, cU + 7, cU + 11))
    e("v_or3_b32 v%d, v%d, v%d, v%d" % (cT + 1, cT + 1, cU + 15, cU + 19))
    e("v_or3_b32 v%d, v%d, v%d, v%d" % (cT + 1, cT + 1, cU + 23, cU + 27))
    e("v_or_b32 v%d, v%d, v%d" % (cT + 1, cT + 1, cU + 31))
    e("v_and_b32 v%d, -16, v%d" % (cT, cT + 1))
    rest3 = [cU + k for k in range(32) if (k & 3) != 3]
    for k in range(0, 24, 2):
        e("v_or3_b32 v%d, v%d, v%d, v%d" % (cT, cT, rest3[k], rest3[k + 1]))
    e("v_and_b32 v%d, 0x%x, v%d" % (cT, TM, cT))
    e("v_cmp_ne_u32 vcc, 0, v%d" % cT)
    e("s_cbranch_vccz L_gotq")
    e("s_cmp_lt_u32 s%d, %d" % (sSPIN, P["nfast"]))
    e("s_cbranch_scc1 L_pollq")
    e("v_xor_b32 v%d, 0x%x, v%d" % (cQG, WS_QB ^ WS_Q, cQG))
    e("s_cmp_lg_u32 s%d, %d" % (sSPIN, P["nfast"]))
    e("s_cbranch_scc1 L_nswq")
    e("s_mov_b32 exec_hi, 0")
    e("global_store_dwordx4 v%d, %s, %s sc1" % (cD, vr(cT + 8, 4), sp(sWS)))
    e("s_mov_b64 exec, -1")
    m.lab("L_nswq")
    e("s_cmp_lt_u32 s%d, %d" % (sSPIN, P["spin"]))
    e("s_cbranch_scc1 L_pollq")
    m.lab("L_gotq")
    e("v_and_b32 v%d, 15, v%d" % (cT + 1, cT + 1))
    e("v_cmp_ne_u32 vcc, 0, v%d" % (cT + 1))
    for k in range(3, 32, 4):
        e("v_and_b32 v%d, -16, v%d" % (cU + k, cU + k))
    e("s_or_b32 s%d, vcc_lo, vcc_hi" % sLOC)
    if P.get("force_wt"):
        e("s_mov_b32 s%d, 1" % sLOC)
    e("s_cmp_eq_u32 s%d, 0" % sLOC)
    e("s_cbranch_scc1 L_qloc")
    e("s_mov_b32 exec_hi, 0")
    e("global_store_dwordx4 v%d, %s, %s sc1" % (cD, vr(cT + 8, 4), sp(sWS)))
    e("s_mov_b64 exec, -1")
    m.lab("L_qloc")
    for k in range(0, 8, 2):
        e("v_pk_add_f32 %s, %s, %s" % (vr(cU + k, 2), vr(cU + k, 2), vr(cU + 8 + k, 2)))
        e("v_pk_add_f32 %s, %s, %s" % (vr(cU + 16 + k, 2), vr(cU + 16 + k, 2), vr(cU + 24 + k, 2)))
    for k in range(0, 8, 2):
        e("v_pk_add_f32 %s, %s, %s" % (vr(cU + k, 2), vr(cU + k, 2), vr(cU + 16 + k, 2)))
    for k in range(4):
        e("v_cvt_pk_bf16_f32 v%d, v%d, v%d" % (cT + k, cU + 2 * k, cU + 2 * k + 1))
    e("v_mov_b32 v%d, s%d" % (cT + 4, sLOC))
    e("v_mov_b32 v%d, s%d" % (cT + 5, sTAG))
    e("v_mov_b32 v%d, 0" % (cT + 6))
    e("ds_write_b128 v%d, %s offset:%d" % (cA, vr(cT, 4), L_Q))
    e("ds_write_b64 v%d, %s offset:%d" % (cT + 6, vr(cT + 4, 2), L_LOC))
    PF = P.get("ptflag", "sc1")
    early_pt = P.get("early_pt", P["lag"] < 16)
    if not early_pt:
        e("s_waitcnt lgkmcnt(0)")
        stamp(4)
        e("s_barrier")
    e("global_load_dwordx4 %s, v%d, %s %s" % (vr(cU, 4), cA, sp(sX), P.get("xflag", "")))
    e("global_load_dwordx4 %s, v%d, %s %s" % (vr(cU + 4, 4), cA, sp(sGATE), P.get("xflag", "")))
    e("global_load_dwordx4 %s, v%d, %s %s" % (vr(cPT, 4), cOP, sp(sWS), PF))
    e("global_load_dwordx4 %s, v%d, %s offset:1024 %s" % (vr(cPT + 4, 4), cOP, sp(sWS), PF))
    e("global_load_dwordx4 %s, v%d, %s %s" % (vr(cPT + 8, 4), cML, sp(sWS), PF))
    if P["fpre"]:
        e("s_cmp_ge_u32 s2, 128")
        e("s_cbranch_scc1 L_nofp")
        e("global_load_dwordx4 %s, v%d, %s sc1" % (vr(cFU, 4), cFG, sp(sWS)))
        if P["owarm"]:
            e("global_load_ushort v%d, v%d, %s" % (cB, cOA, sp(sOUT)))
        m.lab("L_nofp")
    if early_pt:
        e("s_waitcnt lgkmcnt(0)")
        stamp(4)
        e("s_barrier")
    e("s_barrier")
    e("s_waitcnt vmcnt(0)")
    m.c("gate")
    for i in range(4):
        e("v_lshlrev_b32 v%d, 16, v%d" % (cT + 2 * i, cU + i))
        e("v_and_b32 v%d, s%d, v%d" % (cT + 2 * i + 1, sMASK, cU + i))
        e("v_lshlrev_b32 v%d, 16, v%d" % (cT + 8 + 2 * i, cU + 4 + i))
        e("v_and_b32 v%d, s%d, v%d" % (cT + 8 + 2 * i + 1, sMASK, cU + 4 + i))
    for i in range(8):
        e("v_mul_f32 v%d, v%d, v%d" % (cT + i, cT + i, cT + 8 + i))
    for i in range(4):
        e("v_cvt_pk_bf16_f32 v%d, v%d, v%d" % (cT + 8 + i, cT + 2 * i, cT + 2 * i + 1))
    for i in range(4):
        e("v_lshlrev_b32 v%d, 16, v%d" % (cT + 2 * i, cT + 8 + i))
        e("v_and_b32 v%d, s%d, v%d" % (cT + 2 * i + 1, sMASK, cT + 8 + i))
    for i in range(4):
        e("v_add_f32 v%d, v%d, v%d" % (cT + i, cT + i, cT + 4 + i))
    e("v_add_f32 v%d, v%d, v%d" % (cT + 0, cT + 0, cT + 2))
    e("v_add_f32 v%d, v%d, v%d" % (cT + 1, cT + 1, cT + 3))
    e("v_add_f32 v%d, v%d, v%d" % (cT + 0, cT + 0, cT + 1))
    row_allreduce(cT, "v_add_f32")
    allreduce_groups(cT, cT + 1, "v_add_f32")
    e("v_cvt_pk_bf16_f32 v%d, v%d, v%d" % (cT, cT, cT))
    e("v_and_b32 v%d, s%d, v%d" % (cT, sMASK, cT))
    e("v_mul_f32 v%d, s%d, v%d" % (cT, sL2E, cT))
    e("v_exp_f32 v%d, -v%d" % (cT, cT))
    e("s_nop 0")
    e("v_add_f32 v%d, 1.0, v%d" % (cT, cT))
    e("v_rcp_f32 v%d, v%d" % (cT, cT))
    e("s_nop 0")
    e("v_cvt_pk_bf16_f32 v%d, v%d, v%d" % (cT, cT, cT))
    e("v_and_b32 v%d, s%d, v%d" % (cT + 1, sMASK, cT))
    e("v_sub_f32 v%d, 1.0, v%d" % (cT, cT + 1))
    e("v_cmp_gt_u32 vcc, 32, v1")
    e("v_cvt_pk_bf16_f32 v%d, v%d, v%d" % (cT, cT, cT))
    e("v_and_b32 v%d, s%d, v%d" % (cT, sMASK, cT))
    e("v_cndmask_b32 v%d, v%d, v%d, vcc" % (cGS, cT, cT + 1))
    e("s_mov_b32 s%d, 0xff00ff00" % sHI)
    e("s_mov_b32 s%d, 0xff00ff00" % (sHI + 1))
    stamp(5)
    e("s_mov_b32 exec_hi, 0")
    e("s_barrier")
    for w in range(4):
        e("ds_read_b128 %s, v%d offset:%d" % (vr(cU + 4 * w, 4), cC, L_QP + 512 * w))
    stamp(6)
    e("s_waitcnt lgkmcnt(0)")
    sum4_and_tag(cU, [cTG + k for k in range(4)], cT + 8)
    e("global_store_dwordx4 v%d, %s, %s %s" % (cFP, vr(cT + 8, 4), sp(sWS), P.get("fsflag", "sc1")))
    e("s_mov_b64 exec, -1")
    stamp(7)
    e("s_cmp_ge_u32 s2, 128")
    e("s_cbranch_scc1 L_fin")
    if P["fwait"] < 0:
        e("s_waitcnt vmcnt(0)")
    elif P["fwait"]:
        e("s_sleep %d" % P["fwait"])
    e("s_mov_b32 s%d, 0" % sSPIN)
    e("s_mov_b64 vcc, -1")
    m.lab("L_pollf")
    if P["fsleep"]:
        e("s_sleep %d" % P["fsleep"])
    e("s_mov_b64 exec, vcc")
    e("global_load_dwordx4 %s, v%d, %s %s" % (vr(cFU, 4), cFG, sp(sWS), P.get("fflag", "sc1")))
    e("s_mov_b64 exec, -1")
    e("s_add_u32 s%d, s%d, 1" % (sSPIN, sSPIN))
    e("s_waitcnt vmcnt(0)")
    for d in range(4):
        e("v_xor_b32 v%d, v%d, v%d" % (cU + d, cFU + d, cTG + d))
    e("v_or3_b32 v%d, v%d, v%d, v%d" % (cT, cU, cU + 1, cU + 2))
    e("v_bitop3_b32 v%d, v%d, v%d, s%d bitop3:0x54" % (cT, cT, cU + 3, sTM))
    e("v_cmp_ne_u32 vcc, 0, v%d" % cT)
    e("s_cbranch_vccz L_gotf")
    e("s_cmp_lt_u32 s%d, %d" % (sSPIN, P["spin"]))
    e("s_cbranch_scc1 L_pollf")
    m.lab("L_gotf")
    stamp(8)
    e("v_permlane16_swap_b32 v%d, v%d" % (cU + 0, cU + 1))
    e("v_permlane16_swap_b32 v%d, v%d" % (cU + 2, cU + 3))
    e("v_add_f32 v%d, v%d, v%d" % (cU + 0, cU + 0, cU + 1))
    e("v_add_f32 v%d, v%d, v%d" % (cU + 2, cU + 2, cU + 3))
    e("s_nop 0")
    e("v_add_f32_dpp v%d, v%d, v%d row_ror:8 %s" % (cU + 1, cU + 0, cU + 0, DPPALL))
    e("v_add_f32_dpp v%d, v%d, v%d row_ror:8 %s" % (cU + 3, cU + 2, cU + 2, DPPALL))
    e("v_cndmask_b32 v%d, v%d, v%d, %s" % (cT, cU + 1, cU + 3, sp(sHI)))
    for md in ("quad_perm:[1,0,3,2]", "quad_perm:[2,3,0,1]", "row_half_mirror"):
        e("s_nop 1")
        e("v_add_f32_dpp v%d, v%d, v%d %s %s" % (cT, cT, cT, md, DPPALL))
    e("v_cvt_pk_bf16_f32 v%d, v%d, v%d" % (cT, cT, cT))
    e("v_and_b32 v%d, s%d, v%d" % (cT, sMASK, cT))
    e("v_mul_f32 v%d, v%d, v%d" % (cT, cT, cGS))
    e("v_cvt_pk_bf16_f32 v%d, v%d, v%d" % (cT, cT, cT))
    e("v_and_b32 v%d, s%d, v%d" % (cT, sMASK, cT))
    e("v_mov_b32 v%d, v%d" % (cT + 1, cT))
    e("s_nop 1")
    e("v_permlane32_swap_b32 v%d, v%d" % (cT, cT + 1))
    e("v_add_f32 v%d, v%d, v%d" % (cT, cT, cT + 1))
    e("v_cvt_pk_bf16_f32 v%d, v%d, v%d" % (cT, cT, cT))
    e("s_mov_b64 exec, 0x01010101")
    e("global_store_short v%d, v%d, %s %s" % (cOA, cT, sp(sOUT), P.get("outflag", "")))
    e("s_cmp_lg_u32 s2, 0")
    e("s_cbranch_scc1 L_fin")
    e("s_mov_b64 exec, 1")
    e("v_mov_b32 v%d, s%d" % (cT + 2, sTAG))
    e("v_mov_b32 v%d, 0" % (cT + 3))
    e("global_store_dword v%d, v%d, %s offset:%d" % (cT + 3, cT + 2, sp(sWS), WS_EPOCH))
    m.lab("L_fin")
    if P.get("ackstamp"):
        if P.get("amp"):
            e("s_memrealtime s[94:95]")
        e("s_waitcnt vmcnt(0)")
    stamp(9)
    if P.get("amp"):
        e("s_waitcnt lgkmcnt(0)")
        e("s_sub_u32 s93, s98, s94")
        e("s_mul_i32 s93, s93, %d" % P["amp"])
        e("s_add_u32 s98, s94, s93")
    if P.get("padto"):
        m.lab("L_pad")
        e("s_memrealtime s[96:97]")
        e("s_waitcnt lgkmcnt(0)")
        e("s_sub_u32 s96, s96, s98")
        e("s_cmp_lt_i32 s96, %d" % P["padto"])
        e("s_cbranch_scc1 L_pad")
    dump_stamps(10)
    m.lab("L_end")
    e("s_endpgm")

    hdr = open("cdna_kernels/%s.s.ref" % NAME).read().split("; Override launch")[0]
    out = hdr
    out += "; @launch grid=(256,1,1) block=(320,1,1) lds=%d\n" % P["lds"]
    out += DOC
    out += '.amdgcn_target "amdgcn-amd-amdhsa--gfx950"\n.text\n.globl %s_kernel\n.p2align 8\n.type %s_kernel,@function\n%s_kernel:\n' % (NAME, NAME, NAME)
    out += "\n".join(m.L) + "\n"
    out += """.section .rodata,"a"
.p2align 6
.amdhsa_kernel %s_kernel
  .amdhsa_next_free_vgpr 256
  .amdhsa_next_free_sgpr 102
  .amdhsa_accum_offset 256
  .amdhsa_group_segment_fixed_size 0
  .amdhsa_kernarg_size 112
  .amdhsa_user_sgpr_count 2
  .amdhsa_user_sgpr_kernarg_segment_ptr 1
  .amdhsa_system_sgpr_workgroup_id_x 1
.end_amdhsa_kernel
""" % NAME
    return out


if __name__ == "__main__":
    kw = {}
    outp = sys.argv[1]
    for a in sys.argv[2:]:
        k, v = a.split("=")
        kw[k] = int(v) if v.lstrip("-").isdigit() else v
    open(outp, "w").write(gen(**kw))
```
